```python
import torch

def _softmax(x, axis=-1):
    return torch.softmax(x, dim=axis)
def _gelu(x):
    return torch.nn.functional.gelu(x, approximate="tanh")
def _silu(x):
    return torch.nn.functional.silu(x)
def _sigmoid(x):
    return torch.sigmoid(x)
def _layernorm(x, axis=-1, eps=1e-5):
    m = x.mean(dim=axis, keepdim=True)
    v = x.var(dim=axis, keepdim=True, unbiased=False)
    return (x - m) / torch.sqrt(v + eps)
def _scatter_add(tgt, idx, src, axis=0):
    return tgt.clone().index_add_(axis, idx, src)
def _segment_sum(src, seg, n):
    out = torch.zeros((n,) + src.shape[1:], dtype=src.dtype)
    return out.index_add_(0, seg, src)
def _pad(x, pw):
    flat = tuple(v for pair in reversed(pw) for v in pair)
    return torch.nn.functional.pad(x, flat)

kernel_name = 'sequential_preLN__ssm_conv_h3__dense_activation_relu__prompt'

def setup_inputs():

    _w = (lambda a: (lambda t: t.to(torch.bfloat16) if t.is_floating_point() else t)(torch.as_tensor(a)))
    def _A_setup():
        B, S, D = 1, 2048, 448
        ks = 4
        return {
            "q": _w((lambda *s: torch.randn(*s, dtype=torch.bfloat16) * 0.05)(B, S, D)),
            "k": _w((lambda *s: torch.randn(*s, dtype=torch.bfloat16) * 0.4)(B, S, D)),
            "v": _w((lambda *s: torch.randn(*s, dtype=torch.bfloat16) * 0.4)(B, S, D)),
            "shift_k": _w((lambda *s: torch.randn(*s, dtype=torch.bfloat16) * 0.4)(D, ks) * 0.5),
            "ssm_k": _w((lambda *s: torch.randn(*s, dtype=torch.bfloat16) * 0.4)(D, S) * (1.0 / S ** 0.5)),
            "ssm_D": _w((lambda *s: torch.randn(*s, dtype=torch.bfloat16) * 0.4)(D)),
        }
    _A_in = _A_setup()

    def _B_setup():
        B, S, D, Dff = 1, 2048, 448, 1792
        return {
            "x": _w((lambda *s: torch.randn(*s, dtype=torch.bfloat16) * 0.05)(B, S, D)),
            "w1": _w((lambda *s: torch.randn(*s, dtype=torch.bfloat16) * 0.05)(D, Dff)),
            "w2": _w((lambda *s: torch.randn(*s, dtype=torch.bfloat16) * 0.05)(Dff, D)),
        }
    _B_in = _B_setup()

    return {
        "A_q": _A_in["q"],
        "A_k": _A_in["k"],
        "A_v": _A_in["v"],
        "A_shift_k": _A_in["shift_k"],
        "A_ssm_k": _A_in["ssm_k"],
        "A_ssm_D": _A_in["ssm_D"],
        "B_x": _B_in["x"],
        "B_w1": _B_in["w1"],
        "B_w2": _B_in["w2"],
    }

def reference(A_q, A_k, A_v, A_shift_k, A_ssm_k, A_ssm_D, B_x, B_w1, B_w2):
    def _A_ref(q, k, v, shift_k, ssm_k, ssm_D):
        B, S, D = q.shape
        ks = shift_k.shape[-1]
        k_pad = _pad(k, ((0, 0), (ks - 1, 0), (0, 0)))
        k_shift = torch.zeros_like(k)
        for t in range(ks):
            k_shift = k_shift + k_pad[:, t:t + S, :] * shift_k[:, ks - 1 - t][None, None, :]
        kv = k_shift * v
        L = 2 * S
        kv_pad = _pad(kv, ((0, 0), (0, S), (0, 0)))
        kf_pad = _pad(ssm_k, ((0, 0), (0, S)))
        kv_f = (lambda x, axes=(-2,-1): torch.fft.rfft2(x.float(), dim=axes))(kv_pad[:, None, :, :], axes=(1, 2))
        kf_f = (lambda x, axes=(-2,-1): torch.fft.rfft2(x.float(), dim=axes))(kf_pad[:, None, :], axes=(1, 2))
        kf_f = (lambda x, *d: x.permute(*d))(kf_f, 1, 2, 0)
        y_f = kv_f * kf_f[None, :, :, :]
        y = (lambda x, s, axes=(-2,-1): torch.fft.irfft2(x, s=s, dim=axes).to(torch.bfloat16))(y_f, (1, L), axes=(1, 2))[:, 0, :S, :]
        y = y + kv * ssm_D[None, None, :]
        return q * y

    def _B_ref(x, w1, w2):
        h = torch.einsum("bsd,df->bsf", x, w1)
        zero = torch.zeros_like(h)
        h = torch.maximum(h, zero)
        return torch.einsum("bsf,fd->bsd", h, w2)

    x = A_q
    h = x + _A_ref(_layernorm(x, axis=-1), A_k, A_v, A_shift_k, A_ssm_k, A_ssm_D)
    h2 = h + _B_ref(_layernorm(h, axis=-1), B_w1, B_w2)
    return h2
```

```python
import re

TRANS = ("v_exp_", "v_log_", "v_rcp_", "v_rsq_", "v_sqrt_", "v_sin_", "v_cos_")

def parse_regs(tok):
    tok = tok.strip()
    if tok.startswith("-"): tok = tok[1:]
    if tok.startswith("abs(") and tok.endswith(")"): tok = tok[4:-1]
    if tok.startswith("|") and tok.endswith("|"): tok = tok[1:-1]
    m = re.fullmatch(r"([vas])(\d+)", tok)
    if m: return [(m.group(1), int(m.group(2)))]
    m = re.fullmatch(r"([vas])\[(\d+):(\d+)\]", tok)
    if m: return [(m.group(1), i) for i in range(int(m.group(2)), int(m.group(3)) + 1)]
    if tok == "vcc": return [("s", "vcc")]
    if tok in ("vcc_lo", "vcc_hi"): return [("s", "vcc")]
    if tok == "exec": return [("s", "exec")]
    if tok == "m0": return [("s", "m0")]
    return []

class Ins:
    __slots__ = ("text", "op", "ops", "mods", "kind", "wr", "rd", "passes", "srcc", "srcab", "is_label", "note")
    def __init__(self, text):
        self.text = text
        t = text.split(";")[0].strip()
        self.is_label = t.endswith(":")
        self.kind = None; self.wr = set(); self.rd = set(); self.passes = 0; self.srcc = set(); self.srcab = set()
        self.op = ""; self.ops = []; self.mods = ""
        if not t or self.is_label or t.startswith("."):
            return
        parts = t.split(None, 1)
        self.op = parts[0]
        rest = parts[1] if len(parts) > 1 else ""
        ops = []; cur = ""; depth = 0
        for ch in rest:
            if ch in "[(": depth += 1
            if ch in "])": depth -= 1
            if ch == "," and depth == 0:
                ops.append(cur.strip()); cur = ""
            else: cur += ch
        if cur.strip(): ops.append(cur.strip())
        if ops:
            last = ops[-1].split(None, 1)
            ops[-1] = last[0]
            self.mods = last[1] if len(last) > 1 else ""
        self.ops = ops
        self.classify()
    def R(self, i):
        return set(parse_regs(self.ops[i])) if i < len(self.ops) else set()
    def allR(self, start):
        s = set()
        for i in range(start, len(self.ops)): s |= self.R(i)
        return s
    def classify(self):
        op = self.op
        if op.startswith("v_mfma"):
            self.kind = "mfma"
            self.passes = 8 if "32x32x16" in op or "32x32x8" in op else 4
            if "32x32x2_f32" in op: self.passes = 16
            if "16x16x4_f32" in op: self.passes = 8
            self.wr = self.R(0); self.srcab = self.R(1) | self.R(2); self.srcc = self.R(3)
            self.rd = self.srcab | self.srcc
        elif op.startswith("v_"):
            self.kind = "valu"
            if op.startswith("v_cmp"):
                self.wr = self.R(0); self.rd = self.allR(1)
                if op.startswith("v_cmpx"): self.wr |= {("s", "exec")}
            elif op.startswith("v_readfirstlane") or op.startswith("v_readlane"):
                self.wr = self.R(0); self.rd = self.allR(1)
            elif op.startswith("v_permlane") and "swap" in op:
                self.wr = self.R(0) | self.R(1); self.rd = self.R(0) | self.R(1)
            elif op.startswith(("v_add_co", "v_sub_co", "v_subrev_co", "v_addc_co", "v_subb_co", "v_mad_u64", "v_div_scale")):
                self.wr = self.R(0) | self.R(1); self.rd = self.allR(2)
            else:
                self.wr = self.R(0); self.rd = self.allR(1)
                if op.startswith(("v_fmac", "v_mac", "v_dot2c", "v_pk_fmac", "v_writelane")) : self.rd |= self.R(0)
                if op.startswith("v_cndmask") and len(self.ops) == 3: self.rd |= {("s", "vcc")}
                if "_dpp" in op or "_sdwa" in op or "row_" in self.mods or "quad_perm" in self.mods or "wave_" in self.mods:
                    self.rd |= self.R(0)
        elif op.startswith(("buffer_load", "global_load", "flat_load", "scratch_load")):
            self.kind = "vmem"
            if "lds" in self.mods.split() or "_lds_" in op:
                self.rd = self.allR(0) | {("s", "m0")}
                self.kind = "vmem_lds"
            else:
                self.wr = self.R(0); self.rd = self.allR(1)
        elif op.startswith(("buffer_store", "global_store", "flat_store", "buffer_atomic", "global_atomic")):
            self.kind = "vmem_st"
            self.rd = self.allR(0)
            if "atomic" in op and "sc0" in self.mods.split():
                self.wr = self.R(0)
        elif op.startswith("ds_"):
            self.kind = "ds"
            if op.startswith(("ds_read", "ds_bpermute", "ds_permute", "ds_swizzle")):
                self.wr = self.R(0); self.rd = self.allR(1)
            else:
                self.rd = self.allR(0)
        elif op.startswith("s_"):
            self.kind = "salu"
            if op in ("s_waitcnt", "s_barrier", "s_nop", "s_endpgm", "s_sleep", "s_setprio", "s_branch") or op.startswith("s_cbranch"):
                pass
            elif op.startswith("s_cmp") or op.startswith("s_bitcmp"):
                self.rd = self.allR(0)
            elif op.startswith(("s_load", "s_buffer_load", "s_memtime", "s_memrealtime", "s_getreg")):
                self.wr = self.R(0); self.rd = self.allR(1)
            else:
                self.wr = self.R(0); self.rd = self.allR(1)
                if "saveexec" in op: self.wr |= {("s", "exec")}; self.rd |= {("s", "exec")}
        else:
            self.kind = "other"
    def nstates(self):
        if self.op == "s_nop":
            return int(self.ops[0], 0) + 1
        if self.kind is None: return 0
        return 1
    def is_wide_store(self):
        return self.kind == "vmem_st" and ("x3" in self.op or "x4" in self.op)
    def store_data(self):
        if self.op.startswith("buffer_store"): return self.R(0)
        if self.op.startswith("global_store"): return self.R(1)
        return set()

def need(prod, cons):
    n = 0
    pv = {r for r in prod.wr if r[0] in "va"}
    ps = {r for r in prod.wr if r[0] == "s"}
    if prod.kind == "valu":
        if cons.kind == "mfma" and pv & cons.rd: n = max(n, 2)
        if cons.kind == "valu":
            if ps & cons.rd:
                n = max(n, 2)
                if cons.op.startswith(("v_readlane", "v_writelane")) : n = max(n, 4)
            if pv & cons.rd:
                if cons.op.startswith(("v_readfirstlane", "v_readlane")): n = max(n, 1)
                if "_dpp" in cons.op or "row_" in cons.mods or "quad_perm" in cons.mods or "wave_" in cons.mods: n = max(n, 2)
                if cons.op.startswith("v_permlane"): n = max(n, 2)
                if prod.op.startswith(TRANS) and not cons.op.startswith(TRANS): n = max(n, 1)
                if prod.op.startswith(TRANS): n = max(n, 1)
                if ("sdwa" in prod.op and "dst_sel:DWORD" not in prod.mods) or ("op_sel:" in prod.mods and not prod.op.startswith("v_pk")): n = max(n, 1)
            if prod.op.startswith("v_dot"):
                if pv & (cons.rd | cons.wr):
                    if cons.op == prod.op:
                        ab = cons.R(1) | cons.R(2)
                        if pv & ab: n = max(n, 3)
                    else: n = max(n, 3)
            if ("s", "exec") in ps and cons.op.startswith("v_permlane"): n = max(n, 4)
        if cons.kind in ("vmem", "vmem_st", "vmem_lds") and ps & cons.rd: n = max(n, 5)
        if prod.op.startswith("v_dot") and cons.kind != "valu" and pv & (cons.rd | cons.wr): n = max(n, 3)
        if cons.kind == "mfma" and ("s", "exec") in ps: n = max(n, 4)
    if prod.kind == "mfma":
        P = prod.passes
        tab_c = {2: 4, 4: 6, 8: 10, 16: 18}[P]
        tab_ab = {2: 5, 4: 8, 8: 12, 16: 20}[P]
        if cons.kind == "mfma":
            if pv & cons.srcab: n = max(n, tab_ab)
            if pv & cons.srcc:
                if cons.srcc == prod.wr and cons.passes == prod.passes: pass
                else: n = max(n, tab_c)
            if (pv & cons.wr) and not (pv & cons.srcc): n = max(n, tab_c)
        elif cons.kind in ("valu", "vmem", "vmem_st", "vmem_lds", "ds"):
            if pv & (cons.rd | cons.wr): n = max(n, tab_ab)
        if cons.kind == "valu" and prod.srcc & cons.wr:
            n = max(n, {2: 1, 4: 3, 8: 7, 16: 15}[P])
    if prod.is_wide_store():
        d = prod.store_data()
        if d & cons.wr:
            n = max(n, 2 if cons.kind == "valu" else 1)
    if prod.kind == "salu" and ("s", "m0") in ps and cons.kind == "vmem_lds": n = max(n, 1)
    return n

WINDOW = 24
def fix_hazards(lines, verbose=False):
    ins = []
    for l in lines:
        for sub in l.split("\n"):
            ins.append(Ins(sub))
    out = []
    added = 0
    for cur in ins:
        if cur.kind is not None and cur.op != "s_nop":
            dist = 0; req = 0
            for prev in reversed(out):
                if prev.kind is None: continue
                k = need(prev, cur)
                if k - dist > req: req = k - dist
                dist += prev.nstates()
                if dist >= WINDOW: break
            if req > 0:
                added += req
                while req > 0:
                    k = min(req, 16)
                    out.append(Ins("    s_nop %d" % (k - 1)))
                    req -= k
        out.append(cur)
    labels = {}
    for i, x in enumerate(out):
        if x.is_label: labels[x.text.split(";")[0].strip()[:-1]] = i
    problems = []
    for i, x in enumerate(out):
        if x.kind == "salu" and (x.op == "s_branch" or x.op.startswith("s_cbranch")):
            tgt = x.ops[0]
            if tgt not in labels: continue
            j = labels[tgt]
            tail = [p for p in out[max(0, i - 60):i + 1] if p.kind is not None]
            head = [p for p in out[j:j + 60] if p.kind is not None]
            d0 = 0
            for hi, c in enumerate(head):
                dist = d0
                for p in reversed(tail):
                    k = need(p, c)
                    if k > dist:
                        problems.append("branch %s -> %s: '%s' needs %d states before '%s' (has %d)" % (x.text.strip(), tgt, p.text.strip(), k, c.text.strip(), dist))
                    dist += p.nstates()
                    if dist >= WINDOW: break
                d0 += c.nstates()
                if d0 >= WINDOW: break
                if c.op == "s_branch" or c.op == "s_endpgm": break
    if problems:
        raise RuntimeError("hazards across branches:\n" + "\n".join(problems))
    if verbose: print("hazard pass: added %d wait states" % added)
    return [x.text for x in out]

class Asm:
    def __init__(self):
        self.lines = []
        self.uid = 0
    def __call__(self, s, *a):
        if a: s = s % a
        for l in s.split("\n"):
            l = l.rstrip()
            if not l.strip(): continue
            st = l.strip()
            if st.endswith(":") or st.startswith(".") or st.startswith(";"):
                self.lines.append(st)
            else:
                self.lines.append("    " + st)
    def label(self, base="L"):
        self.uid += 1
        return "%s_%d" % (base, self.uid)
    def comment(self, s):
        self.lines.append("    ; " + s)

def vr(b, n=1):
    return "v%d" % b if n == 1 else "v[%d:%d]" % (b, b + n - 1)
def ar(b, n=1):
    return "a%d" % b if n == 1 else "a[%d:%d]" % (b, b + n - 1)
def sr(b, n=1):
    return "s%d" % b if n == 1 else "s[%d:%d]" % (b, b + n - 1)

def kernel_header(name):
    return [".globl %s" % name, ".p2align 8", ".type %s,@function" % name, "%s:" % name]

def kernel_desc(name, vgpr, sgpr, accum=None, agpr=0):
    if accum is None: accum = (vgpr + 3) // 4 * 4
    nfv = accum + agpr if agpr else vgpr
    return [".p2align 6", ".amdhsa_kernel %s" % name,
            "  .amdhsa_next_free_vgpr %d" % nfv,
            "  .amdhsa_next_free_sgpr %d" % sgpr,
            "  .amdhsa_accum_offset %d" % accum,
            "  .amdhsa_group_segment_fixed_size 0",
            "  .amdhsa_kernarg_size 96",
            "  .amdhsa_user_sgpr_count 2",
            "  .amdhsa_user_sgpr_kernarg_segment_ptr 1",
            "  .amdhsa_system_sgpr_workgroup_id_x 1",
            ".end_amdhsa_kernel"]
```

```python
from asmlib import *
S, D, F = 2048, 448, 1792
KA_Q, KA_K, KA_V, KA_SK, KA_SSMK, KA_SSMD, KA_BX, KA_W1, KA_W2, KA_OUT, KA_DBG, KA_WS = [8 * i for i in range(12)]
WS_UREV = 0x000000
WS_X2   = 0x200000
WS_ST1  = 0x400000
WS_HF   = 0x500000
WS_W1F  = 0x700000
WS_W2F  = 0x900000
WS_H1F  = 0xB00000
WS_ST2  = 0x1300000
WS_END  = 0x1400000
NB_SD = S * D * 2

def srd(a, s, base_lo, base_hi, nbytes, off=0):
    if off:
        a("s_add_u32 s%d, s%d, 0x%x" % (s, base_lo, off))
        a("s_addc_u32 s%d, s%d, 0" % (s + 1, base_hi))
        a("s_and_b32 s%d, s%d, 0xffff" % (s + 1, s + 1))
    else:
        a("s_mov_b32 s%d, s%d" % (s, base_lo))
        a("s_and_b32 s%d, s%d, 0xffff" % (s + 1, base_hi))
    a("s_mov_b32 s%d, 0x%x" % (s + 2, nbytes))
    a("s_mov_b32 s%d, 0x20000" % (s + 3))
```

```python
from common import *

def gen_k1(name="k1_kernel"):
    a = Asm()
    for l in kernel_header(name): a(l)
    a("s_load_dwordx4 s[4:7], s[0:1], %d" % KA_Q)
    a("s_load_dwordx4 s[8:11], s[0:1], %d" % KA_V)
    a("s_load_dwordx2 s[12:13], s[0:1], %d" % KA_WS)
    a("s_cmp_ge_u32 s2, 256")
    a("s_cbranch_scc1 K1_END")
    a("v_and_b32 v1, 7, v0")
    a("v_lshrrev_b32 v2, 3, v0")
    a("s_cmp_ge_u32 s2, 224")
    a("s_cbranch_scc1 K1_STATS")
    a("s_mul_i32 s14, s2, 9363")
    a("s_lshr_b32 s14, s14, 16")
    a("s_mul_i32 s15, s14, 7")
    a("s_sub_u32 s15, s2, s15")
    a("s_mul_i32 s44, s14, %d" % (64 * 896))
    a("s_lshl_b32 s45, s15, 7")
    a("s_add_u32 s44, s44, s45")
    a("v_mul_u32_u24 v8, %d, v2" % (2 * 896))
    a("v_lshl_add_u32 v8, v1, 4, v8")
    a("v_add_u32 v8, s44, v8")
    for j in range(5):
        d = (j - 3) * 896
        if d < 0: a("v_subrev_u32 v%d, %d, v8" % (3 + j, -d))
        else: a("v_add_u32 v%d, %d, v8" % (3 + j, d))
    a("s_lshl_b32 s45, s15, 9")
    a("v_lshl_add_u32 v9, v1, 6, s45")
    a("s_waitcnt lgkmcnt(0)")
    srd(a, 16, 4, 5, NB_SD)
    srd(a, 20, 6, 7, NB_SD)
    srd(a, 24, 8, 9, NB_SD)
    srd(a, 28, 10, 11, 448 * 4 * 2)
    for j in range(5):
        a("buffer_load_dwordx4 v[%d:%d], v%d, s[20:23], 0 offen" % (16 + 4 * j, 19 + 4 * j, 3 + j))
    for j in range(4):
        a("buffer_load_dwordx4 v[%d:%d], v9, s[28:31], 0 offen offset:%d" % (52 + 4 * j, 55 + 4 * j, 16 * j))
    a("buffer_load_dwordx4 v[36:39], v8, s[24:27], 0 offen")
    a("buffer_load_dwordx4 v[40:43], v8, s[24:27], 0 offen offset:896")
    a("buffer_load_dwordx4 v[44:47], v8, s[16:19], 0 offen")
    a("buffer_load_dwordx4 v[48:51], v8, s[16:19], 0 offen offset:896")
    srd(a, 32, 12, 13, NB_SD, WS_UREV)
    srd(a, 36, 12, 13, NB_SD, WS_X2)
    a("v_sub_u32 v10, 31, v2")
    a("v_lshrrev_b32 v11, 2, v10")
    a("v_xor_b32 v11, v11, v1")
    a("v_lshlrev_b32 v11, 4, v11")
    a("v_and_b32 v10, 3, v10")
    a("v_lshl_add_u32 v11, v10, 2, v11")
    a("v_lshl_add_u32 v11, v1, 10, v11")
    a("v_lshrrev_b32 v12, 1, v2")
    a("v_xor_b32 v12, v12, v1")
    a("v_lshlrev_b32 v12, 4, v12")
    a("v_and_b32 v13, 1, v2")
    a("v_lshl_add_u32 v12, v13, 3, v12")
    a("v_lshl_add_u32 v12, v1, 10, v12")
    a("v_add_u32 v12, 8192, v12")
    a("s_waitcnt vmcnt(4)")
    W = lambda c, t: 68 + (c * 4 + t) * 2
    for c in range(4):
        r = 52 + 4 * c
        a("v_lshlrev_b32 v%d, 16, v%d" % (W(c, 0), r))
        a("v_lshlrev_b32 v%d, 16, v%d" % (W(c, 0) + 1, r + 2))
        a("v_and_b32 v%d, 0xffff0000, v%d" % (W(c, 1), r))
        a("v_and_b32 v%d, 0xffff0000, v%d" % (W(c, 1) + 1, r + 2))
        a("v_lshlrev_b32 v%d, 16, v%d" % (W(c, 2), r + 1))
        a("v_lshlrev_b32 v%d, 16, v%d" % (W(c, 2) + 1, r + 3))
        a("v_and_b32 v%d, 0xffff0000, v%d" % (W(c, 3), r + 1))
        a("v_and_b32 v%d, 0xffff0000, v%d" % (W(c, 3) + 1, r + 3))
    K = lambda j, c: 100 + (j * 4 + c) * 2
    for j in range(5):
        for c in range(4):
            r = 16 + 4 * j + c
            a("v_lshlrev_b32 v%d, 16, v%d" % (K(j, c), r))
            a("v_and_b32 v%d, 0xffff0000, v%d" % (K(j, c) + 1, r))
    U = lambda e, c: 140 + e * 8 + 2 * c
    P = lambda r: "v[%d:%d]" % (r, r + 1)
    for e in range(2):
        for c in range(4):
            a("v_pk_mul_f32 %s, %s, %s" % (P(U(e, c)), P(K(3 + e, c)), P(W(c, 0))))
        for t in range(1, 4):
            for c in range(4):
                a("v_pk_fma_f32 %s, %s, %s, %s" % (P(U(e, c)), P(K(3 + e - t, c)), P(W(c, t)), P(U(e, c))))
    a("s_waitcnt vmcnt(2)")
    for e in range(2):
        for c in range(4):
            r = 36 + 4 * e + c
            t = 156 + (e * 4 + c) * 2
            a("v_lshlrev_b32 v%d, 16, v%d" % (t, r))
            a("v_and_b32 v%d, 0xffff0000, v%d" % (t + 1, r))
    for e in range(2):
        for c in range(4):
            t = 156 + (e * 4 + c) * 2
            a("v_pk_mul_f32 %s, %s, %s" % (P(U(e, c)), P(U(e, c)), P(t)))
    for i in range(8):
        a("v_cvt_pk_bf16_f32 v%d, v%d, v%d" % (172 + i, 148 + i, 140 + i))
    for i in range(8):
        a("ds_write_b32 v11, v%d offset:%d" % (172 + i, i * 128))
    a("s_waitcnt vmcnt(0)")
    for i in range(4):
        a("ds_write2_b32 v12, v%d, v%d offset0:%d offset1:%d" % (44 + i, 48 + i, 64 * i, 64 * i + 1))
    a("v_lshrrev_b32 v14, 3, v2")
    a("v_xor_b32 v15, v1, v14")
    a("v_lshlrev_b32 v15, 4, v15")
    a("v_lshl_add_u32 v15, v2, 7, v15")
    a("v_xor_b32 v3, 64, v15")
    a("v_add_u32 v3, 4096, v3")
    a("v_and_b32 v4, 15, v0")
    a("v_lshrrev_b32 v5, 4, v0")
    a("v_lshrrev_b32 v6, 6, v0")
    a("v_xor_b32 v7, v4, v6")
    a("v_lshlrev_b32 v7, 4, v7")
    a("v_lshl_add_u32 v7, v5, 8, v7")
    a("v_add_u32 v7, 8192, v7")
    a("v_xor_b32 v10, 64, v7")
    a("v_add_u32 v10, 4096, v10")
    a("s_lshl_b32 s45, s15, 18")
    a("s_lshl_b32 s46, s14, 7")
    a("s_sub_u32 s46, 3968, s46")
    a("s_add_u32 s45, s45, s46")
    a("v_lshlrev_b32 v13, 12, v2")
    a("v_lshl_add_u32 v13, v1, 4, v13")
    a("v_add_u32 v13, s45, v13")
    a("s_lshl_b32 s45, s15, 18")
    a("s_lshl_b32 s46, s14, 8")
    a("s_add_u32 s45, s45, s46")
    a("v_lshlrev_b32 v9, 13, v5")
    a("v_lshl_add_u32 v9, v4, 4, v9")
    a("v_add_u32 v9, s45, v9")
    a("s_waitcnt lgkmcnt(0)")
    a("s_barrier")
    a("ds_read_b128 v[16:19], v15")
    a("ds_read_b128 v[20:23], v3")
    a("ds_read_b128 v[24:27], v7")
    a("ds_read_b128 v[28:31], v10")
    a("s_mov_b32 s45, %d" % (32 * 4096))
    a("s_mov_b32 s46, %d" % (16 * 8192))
    a("s_waitcnt lgkmcnt(3)")
    a("buffer_store_dwordx4 v[16:19], v13, s[32:35], 0 offen")
    a("s_waitcnt lgkmcnt(2)")
    a("buffer_store_dwordx4 v[20:23], v13, s[32:35], s45 offen")
    a("s_waitcnt lgkmcnt(1)")
    a("buffer_store_dwordx4 v[24:27], v9, s[36:39], 0 offen")
    a("s_waitcnt lgkmcnt(0)")
    a("buffer_store_dwordx4 v[28:31], v9, s[36:39], s46 offen")
    a("s_endpgm")
    a("K1_STATS:")
    a("s_sub_u32 s14, s2, 224")
    a("s_mul_i32 s44, s14, %d" % (64 * 896))
    a("v_lshrrev_b32 v3, 3, v2")
    a("v_and_b32 v4, 7, v2")
    a("v_lshl_add_u32 v5, v3, 4, v4")
    a("v_mul_u32_u24 v6, 896, v5")
    a("v_lshl_add_u32 v6, v1, 4, v6")
    a("v_add_u32 v6, s44, v6")
    a("v_add_u32 v7, %d, v6" % (8 * 896))
    a("s_waitcnt lgkmcnt(0)")
    srd(a, 16, 4, 5, NB_SD)
    for p in range(2):
        for i in range(7):
            r = 16 + (p * 7 + i) * 4
            a("buffer_load_dwordx4 v[%d:%d], v%d, s[16:19], 0 offen offset:%d" % (r, r + 3, 6 + p, i * 128))
    srd(a, 40, 12, 13, S * 8, WS_ST1)
    a("v_mov_b32 v8, 0x3f803f80")
    for p in range(2):
        a("v_mov_b32 v%d, 0" % (80 + 2 * p))
        a("v_mov_b32 v%d, 0" % (81 + 2 * p))
    for p in range(2):
        for i in range(7):
            a("s_waitcnt vmcnt(%d)" % (13 - (p * 7 + i)))
            for c in range(4):
                r = 16 + (p * 7 + i) * 4 + c
                a("v_dot2_f32_bf16 v%d, v%d, v8, v%d" % (80 + 2 * p, r, 80 + 2 * p))
                a("v_dot2_f32_bf16 v%d, v%d, v%d, v%d" % (81 + 2 * p, r, r, 81 + 2 * p))
    for mod in ("quad_perm:[1,0,3,2]", "quad_perm:[2,3,0,1]", "row_half_mirror"):
        for r in range(80, 84):
            a("v_add_f32_dpp v%d, v%d, v%d %s row_mask:0xf bank_mask:0xf" % (r, r, r, mod))
    a("s_mov_b32 s45, 0x%08x" % 0x3b124925)
    a("s_mov_b32 s46, 0x3727c5ac")
    for p in range(2):
        s_, q_ = 80 + 2 * p, 81 + 2 * p
        a("v_mul_f32 v%d, s45, v%d" % (s_, s_))
        a("v_mul_f32 v%d, s45, v%d" % (q_, q_))
        a("v_fma_f32 v%d, -v%d, v%d, v%d" % (q_, s_, s_, q_))
        a("v_max_f32 v%d, 0, v%d" % (q_, q_))
        a("v_add_f32 v%d, s46, v%d" % (q_, q_))
        a("v_rsq_f32 v%d, v%d" % (84 + 2 * p, q_))
        a("v_mul_f32 v%d, -v%d, v%d" % (85 + 2 * p, s_, 84 + 2 * p) if False else "v_mul_f32 v%d, v%d, v%d" % (85 + 2 * p, s_, 84 + 2 * p))
        a("v_sub_f32 v%d, 0, v%d" % (85 + 2 * p, 85 + 2 * p))
    a("s_lshl_b32 s44, s14, 9")
    a("v_lshl_add_u32 v9, v5, 3, s44")
    a("v_cmp_eq_u32 vcc, 0, v1")
    a("s_and_saveexec_b64 s[46:47], vcc")
    a("buffer_store_dwordx2 v[84:85], v9, s[40:43], 0 offen")
    a("buffer_store_dwordx2 v[86:87], v9, s[40:43], 0 offen offset:64")
    a("K1_END:")
    a("s_endpgm")
    return a.lines, dict(vgpr=184, sgpr=48, lds=16384, grid=256)

if __name__ == "__main__":
    import struct
    print(hex(struct.unpack("<I", struct.pack("<f", 1.0 / 448))[0]), hex(struct.unpack("<I", struct.pack("<f", 1e-5))[0]))
```

```python
from common import *

HC = 0
HC_CH = 4 * 4160
UR = 2 * HC_CH
UR_CH = 4608
PB = UR + 2 * UR_CH
LDS_CONV = PB + 32768
LDS_K2 = 4 * 28 * 1024

def gen_wprep(a):
    a("K2_WPREP:")
    a("v_lshrrev_b32 v1, 6, v0")
    a("v_and_b32 v2, 63, v0")
    a("v_readfirstlane_b32 s20, v1")
    a("s_sub_u32 s21, s2, 224")
    a("s_lshl_b32 s21, s21, 2")
    a("s_add_u32 s21, s21, s20")
    a("s_cmp_ge_u32 s21, 112")
    a("s_cbranch_scc1 K2_END")
    a("s_waitcnt lgkmcnt(0)")
    a("s_cmp_ge_u32 s21, 56")
    a("s_cbranch_scc1 K2_WPREP_W2")
    srd(a, 24, 12, 13, D * F * 2)
    a("s_mov_b32 s28, 3584")
    a("s_lshl_b32 s29, s21, 6")
    a("s_mul_i32 s30, s21, %d" % (28 * 1024))
    a("s_add_u32 s30, s30, 0x%x" % WS_W1F)
    a("s_mov_b32 s31, 1")
    a("s_branch K2_WPREP_GO")
    a("K2_WPREP_W2:")
    srd(a, 24, 14, 15, D * F * 2)
    a("s_sub_u32 s22, s21, 56")
    a("s_mul_i32 s23, s22, 4682")
    a("s_lshr_b32 s23, s23, 16")
    a("s_mul_i32 s32, s23, 14")
    a("s_sub_u32 s22, s22, s32")
    a("s_mov_b32 s28, 896")
    a("s_mul_i32 s29, s23, %d" % (448 * 896))
    a("s_lshl_b32 s32, s22, 6")
    a("s_add_u32 s29, s29, s32")
    a("s_mul_i32 s30, s22, %d" % (112 * 1024))
    a("s_mul_i32 s32, s23, %d" % (28 * 1024))
    a("s_add_u32 s30, s30, s32")
    a("s_add_u32 s30, s30, 0x%x" % WS_W2F)
    a("s_mov_b32 s31, 0")
    a("K2_WPREP_GO:")
    srd(a, 36, 8, 9, WS_END)
    a("v_lshrrev_b32 v3, 2, v2")
    a("v_mul_lo_u32 v3, v3, s28")
    a("v_and_b32 v4, 3, v2")
    a("v_lshl_add_u32 v3, v4, 4, v3")
    a("s_lshl_b32 s33, s28, 4")
    a("s_mul_i32 s34, s20, %d" % (28 * 1024))
    a("s_mov_b32 s35, s29")
    for ks in range(28):
        a("s_add_u32 m0, s34, %d" % (ks * 1024))
        a("buffer_load_dwordx4 v3, s[24:27], s35 offen lds")
        if ks != 27: a("s_add_u32 s35, s35, s33")
    a("v_lshrrev_b32 v5, 5, v2")
    a("v_lshlrev_b32 v5, 2, v5")
    a("v_bfe_u32 v6, v2, 2, 2")
    a("v_add_u32 v5, v5, v6")
    a("v_lshlrev_b32 v5, 6, v5")
    a("v_bfe_u32 v6, v2, 4, 1")
    a("v_lshl_add_u32 v5, v6, 5, v5")
    a("v_and_b32 v6, 3, v2")
    a("v_lshl_add_u32 v5, v6, 3, v5")
    a("v_add_u32 v5, s34, v5")
    a("v_lshlrev_b32 v7, 4, v2")
    a("v_mov_b32 v8, 0x3f803f80")
    a("v_mov_b32 v9, 0")
    FR = 16
    for ks in range(28):
        a("s_waitcnt vmcnt(%d)" % (27 - ks))
        a("ds_read_b64_tr_b16 v[%d:%d], v5 offset:%d" % (FR + 4 * ks, FR + 4 * ks + 1, ks * 1024))
        a("ds_read_b64_tr_b16 v[%d:%d], v5 offset:%d" % (FR + 4 * ks + 2, FR + 4 * ks + 3, ks * 1024 + 512))
    a("s_cmp_eq_u32 s31, 0")
    a("s_cbranch_scc1 K2_WPREP_STORE")
    a("s_waitcnt lgkmcnt(0)")
    for i in range(112):
        a("v_dot2_f32_bf16 v9, v%d, v8, v9" % (FR + i))
    a("v_mov_b32 v10, v9")
    a("v_permlane32_swap_b32 v9, v10")
    a("v_add_f32 v10, v9, v10")
    a("v_mul_f32 v10, 0xbb124925, v10")
    for i in range(112):
        r = FR + i
        a("v_lshlrev_b32 v12, 16, v%d" % r if i % 2 == 0 else "v_lshlrev_b32 v14, 16, v%d" % r)
        t = 12 if i % 2 == 0 else 14
        a("v_and_b32 v%d, 0xffff0000, v%d" % (t + 1, r))
        a("v_pk_add_f32 v[%d:%d], v[%d:%d], v[10:11] op_sel_hi:[1,0]" % (t, t + 1, t, t + 1))
        a("v_cvt_pk_bf16_f32 v%d, v%d, v%d" % (r, t, t + 1))
    a("K2_WPREP_STORE:")
    a("s_waitcnt lgkmcnt(0)")
    for ks in range(28):
        a("buffer_store_dwordx4 v[%d:%d], v7, s[36:39], s30 offen" % (FR + 4 * ks, FR + 4 * ks + 3))
        if ks != 27: a("s_add_u32 s30, s30, 1024")
    a("s_endpgm")

def gen_k2(name="k2_kernel"):
    a = Asm()
    for l in kernel_header(name): a(l)
    a("s_load_dwordx4 s[4:7], s[0:1], %d" % KA_SSMK)
    a("s_load_dwordx2 s[8:9], s[0:1], %d" % KA_WS)
    a("s_load_dwordx4 s[12:15], s[0:1], %d" % KA_W1)
    a("s_cmp_ge_u32 s2, 256")
    a("s_cbranch_scc1 K2_END")
    a("s_cmp_ge_u32 s2, 224")
    a("s_cbranch_scc1 K2_WPREP")
    a("s_and_b32 s16, s2, 7")
    a("s_mul_i32 s16, s16, 28")
    a("s_lshr_b32 s17, s2, 3")
    a("s_add_u32 s16, s16, s17")
    a("v_lshrrev_b32 v1, 6, v0")
    a("v_and_b32 v2, 63, v0")
    a("v_readfirstlane_b32 s18, v1")
    a("v_lshlrev_b32 v3, 4, v0")
    a("s_lshl_b32 s19, s16, 13")
    a("s_add_u32 s20, s19, 4096")
    a("s_lshl_b32 s21, s16, 2")
    a("s_waitcnt lgkmcnt(0)")
    a("s_load_dword s22, s[6:7], s21")
    srd(a, 24, 4, 5, NB_SD)
    srd(a, 28, 8, 9, NB_SD, WS_UREV)
    for c in range(2):
        for k in range(3):
            r = 16 + (c * 3 + k) * 4
            a("buffer_load_dwordx4 v[%d:%d], v3, s[24:27], s%d offen offset:%d" % (r, r + 3, 19 + c, 4 * k))
    a("s_lshr_b32 s32, s18, 1")
    a("s_and_b32 s33, s18, 1")
    a("s_lshl_b32 s34, s32, 12")
    a("s_add_u32 s34, s34, s19")
    a("s_lshl_b32 s35, s33, 11")
    a("s_add_u32 s34, s34, s35")
    a("s_mul_i32 s36, s32, %d" % UR_CH)
    a("s_add_u32 s36, s36, s35")
    a("s_add_u32 s36, s36, %d" % UR)
    a("v_lshlrev_b32 v4, 4, v2")
    a("s_mov_b32 m0, s36")
    a("s_add_u32 s37, s34, 1024")
    a("buffer_load_dwordx4 v4, s[28:31], s34 offen lds")
    a("s_add_u32 m0, s36, 1024")
    a("buffer_load_dwordx4 v4, s[28:31], s37 offen lds")
    a("v_and_b32 v5, 15, v2")
    a("v_lshrrev_b32 v6, 4, v2")
    a("v_add_u32 v7, v5, v6")
    a("v_subrev_u32 v7, 15, v7")
    a("v_lshlrev_b32 v8, 1, v7")
    a("v_mov_b32 v9, 0x40000000")
    a("v_cmp_gt_i32 vcc, 0, v7")
    a("v_cndmask_b32 v8, v8, v9, vcc")
    a("s_and_b32 s38, s18, 1")
    a("s_lshl_b32 s39, s38, 12")
    a("s_add_u32 s39, s39, s19")
    a("buffer_load_ushort v10, v8, s[24:27], s39 offen")
    srd(a, 40, 8, 9, NB_SD, WS_X2)
    srd(a, 44, 8, 9, S * 8, WS_ST1)
    srd(a, 48, 8, 9, NB_SD, WS_HF)
    a("v_lshlrev_b32 v11, 2, v0")
    a("v_lshlrev_b32 v12, 3, v0")
    XR, SR_ = 200, 208
    for j in range(8):
        a("s_add_u32 s52, s19, %d" % (j * 1024))
        a("buffer_load_dword v%d, v11, s[40:43], s52 offen" % (XR + j))
    for j in range(8):
        a("s_mov_b32 s52, %d" % (j * 2048))
        a("buffer_load_dwordx2 v[%d:%d], v12, s[44:47], s52 offen" % (SR_ + 2 * j, SR_ + 2 * j + 1))
    a("v_lshrrev_b32 v13, 5, v2")
    a("v_mul_u32_u24 v13, %d, v13" % UR_CH)
    a("v_and_b32 v14, 31, v2")
    a("v_lshl_add_u32 v13, v14, 4, v13")
    a("v_add_u32 v13, %d, v13" % (UR + 4096))
    for i in range(4): a("v_mov_b32 v%d, 0" % (40 + i))
    a("ds_write_b128 v13, v[40:43]")
    a("v_add_u32 v15, 32, v3")
    for c in range(2):
        a("s_waitcnt vmcnt(%d)" % (22 - 3 * c))
        L0, L1, L2 = 16 + c * 12, 20 + c * 12, 24 + c * 12
        for i in range(4):
            a("v_alignbit_b32 v%d, v%d, v%d, 16" % (44 + i, L1 + i, L0 + i))
        for i in range(4):
            a("v_alignbit_b32 v%d, v%d, v%d, 16" % (48 + i, L2 + i, L1 + i))
        base = HC + c * HC_CH
        a("ds_write_b128 v15, v[44:47] offset:%d" % (base + 0 * 4160))
        a("ds_write_b128 v15, v[%d:%d] offset:%d" % (L1, L1 + 3, base + 1 * 4160))
        a("ds_write_b128 v15, v[48:51] offset:%d" % (base + 2 * 4160))
        a("ds_write_b128 v15, v[%d:%d] offset:%d" % (L2, L2 + 3, base + 3 * 4160))
    a("v_mul_u32_u24 v9, 4160, v6")
    a("v_lshl_add_u32 v9, v5, 1, v9")
    a("s_mul_i32 s39, s38, %d" % HC_CH)
    a("v_add_u32 v9, s39, v9")
    a("s_waitcnt vmcnt(16)")
    a("ds_write_b16 v9, v10 offset:%d" % HC)
    a("v_and_b32 v16, 3, v5")
    a("v_mul_u32_u24 v16, 4160, v16")
    a("v_lshrrev_b32 v17, 2, v5")
    a("v_lshl_add_u32 v16, v17, 3, v16")
    a("v_lshl_add_u32 v16, v6, 4, v16")
    a("s_mul_i32 s39, s32, %d" % HC_CH)
    a("s_lshl_b32 s52, s33, 8")
    a("s_add_u32 s39, s39, s52")
    a("v_add_u32 v16, s39, v16")
    a("v_lshlrev_b32 v17, 5, v5")
    a("v_lshlrev_b32 v18, 4, v6")
    a("v_sub_u32 v17, v18, v17")
    a("s_mul_i32 s39, s32, %d" % UR_CH)
    a("s_add_u32 s39, s39, s52")
    a("s_add_u32 s39, s39, %d" % (UR + 480))
    a("v_add_u32 v17, s39, v17")
    a("s_waitcnt lgkmcnt(0)")
    a("s_lshl_b32 s52, s32, 4")
    a("s_lshr_b32 s53, s22, s52")
    a("s_and_b32 s53, s53, 0xffff")
    a("s_cmp_eq_u32 s33, 0")
    a("s_cselect_b32 s53, s53, 0")
    a("v_lshlrev_b32 v18, 3, v6")
    a("v_add_u32 v18, v18, v5")
    a("v_sub_u32 v18, 15, v18")
    a("v_and_b32 v19, 1, v18")
    a("v_lshlrev_b32 v19, 4, v19")
    a("v_mov_b32 v24, s53")
    a("v_lshlrev_b32 v19, v19, v24")
    a("v_ashrrev_i32 v18, 1, v18")
    for dw in range(4):
        a("v_cmp_eq_u32 vcc, %d, v18" % dw)
        a("v_cndmask_b32 v%d, 0, v19, vcc" % (20 + dw))
    ACC = 24
    for i in range(32): a("v_mov_b32 v%d, 0" % (ACC + i))
    AB = [56, 88]
    BB = [120, 152]
    a("s_waitcnt lgkmcnt(0)")
    a("s_barrier")
    def readA(st, rho, aa):
        r = AB[st] + 4 * aa
        off = 64 * rho + 512 * aa
        return ["ds_read_b64 v[%d:%d], v16 offset:%d" % (r, r + 1, off),
                "ds_read_b64 v[%d:%d], v16 offset:%d" % (r + 2, r + 3, off + 8)]
    def readB(st, rho, b):
        r = BB[st] + 4 * b
        return ["ds_read_b128 v[%d:%d], v17 offset:%d" % (r, r + 3, 64 * rho + 512 * (7 - b))]
    def mfma(t, areg, breg):
        return "v_mfma_f32_16x16x32_bf16 v[%d:%d], v[%d:%d], v[%d:%d], v[%d:%d]" % (ACC + 4 * t, ACC + 4 * t + 3, areg, areg + 3, breg, breg + 3, ACC + 4 * t, ACC + 4 * t + 3)
    for b in range(8):
        for l in readB(0, 0, b): a(l)
    for aa in range(8):
        for l in readA(0, 0, aa): a(l)
    for rho in range(4):
        st = rho & 1
        nxt = []
        if rho < 3:
            for b in range(8): nxt += readB(1 - st, rho + 1, b)
            for aa in range(8): nxt += readA(1 - st, rho + 1, aa)
        ms = []
        if rho == 0:
            for t in range(8): ms.append((mfma(t, 20, BB[st] + 4 * t), None))
        for aa in range(8):
            for t in range(aa, 8):
                ms.append((mfma(t, AB[st] + 4 * aa, BB[st] + 4 * (t - aa)), aa))
        if rho == 0:
            a("s_waitcnt lgkmcnt(15)")
        else:
            a("s_waitcnt lgkmcnt(0)")
        ni = 0
        waited = -1
        for i, (m, aa) in enumerate(ms):
            if rho == 0 and aa is not None and aa > waited and aa <= 1:
                a("s_waitcnt lgkmcnt(%d)" % (14 if aa == 0 else 0))
                waited = aa
            a(m)
            if (rho > 0 or waited == 1) and ni < len(nxt):
                a(nxt[ni]); ni += 1
        while ni < len(nxt):
            a(nxt[ni]); ni += 1
    a("v_lshl_add_u32 v18, v5, 2, v6")
    a("v_bfe_u32 v19, v5, 1, 2")
    a("v_xor_b32 v18, v18, v19")
    a("v_lshlrev_b32 v18, 4, v18")
    a("s_lshl_b32 s39, s18, 13")
    a("s_add_u32 s39, s39, %d" % PB)
    a("v_add_u32 v18, s39, v18")
    for t in range(8):
        a("ds_write_b128 v18, v[%d:%d] offset:%d" % (ACC + 4 * t, ACC + 4 * t + 3, 1024 * t))
    a("v_lshrrev_b32 v19, 2, v0")
    a("v_bfe_u32 v20, v0, 5, 2")
    a("v_xor_b32 v19, v19, v20")
    a("v_and_b32 v20, 3, v0")
    a("v_lshl_add_u32 v19, v19, 2, v20")
    a("v_lshlrev_b32 v19, 2, v19")
    a("v_add_u32 v19, %d, v19" % PB)
    a("v_lshrrev_b32 v20, 5, v0")
    a("v_mul_u32_u24 v20, 28672, v20")
    a("v_and_b32 v21, 31, v0")
    a("v_lshl_add_u32 v20, v21, 4, v20")
    a("s_lshr_b32 s52, s16, 3")
    a("s_lshl_b32 s52, s52, 10")
    a("s_bfe_u32 s53, s16, 0x10001")
    a("s_lshl_b32 s53, s53, 9")
    a("s_add_u32 s52, s52, s53")
    a("s_bfe_u32 s53, s16, 0x10002")
    a("s_lshl_b32 s53, s53, 3")
    a("s_add_u32 s52, s52, s53")
    a("s_and_b32 s53, s16, 1")
    a("s_lshl_b32 s53, s53, 2")
    a("s_add_u32 s52, s52, s53")
    a("s_waitcnt lgkmcnt(0)")
    a("s_barrier")
    Z = 56
    for j in range(8):
        a("ds_read_b32 v%d, v19 offset:%d" % (Z + 4 * j + 0, 0 * 16384 + 0 * 8192 + 1024 * j))
        a("ds_read_b32 v%d, v19 offset:%d" % (Z + 4 * j + 1, 1 * 16384 + 0 * 8192 + 1024 * j))
        a("ds_read_b32 v%d, v19 offset:%d" % (Z + 4 * j + 2, 0 * 16384 + 1 * 8192 + 1024 * j))
        a("ds_read_b32 v%d, v19 offset:%d" % (Z + 4 * j + 3, 1 * 16384 + 1 * 8192 + 1024 * j))
    a("s_waitcnt vmcnt(0)")
    for j in range(8):
        z = Z + 4 * j
        x = 120 + 4 * j
        a("v_lshlrev_b32 v%d, 16, v%d" % (x, XR + j))
        a("v_and_b32 v%d, 0xffff0000, v%d" % (x + 1, XR + j))
        st = SR_ + 2 * j
        a("v_pk_fma_f32 v[%d:%d], v[%d:%d], v[%d:%d], v[%d:%d] op_sel:[0,0,1] op_sel_hi:[1,0,1]" % (x + 2, x + 3, x, x + 1, st, st + 1, st, st + 1))
        a("s_waitcnt lgkmcnt(%d)" % min(15, 4 * (7 - j)))
        a("v_pk_add_f32 v[%d:%d], v[%d:%d], v[%d:%d]" % (z, z + 1, z, z + 1, z + 2, z + 3))
        a("v_pk_fma_f32 v[%d:%d], v[%d:%d], v[%d:%d], v[%d:%d]" % (z, z + 1, x + 2, x + 3, z, z + 1, x, x + 1))
        a("v_cvt_pk_bf16_f32 v%d, v%d, v%d" % (z + 2, z, z + 1))
        a("buffer_store_dword v%d, v20, s[48:51], s52 offen" % (z + 2))
        if j != 7: a("s_add_u32 s52, s52, %d" % (8 * 28672))
    a("K2_END:")
    a("s_endpgm")
    gen_wprep(a)
    return a.lines, dict(vgpr=224, sgpr=56, lds=LDS_K2, grid=256)
```

```python
from common import *

def gen_k3(name="k3_kernel"):
    a = Asm()
    for l in kernel_header(name): a(l)
    a("s_load_dwordx2 s[8:9], s[0:1], %d" % KA_WS)
    a("s_cmp_ge_u32 s2, 224")
    a("s_cbranch_scc1 K3_END")
    a("s_and_b32 s16, s2, 7")
    a("s_lshr_b32 s17, s2, 3")
    a("s_lshr_b32 s18, s16, 1")
    a("s_lshl_b32 s18, s18, 2")
    a("s_and_b32 s19, s17, 3")
    a("s_add_u32 s18, s18, s19")
    a("s_and_b32 s19, s16, 1")
    a("s_mul_i32 s19, s19, 7")
    a("s_lshr_b32 s20, s17, 2")
    a("s_add_u32 s19, s19, s20")
    a("v_lshrrev_b32 v1, 6, v0")
    a("v_and_b32 v2, 63, v0")
    a("v_readfirstlane_b32 s21, v1")
    a("v_lshlrev_b32 v3, 4, v2")
    a("s_lshl_b32 s22, s18, 2")
    a("s_add_u32 s22, s22, s21")
    a("s_mul_i32 s23, s22, %d" % (28 * 1024))
    a("s_lshl_b32 s24, s19, 2")
    a("s_add_u32 s24, s24, s21")
    a("s_mul_i32 s25, s24, %d" % (28 * 1024))
    a("s_lshl_b32 s26, s21, 10")
    a("s_waitcnt lgkmcnt(0)")
    srd(a, 28, 8, 9, NB_SD, WS_HF)
    srd(a, 32, 8, 9, 56 * 28 * 1024, WS_W1F)
    WR = 16
    for ks in range(28):
        a("s_add_u32 m0, s26, %d" % (ks * 4096))
        a("buffer_load_dwordx4 v3, s[28:31], s23 offen lds")
        a("buffer_load_dwordx4 v[%d:%d], v3, s[32:35], s25 offen" % (WR + 4 * ks, WR + 4 * ks + 3))
        if ks != 27:
            a("s_add_u32 s23, s23, 1024")
            a("s_add_u32 s25, s25, 1024")
    srd(a, 36, 8, 9, 64 * 112 * 1024, WS_H1F)
    srd(a, 40, 8, 9, S * 4, WS_ST2)
    ACC = 128
    for i in range(64): a("v_mov_b32 v%d, 0" % (ACC + i))
    HB = [192, 208]
    a("v_mov_b32 v224, 0")
    a("v_mov_b32 v225, 0")
    a("v_mov_b32 v226, 0x3f803f80")
    a("v_add_u32 v4, s26, v3")
    a("v_add_u32 v7, 0x10000, v3")
    a("v_add_u32 v8, 0x10000, v4")
    GRP = 4
    def reads(ks, st):
        out = []
        for i in range(4):
            r = HB[st] + 4 * i
            out.append("ds_read_b128 v[%d:%d], v%d offset:%d" % (r, r + 3, 3 if ks < 16 else 7, (ks & 15) * 4096 + i * 1024))
        out.append("ds_read_b128 v[%d:%d], v%d offset:%d" % (228 + 4 * st, 231 + 4 * st, 4 if ks < 16 else 8, (ks & 15) * 4096))
        return out
    for g in range(28 // GRP):
        a("s_waitcnt vmcnt(%d)" % (56 - 2 * GRP * (g + 1)))
        a("s_barrier")
        for kk in range(GRP):
            ks = g * GRP + kk
            st = ks & 1
            if kk == 0:
                for l in reads(ks, st): a(l)
            nxt = reads(ks + 1, 1 - st) if kk < GRP - 1 else []
            a("s_waitcnt lgkmcnt(0)")
            for i in range(4):
                a("v_mfma_f32_32x32x16_bf16 v[%d:%d], v[%d:%d], v[%d:%d], v[%d:%d]" % (ACC + 16 * i, ACC + 16 * i + 15, WR + 4 * ks, WR + 4 * ks + 3, HB[st] + 4 * i, HB[st] + 4 * i + 3, ACC + 16 * i, ACC + 16 * i + 15))
                if i < len(nxt): a(nxt[i])
                if i == 3 and len(nxt) > 4: a(nxt[4])
                o = 228 + 4 * st
                a("v_dot2_f32_bf16 v224, v%d, v226, v224" % (o + i))
                a("v_dot2_f32_bf16 v225, v%d, v%d, v225" % (o + i, o + i))
    a("s_lshl_b32 s22, s18, 2")
    a("s_mul_i32 s22, s22, %d" % (112 * 1024))
    a("s_lshl_b32 s23, s24, 11")
    a("s_add_u32 s22, s22, s23")
    for i in range(4):
        acc = ACC + 16 * i
        o = 16 + 8 * i
        for q in range(8):
            a("v_cvt_pk_bf16_f32 v%d, v%d, v%d" % (o + q, acc + 2 * q, acc + 2 * q + 1))
        for q in range(8):
            a("v_pk_max_i16 v%d, v%d, 0" % (o + q, o + q))
        a("buffer_store_dwordx4 v[%d:%d], v3, s[36:39], s22 offen" % (o, o + 3))
        a("buffer_store_dwordx4 v[%d:%d], v3, s[36:39], s22 offen offset:1024" % (o + 4, o + 7))
        if i != 3: a("s_add_u32 s22, s22, %d" % (112 * 1024))
    a("s_cmp_lg_u32 s19, 0")
    a("s_cbranch_scc1 K3_END")
    a("v_mov_b32 v5, v224")
    a("v_mov_b32 v6, v225")
    a("v_permlane32_swap_b32 v224, v5")
    a("v_permlane32_swap_b32 v225, v6")
    a("v_add_f32 v224, v224, v5")
    a("v_add_f32 v225, v225, v6")
    a("v_mul_f32 v224, 0x3b124925, v224")
    a("v_mul_f32 v225, 0x3b124925, v225")
    a("v_fma_f32 v225, -v224, v224, v225")
    a("v_max_f32 v225, 0, v225")
    a("v_add_f32 v225, 0x3727c5ac, v225")
    a("v_rsq_f32 v225, v225")
    a("s_lshl_b32 s22, s18, 2")
    a("s_add_u32 s22, s22, s21")
    a("s_lshl_b32 s22, s22, 7")
    a("v_and_b32 v5, 31, v2")
    a("v_lshlrev_b32 v5, 2, v5")
    a("v_cmp_gt_u32 vcc, 32, v2")
    a("s_and_saveexec_b64 s[44:45], vcc")
    a("buffer_store_dword v225, v5, s[40:43], s22 offen")
    a("K3_END:")
    a("s_endpgm")
    return a.lines, dict(vgpr=236, sgpr=48, lds=28 * 4096, grid=224)
```

```python
from common import *

def gen_k4(name="k4_kernel"):
    a = Asm()
    for l in kernel_header(name): a(l)
    a("s_load_dwordx2 s[8:9], s[0:1], %d" % KA_WS)
    a("s_load_dwordx2 s[10:11], s[0:1], %d" % KA_OUT)
    a("s_cmp_ge_u32 s2, 224")
    a("s_cbranch_scc1 K4_END")
    a("s_and_b32 s16, s2, 7")
    a("s_lshr_b32 s17, s2, 3")
    a("s_lshl_b32 s18, s16, 2")
    a("s_and_b32 s19, s17, 3")
    a("s_add_u32 s18, s18, s19")
    a("s_lshr_b32 s19, s17, 2")
    a("v_lshrrev_b32 v1, 6, v0")
    a("v_and_b32 v2, 63, v0")
    a("v_readfirstlane_b32 s21, v1")
    a("v_lshlrev_b32 v3, 4, v2")
    a("s_mul_i32 s22, s19, %d" % (2 * 112 * 1024))
    a("s_mul_i32 s23, s21, %d" % (28 * 1024))
    a("s_add_u32 s22, s22, s23")
    a("s_add_u32 s24, s22, %d" % (112 * 1024))
    a("s_mul_i32 s25, s18, %d" % (2 * 112 * 1024))
    a("s_add_u32 s25, s25, s23")
    a("s_add_u32 s26, s25, %d" % (112 * 1024))
    a("s_waitcnt lgkmcnt(0)")
    srd(a, 28, 8, 9, 14 * 112 * 1024, WS_W2F)
    srd(a, 32, 8, 9, 64 * 112 * 1024, WS_H1F)
    RING = 14
    RB = 16
    def loads(ks):
        r = RB + (ks % RING) * 16
        off = (ks % 4) * 1024
        out = []
        for i, (srdn, so) in enumerate([(28, 22), (28, 24), (32, 25), (32, 26)]):
            out.append("buffer_load_dwordx4 v[%d:%d], v3, s[%d:%d], s%d offen offset:%d" % (r + 4 * i, r + 4 * i + 3, srdn, srdn + 3, so, off))
        if ks % 4 == 3:
            for so in (22, 24, 25, 26): out.append("s_add_u32 s%d, s%d, 4096" % (so, so))
        return out
    for ks in range(RING):
        for l in loads(ks): a(l)
    srd(a, 36, 8, 9, NB_SD, WS_HF)
    srd(a, 40, 8, 9, S * 4, WS_ST2)
    srd(a, 44, 10, 11, NB_SD)
    a("s_lshr_b32 s48, s21, 1")
    a("s_and_b32 s49, s21, 1")
    a("s_lshl_b32 s50, s18, 1")
    a("s_add_u32 s50, s50, s49")
    a("s_lshl_b32 s51, s19, 1")
    a("s_add_u32 s51, s51, s48")
    for i in range(64): a("v_accvgpr_write_b32 a%d, 0" % i)
    for ks in range(28):
        later = min(ks + RING, 28) - (ks + 1)
        extra = 0
        a("s_waitcnt vmcnt(%d)" % min(63, later * 4 + (3 if False else 0)))
        r = RB + (ks % RING) * 16
        for dt in range(2):
            for st in range(2):
                t = dt * 2 + st
                a("v_mfma_f32_32x32x16_bf16 a[%d:%d], v[%d:%d], v[%d:%d], a[%d:%d]" % (16 * t, 16 * t + 15, r + 4 * dt, r + 4 * dt + 3, r + 8 + 4 * st, r + 8 + 4 * st + 3, 16 * t, 16 * t + 15))
        if ks + RING < 28:
            for l in loads(ks + RING): a(l)
    a("s_mul_i32 s52, s50, %d" % (28 * 1024))
    a("s_lshl_b32 s53, s51, 11")
    a("s_add_u32 s52, s52, s53")
    a("buffer_load_dwordx4 v[240:243], v3, s[36:39], s52 offen")
    a("buffer_load_dwordx4 v[244:247], v3, s[36:39], s52 offen offset:1024")
    a("v_and_b32 v4, 31, v2")
    a("v_lshlrev_b32 v5, 2, v4")
    a("s_lshl_b32 s53, s50, 7")
    a("buffer_load_dword v248, v5, s[40:43], s53 offen")
    a("s_lshl_b32 s54, s21, 14")
    a("v_add_u32 v6, s54, v3")
    T = 16
    for t in range(4):
        for i in range(16):
            a("v_accvgpr_read_b32 v%d, a%d" % (T + 16 * t + i, 16 * t + i))
    for t in range(4):
        for q in range(4):
            a("ds_write_b128 v6, v[%d:%d] offset:%d" % (T + 16 * t + 4 * q, T + 16 * t + 4 * q + 3, t * 4096 + q * 1024))
    a("s_waitcnt lgkmcnt(0)")
    a("s_barrier")
    a("s_lshl_b32 s54, s21, 12")
    a("v_add_u32 v6, s54, v3")
    for sw in range(4):
        for q in range(4):
            a("ds_read_b128 v[%d:%d], v6 offset:%d" % (T + 16 * sw + 4 * q, T + 16 * sw + 4 * q + 3, sw * 16384 + q * 1024))
    a("s_waitcnt lgkmcnt(8)")
    for i in range(0, 16, 2):
        a("v_pk_add_f32 v[%d:%d], v[%d:%d], v[%d:%d]" % (T + i, T + i + 1, T + i, T + i + 1, T + 16 + i, T + 17 + i))
    a("s_waitcnt lgkmcnt(0)")
    for i in range(0, 16, 2):
        a("v_pk_add_f32 v[%d:%d], v[%d:%d], v[%d:%d]" % (T + 32 + i, T + 33 + i, T + 32 + i, T + 33 + i, T + 48 + i, T + 49 + i))
    for i in range(0, 16, 2):
        a("v_pk_add_f32 v[%d:%d], v[%d:%d], v[%d:%d]" % (T + i, T + i + 1, T + i, T + i + 1, T + 32 + i, T + 33 + i))
    a("s_waitcnt vmcnt(0)")
    for dw in range(8):
        hx = 100 + 2 * dw
        a("v_lshlrev_b32 v%d, 16, v%d" % (hx, 240 + dw))
        a("v_and_b32 v%d, 0xffff0000, v%d" % (hx + 1, 240 + dw))
        a("v_pk_fma_f32 v[%d:%d], v[%d:%d], v[248:249], v[%d:%d] op_sel_hi:[1,0,1]" % (hx, hx + 1, T + 2 * dw, T + 2 * dw + 1, hx, hx + 1))
        a("v_cvt_pk_bf16_f32 v%d, v%d, v%d" % (120 + dw, hx, hx + 1))
    for jp in range(2):
        A0 = 120 + 4 * jp
        a("v_permlane32_swap_b32 v%d, v%d" % (A0, A0 + 2))
        a("v_permlane32_swap_b32 v%d, v%d" % (A0 + 1, A0 + 3))
    a("v_mul_u32_u24 v7, 896, v4")
    a("v_lshrrev_b32 v8, 5, v2")
    a("v_lshl_add_u32 v7, v8, 4, v7")
    a("s_mul_i32 s52, s50, %d" % (32 * 896))
    a("s_lshl_b32 s53, s51, 6")
    a("s_add_u32 s52, s52, s53")
    a("buffer_store_dwordx4 v[120:123], v7, s[44:47], s52 offen")
    a("buffer_store_dwordx4 v[124:127], v7, s[44:47], s52 offen offset:32")
    a("K4_END:")
    a("s_endpgm")
    return a.lines, dict(vgpr=252, sgpr=56, lds=65536, grid=224, agpr=64)
```

```python
import sys
from common import *
from k1 import gen_k1
from k2 import gen_k2
from k3 import gen_k3
from k4 import gen_k4

def build(out, which=("k1", "k2", "k3", "k4"), extra_empty=0):
    gens = dict(k1=gen_k1, k2=gen_k2, k3=gen_k3, k4=gen_k4)
    parts = []
    for k in which:
        lines, info = gens[k](k + "_kernel")
        lines = fix_hazards(lines, verbose=True)
        parts.append((k + "_kernel", lines, info))
    txt = []
    for n, l, info in parts:
        txt.append("; @launch kernel=%s grid=(%d,1,1) block=(256,1,1) lds=%d" % (n, info["grid"], info["lds"]))
    for i in range(extra_empty):
        txt.append("; @launch kernel=nop_kernel grid=(256,1,1) block=(256,1,1) lds=0")
    txt.append('.amdgcn_target "amdgcn-amd-amdhsa--gfx950"')
    txt.append(".text")
    for n, l, info in parts:
        txt += l
    if extra_empty:
        txt += kernel_header("nop_kernel") + ["    s_endpgm"]
    txt.append('.section .rodata,"a"')
    for n, l, info in parts:
        v = info["vgpr"]
        txt += kernel_desc(n, v, info["sgpr"], accum=(v + 3) // 4 * 4, agpr=info.get("agpr", 0))
    if extra_empty:
        txt += kernel_desc("nop_kernel", 8, 16)
    open(out, "w").write("\n".join(txt) + "\n")

if __name__ == "__main__":
    out = sys.argv[1] if len(sys.argv) > 1 else "sequential_preLN__ssm_conv_h3__dense_activation_relu__prompt.s"
    which = sys.argv[2].split(",") if len(sys.argv) > 2 else ("k1", "k2", "k3", "k4")
    extra = int(sys.argv[3]) if len(sys.argv) > 3 else 0
    build(out, which, extra)
```

```python
import re

TRANS = ("v_exp_", "v_log_", "v_rcp_", "v_rsq_", "v_sqrt_", "v_sin_", "v_cos_")

def parse_regs(tok):
    tok = tok.strip()
    if tok.startswith("-"): tok = tok[1:]
    if tok.startswith("abs(") and tok.endswith(")"): tok = tok[4:-1]
    if tok.startswith("|") and tok.endswith("|"): tok = tok[1:-1]
    m = re.fullmatch(r"([vas])(\d+)", tok)
    if m: return [(m.group(1), int(m.group(2)))]
    m = re.fullmatch(r"([vas])\[(\d+):(\d+)\]", tok)
    if m: return [(m.group(1), i) for i in range(int(m.group(2)), int(m.group(3)) + 1)]
    if tok == "vcc": return [("s", "vcc")]
    if tok in ("vcc_lo", "vcc_hi"): return [("s", "vcc")]
    if tok == "exec": return [("s", "exec")]
    if tok == "m0": return [("s", "m0")]
    return []

class Ins:
    __slots__ = ("text", "op", "ops", "mods", "kind", "wr", "rd", "passes", "srcc", "srcab", "is_label", "note")
    def __init__(self, text):
        self.text = text
        t = text.split(";")[0].strip()
        self.is_label = t.endswith(":")
        self.kind = None; self.wr = set(); self.rd = set(); self.passes = 0; self.srcc = set(); self.srcab = set()
        self.op = ""; self.ops = []; self.mods = ""
        if not t or self.is_label or t.startswith("."):
            return
        parts = t.split(None, 1)
        self.op = parts[0]
        rest = parts[1] if len(parts) > 1 else ""
        ops = []; cur = ""; depth = 0
        for ch in rest:
            if ch in "[(": depth += 1
            if ch in "])": depth -= 1
            if ch == "," and depth == 0:
                ops.append(cur.strip()); cur = ""
            else: cur += ch
        if cur.strip(): ops.append(cur.strip())
        if ops:
            last = ops[-1].split(None, 1)
            ops[-1] = last[0]
            self.mods = last[1] if len(last) > 1 else ""
        self.ops = ops
        self.classify()
    def R(self, i):
        return set(parse_regs(self.ops[i])) if i < len(self.ops) else set()
    def allR(self, start):
        s = set()
        for i in range(start, len(self.ops)): s |= self.R(i)
        return s
    def classify(self):
        op = self.op
        if op.startswith("v_mfma"):
            self.kind = "mfma"
            self.passes = 8 if "32x32x16" in op or "32x32x8" in op else 4
            if "32x32x2_f32" in op: self.passes = 16
            if "16x16x4_f32" in op: self.passes = 8
            self.wr = self.R(0); self.srcab = self.R(1) | self.R(2); self.srcc = self.R(3)
            self.rd = self.srcab | self.srcc
        elif op.startswith("v_"):
            self.kind = "valu"
            if op.startswith("v_cmp"):
                self.wr = self.R(0); self.rd = self.allR(1)
                if op.startswith("v_cmpx"): self.wr |= {("s", "exec")}
            elif op.startswith("v_readfirstlane") or op.startswith("v_readlane"):
                self.wr = self.R(0); self.rd = self.allR(1)
            elif op.startswith("v_permlane") and "swap" in op:
                self.wr = self.R(0) | self.R(1); self.rd = self.R(0) | self.R(1)
            elif op.startswith(("v_add_co", "v_sub_co", "v_subrev_co", "v_addc_co", "v_subb_co", "v_mad_u64", "v_div_scale")):
                self.wr = self.R(0) | self.R(1); self.rd = self.allR(2)
            else:
                self.wr = self.R(0); self.rd = self.allR(1)
                if op.startswith(("v_fmac", "v_mac", "v_dot2c", "v_pk_fmac", "v_writelane")) : self.rd |= self.R(0)
                if op.startswith("v_cndmask") and len(self.ops) == 3: self.rd |= {("s", "vcc")}
                if "_dpp" in op or "_sdwa" in op or "row_" in self.mods or "quad_perm" in self.mods or "wave_" in self.mods:
                    self.rd |= self.R(0)
        elif op.startswith(("buffer_load", "global_load", "flat_load", "scratch_load")):
            self.kind = "vmem"
            if "lds" in self.mods.split() or "_lds_" in op:
                self.rd = self.allR(0) | {("s", "m0")}
                self.kind = "vmem_lds"
            else:
                self.wr = self.R(0); self.rd = self.allR(1)
        elif op.startswith(("buffer_store", "global_store", "flat_store", "buffer_atomic", "global_atomic")):
            self.kind = "vmem_st"
            self.rd = self.allR(0)
            if "atomic" in op and "sc0" in self.mods.split():
                self.wr = self.R(0)
        elif op.startswith("ds_"):
            self.kind = "ds"
            if op.startswith(("ds_read", "ds_bpermute", "ds_permute", "ds_swizzle")):
                self.wr = self.R(0); self.rd = self.allR(1)
            else:
                self.rd = self.allR(0)
        elif op.startswith("s_"):
            self.kind = "salu"
            if op in ("s_waitcnt", "s_barrier", "s_nop", "s_endpgm", "s_sleep", "s_setprio", "s_branch") or op.startswith("s_cbranch"):
                pass
            elif op.startswith("s_cmp") or op.startswith("s_bitcmp"):
                self.rd = self.allR(0)
            elif op.startswith(("s_load", "s_buffer_load", "s_memtime", "s_memrealtime", "s_getreg")):
                self.wr = self.R(0); self.rd = self.allR(1)
            else:
                self.wr = self.R(0); self.rd = self.allR(1)
                if "saveexec" in op: self.wr |= {("s", "exec")}; self.rd |= {("s", "exec")}
        else:
            self.kind = "other"
    def nstates(self):
        if self.op == "s_nop":
            return int(self.ops[0], 0) + 1
        if self.kind is None: return 0
        return 1
    def is_wide_store(self):
        return self.kind == "vmem_st" and ("x3" in self.op or "x4" in self.op)
    def store_data(self):
        if self.op.startswith("buffer_store"): return self.R(0)
        if self.op.startswith("global_store"): return self.R(1)
        return set()

def need(prod, cons):
    n = 0
    pv = {r for r in prod.wr if r[0] in "va"}
    ps = {r for r in prod.wr if r[0] == "s"}
    if prod.kind == "valu":
        if cons.kind == "mfma" and pv & cons.rd: n = max(n, 2)
        if cons.kind == "valu":
            if ps & cons.rd:
                n = max(n, 2)
                if cons.op.startswith(("v_readlane", "v_writelane")) : n = max(n, 4)
            if pv & cons.rd:
                if cons.op.startswith(("v_readfirstlane", "v_readlane")): n = max(n, 1)
                if "_dpp" in cons.op or "row_" in cons.mods or "quad_perm" in cons.mods or "wave_" in cons.mods: n = max(n, 2)
                if cons.op.startswith("v_permlane"): n = max(n, 2)
                if prod.op.startswith(TRANS) and not cons.op.startswith(TRANS): n = max(n, 1)
                if prod.op.startswith(TRANS): n = max(n, 1)
                if ("sdwa" in prod.op and "dst_sel:DWORD" not in prod.mods) or ("op_sel:" in prod.mods and not prod.op.startswith("v_pk")): n = max(n, 1)
            if prod.op.startswith("v_dot"):
                if pv & (cons.rd | cons.wr):
                    if cons.op == prod.op:
                        ab = cons.R(1) | cons.R(2)
                        if pv & ab: n = max(n, 3)
                    else: n = max(n, 3)
            if ("s", "exec") in ps and cons.op.startswith("v_permlane"): n = max(n, 4)
        if cons.kind in ("vmem", "vmem_st", "vmem_lds") and ps & cons.rd: n = max(n, 5)
        if prod.op.startswith("v_dot") and cons.kind != "valu" and pv & (cons.rd | cons.wr): n = max(n, 3)
        if cons.kind == "mfma" and ("s", "exec") in ps: n = max(n, 4)
    if prod.kind == "mfma":
        P = prod.passes
        tab_c = {2: 4, 4: 6, 8: 10, 16: 18}[P]
        tab_ab = {2: 5, 4: 8, 8: 12, 16: 20}[P]
        if cons.kind == "mfma":
            if pv & cons.srcab: n = max(n, tab_ab)
            if pv & cons.srcc:
                if cons.srcc == prod.wr and cons.passes == prod.passes: pass
                else: n = max(n, tab_c)
            if (pv & cons.wr) and not (pv & cons.srcc): n = max(n, tab_c)
        elif cons.kind in ("valu", "vmem", "vmem_st", "vmem_lds", "ds"):
            if pv & (cons.rd | cons.wr): n = max(n, tab_ab)
        if cons.kind == "valu" and prod.srcc & cons.wr:
            n = max(n, {2: 1, 4: 3, 8: 7, 16: 15}[P])
    if prod.is_wide_store():
        d = prod.store_data()
        if d & cons.wr:
            n = max(n, 2 if cons.kind == "valu" else 1)
    if prod.kind == "salu" and ("s", "m0") in ps and cons.kind == "vmem_lds": n = max(n, 1)
    return n

WINDOW = 24
def fix_hazards(lines, verbose=False):
    ins = []
    for l in lines:
        for sub in l.split("\n"):
            ins.append(Ins(sub))
    out = []
    added = 0
    for cur in ins:
        if cur.kind is not None and cur.op != "s_nop":
            dist = 0; req = 0
            for prev in reversed(out):
                if prev.kind is None: continue
                k = need(prev, cur)
                if k - dist > req: req = k - dist
                dist += prev.nstates()
                if dist >= WINDOW: break
            if req > 0:
                added += req
                while req > 0:
                    k = min(req, 16)
                    out.append(Ins("    s_nop %d" % (k - 1)))
                    req -= k
        out.append(cur)
    labels = {}
    for i, x in enumerate(out):
        if x.is_label: labels[x.text.split(";")[0].strip()[:-1]] = i
    problems = []
    for i, x in enumerate(out):
        if x.kind == "salu" and (x.op == "s_branch" or x.op.startswith("s_cbranch")):
            tgt = x.ops[0]
            if tgt not in labels: continue
            j = labels[tgt]
            tail = [p for p in out[max(0, i - 60):i + 1] if p.kind is not None]
            head = [p for p in out[j:j + 60] if p.kind is not None]
            d0 = 0
            for hi, c in enumerate(head):
                dist = d0
                for p in reversed(tail):
                    k = need(p, c)
                    if k > dist:
                        problems.append("branch %s -> %s: '%s' needs %d states before '%s' (has %d)" % (x.text.strip(), tgt, p.text.strip(), k, c.text.strip(), dist))
                    dist += p.nstates()
                    if dist >= WINDOW: break
                d0 += c.nstates()
                if d0 >= WINDOW: break
                if c.op == "s_branch" or c.op == "s_endpgm": break
    if problems:
        raise RuntimeError("hazards across branches:\n" + "\n".join(problems))
    if verbose: print("hazard pass: added %d wait states" % added)
    return [x.text for x in out]

class Asm:
    def __init__(self):
        self.lines = []
        self.uid = 0
    def __call__(self, s, *a):
        if a: s = s % a
        for l in s.split("\n"):
            l = l.rstrip()
            if not l.strip(): continue
            st = l.strip()
            if st.endswith(":") or st.startswith(".") or st.startswith(";"):
                self.lines.append(st)
            else:
                self.lines.append("    " + st)
    GUID = [0]
    def label(self, base="L"):
        Asm.GUID[0] += 1
        return "%s_%d" % (base, Asm.GUID[0])
    def vm(self, line, tag=None):
        self(line)
        if not hasattr(self, "vmlist"): self.vmlist = []
        self.vmlist.append(tag)
    def vmwait(self, tag):
        idx = max(i for i, t in enumerate(self.vmlist) if t == tag)
        n = len(self.vmlist) - 1 - idx
        self("s_waitcnt vmcnt(%d)" % min(n, 63))
        assert n <= 63, "vmcnt overflow %d" % n
    def vmdrain(self):
        self("s_waitcnt vmcnt(0)")
    def vmcount(self):
        return len(getattr(self, "vmlist", []))
    def comment(self, s):
        self.lines.append("    ; " + s)

def vr(b, n=1):
    return "v%d" % b if n == 1 else "v[%d:%d]" % (b, b + n - 1)
def ar(b, n=1):
    return "a%d" % b if n == 1 else "a[%d:%d]" % (b, b + n - 1)
def sr(b, n=1):
    return "s%d" % b if n == 1 else "s[%d:%d]" % (b, b + n - 1)

def kernel_header(name):
    return [".globl %s" % name, ".p2align 8", ".type %s,@function" % name, "%s:" % name]

def kernel_desc(name, vgpr, sgpr, accum=None, agpr=0):
    if accum is None: accum = (vgpr + 3) // 4 * 4
    nfv = accum + agpr if agpr else vgpr
    return [".p2align 6", ".amdhsa_kernel %s" % name,
            "  .amdhsa_next_free_vgpr %d" % nfv,
            "  .amdhsa_next_free_sgpr %d" % sgpr,
            "  .amdhsa_accum_offset %d" % accum,
            "  .amdhsa_group_segment_fixed_size 0",
            "  .amdhsa_kernarg_size 96",
            "  .amdhsa_user_sgpr_count 2",
            "  .amdhsa_user_sgpr_kernarg_segment_ptr 1",
            "  .amdhsa_system_sgpr_workgroup_id_x 1",
            ".end_amdhsa_kernel"]
```

```python
from asmlib import *
S, D, F = 2048, 448, 1792
KA_Q, KA_K, KA_V, KA_SK, KA_SSMK, KA_SSMD, KA_BX, KA_W1, KA_W2, KA_OUT, KA_DBG, KA_WS = [8 * i for i in range(12)]
WS_UREV = 0x000000
WS_X2   = 0x200000
WS_ST1  = 0x400000
WS_HF   = 0x500000
WS_W1F  = 0x700000
WS_W2F  = 0x900000
WS_H1F  = 0xB00000
WS_ST2  = 0x1300000
WS_END  = 0x1400000
WS_XT   = WS_X2
WS_STA  = WS_ST1
WS_STB  = WS_ST1 + 8192
WS_HT   = WS_HF
WS_FLAG = 0x1310000
F1_IDX, FS_IDX, F2_IDX, F3_IDX, E_IDX, F3B_IDX = 0, 256, 320, 576, 896, 1024
NB_SD = S * D * 2

def srd(a, s, base_lo, base_hi, nbytes, off=0):
    if off:
        a("s_add_u32 s%d, s%d, 0x%x" % (s, base_lo, off))
        a("s_addc_u32 s%d, s%d, 0" % (s + 1, base_hi))
        a("s_and_b32 s%d, s%d, 0xffff" % (s + 1, s + 1))
    else:
        a("s_mov_b32 s%d, s%d" % (s, base_lo))
        a("s_and_b32 s%d, s%d, 0xffff" % (s + 1, base_hi))
    a("s_mov_b32 s%d, 0x%x" % (s + 2, nbytes))
    a("s_mov_b32 s%d, 0x20000" % (s + 3))

STAMPS = False
WS_STAMP = 0x1400000
def stamp(a, i):
    if globals()["STAMPS"]:
        a("s_memrealtime s[%d:%d]" % (64 + 2 * i, 65 + 2 * i))
NSTAMP = 16
def stamp_flush(a, kidx, n, wsreg):
    if not globals()["STAMPS"]: return
    lab = a.label("STMP")
    a("s_waitcnt lgkmcnt(0)")
    a("v_readfirstlane_b32 s90, v0")
    a("s_cmp_ge_u32 s90, 64")
    a("s_cbranch_scc1 %s" % lab)
    a("s_lshl_b32 s90, s2, 6")
    a("s_add_u32 s90, s90, 0x%x" % (WS_STAMP + kidx * 256 * 64))
    a("s_add_u32 s92, s%d, s90" % wsreg)
    a("s_addc_u32 s93, s%d, 0" % (wsreg + 1))
    a("s_mov_b64 s[94:95], exec")
    a("s_mov_b64 exec, 1")
    a("v_mov_b32 v250, 0")
    for i in range(n):
        a("v_mov_b32 v251, s%d" % (64 + 2 * i))
        a("global_store_dword v250, v251, s[92:93] offset:%d" % (4 * i))
    a("s_mov_b64 exec, s[94:95]")
    a(lab + ":")
```

```python
from common import *
import common

KN = "sequential_preLN__ssm_conv_h3__dense_activation_relu__prompt_kernel"
R1 = 114688
LDS_TOTAL = R1 + 16384
HC = 0; HC_CH = 4 * 4160; UR = 2 * HC_CH; UR_CH = 4608; PB = UR + 2 * UR_CH
SC = "sc1"
SL = ""
S_T, S_WAVE = 48, 49
WS = "s[32:35]"

class Cfg:
    ldsc = 0
    npre = 10
    upto = 4

def fstamp_flush(a):
    if not common.STAMPS: return
    lab = a.label("STMP")
    a("s_waitcnt vmcnt(0)")
    a("s_memrealtime s[100:101]")
    a("s_waitcnt lgkmcnt(0)")
    a("s_cmp_lg_u32 s49, 0")
    a("s_cbranch_scc1 %s" % lab)
    a("s_lshl_b32 s96, s2, 7")
    a("s_add_u32 s96, s96, 0x%x" % WS_STAMP)
    a("s_add_u32 s98, s30, s96")
    a("s_addc_u32 s99, s31, 0")
    a("s_mov_b64 exec, 1")
    a("v_mov_b32 v250, 0")
    for i in range(16):
        a("v_mov_b32 v251, s%d" % (64 + 2 * i))
        a("global_store_dword v250, v251, s[98:99] offset:%d" % (4 * i))
    a("v_mov_b32 v251, s100")
    a("global_store_dword v250, v251, s[98:99] offset:64")
    a(lab + ":")

def publish(a, idx_sgpr):
    lab = a.label("PUB")
    a("s_cmp_lg_u32 s%d, 0" % S_WAVE)
    a("s_cbranch_scc1 %s" % lab)
    a("s_lshl_b32 s50, s%d, 6" % idx_sgpr)
    a("s_add_u32 s50, s50, 0x%x" % WS_FLAG)
    a("v_mov_b32 v250, s%d" % S_T)
    a("v_mov_b32 v251, 0")
    a("s_mov_b64 exec, 1")
    a("buffer_store_dword v250, v251, %s, s50 offen sc0 sc1" % WS)
    a("s_mov_b64 exec, -1")
    a(lab + ":")

def poll(a, vaddrs, soff_sgpr):
    lp = a.label("POLL"); done = a.label("PDONE")
    a("s_cmp_lg_u32 s%d, 0" % S_WAVE)
    a("s_cbranch_scc1 %s" % done)
    a("s_mov_b32 s51, 0")
    a(lp + ":")
    for i, v in enumerate(vaddrs):
        a("buffer_load_dword v%d, v%d, %s, s%d offen sc0 sc1" % (246 + i, v, WS, soff_sgpr))
    a("s_waitcnt vmcnt(0)")
    for i in range(len(vaddrs)):
        a("v_xor_b32 v%d, s%d, v%d" % (246 + i, S_T, 246 + i))
    for i in range(1, len(vaddrs)):
        a("v_or_b32 v246, v246, v%d" % (246 + i))
    a("v_cmp_ne_u32 vcc, 0, v246")
    a("s_nop 4")
    a("s_cmp_eq_u64 vcc, 0")
    a("s_cbranch_scc1 %s" % done)
    a("s_add_u32 s51, s51, 1")
    a("s_cmp_lt_u32 s51, 0x40000")
    a("s_cbranch_scc1 %s" % lp)
    a(done + ":")
    a("s_barrier")

def gen_stats(a):
    a("L_STATS:")
    a("v_and_b32 v1, 7, v0")
    a("v_lshrrev_b32 v2, 3, v0")
    a("s_mul_i32 s52, s2, %d" % (64 * 896))
    a("v_lshrrev_b32 v3, 3, v2")
    a("v_and_b32 v4, 7, v2")
    a("v_lshl_add_u32 v5, v3, 4, v4")
    a("v_mul_u32_u24 v6, 896, v5")
    a("v_lshl_add_u32 v6, v1, 4, v6")
    a("v_add_u32 v6, s52, v6")
    a("v_add_u32 v7, %d, v6" % (8 * 896))
    srd(a, 36, 8, 9, NB_SD)
    for p in range(2):
        for i in range(7):
            r = 16 + (p * 7 + i) * 4
            a("buffer_load_dwordx4 v[%d:%d], v%d, s[36:39], 0 offen offset:%d" % (r, r + 3, 6 + p, i * 128))
    a("v_mov_b32 v8, 0x3f803f80")
    for r in range(80, 88): a("v_mov_b32 v%d, 0" % r)
    for p in range(2):
        for i in range(7):
            a("s_waitcnt vmcnt(%d)" % (13 - (p * 7 + i)))
            for c in range(4):
                r = 16 + (p * 7 + i) * 4 + c
                o = 80 + 4 * p + 2 * (c & 1)
                a("v_dot2_f32_bf16 v%d, v%d, v8, v%d" % (o, r, o))
                a("v_dot2_f32_bf16 v%d, v%d, v%d, v%d" % (o + 1, r, r, o + 1))
    for p in range(2):
        a("v_add_f32 v%d, v%d, v%d" % (80 + 4 * p, 80 + 4 * p, 82 + 4 * p))
        a("v_add_f32 v%d, v%d, v%d" % (81 + 4 * p, 81 + 4 * p, 83 + 4 * p))
    for mod in ("quad_perm:[1,0,3,2]", "quad_perm:[2,3,0,1]", "row_half_mirror"):
        for r in (80, 81, 84, 85):
            a("v_add_f32_dpp v%d, v%d, v%d %s row_mask:0xf bank_mask:0xf" % (r, r, r, mod))
    for p in range(2):
        s_, q_ = 80 + 4 * p, 81 + 4 * p
        a("v_mul_f32 v%d, 0x3b124925, v%d" % (s_, s_))
        a("v_mul_f32 v%d, 0x3b124925, v%d" % (q_, q_))
        a("v_fma_f32 v%d, -v%d, v%d, v%d" % (q_, s_, s_, q_))
        a("v_max_f32 v%d, 0, v%d" % (q_, q_))
        a("v_add_f32 v%d, 0x3727c5ac, v%d" % (q_, q_))
        a("v_rsq_f32 v%d, v%d" % (88 + 2 * p, q_))
        a("v_mul_f32 v%d, v%d, v%d" % (89 + 2 * p, s_, 88 + 2 * p))
        a("v_sub_f32 v%d, 0, v%d" % (89 + 2 * p, 89 + 2 * p))
    a("s_lshl_b32 s52, s2, 8")
    a("s_add_u32 s52, s52, 0x%x" % WS_STA)
    a("s_add_u32 s53, s52, 8192")
    a("v_lshlrev_b32 v9, 2, v5")
    a("v_cmp_eq_u32 vcc, 0, v1")
    a("s_and_saveexec_b64 s[54:55], vcc")
    a("buffer_store_dword v88, v9, %s, s52 offen %s" % (WS, SC))
    a("buffer_store_dword v89, v9, %s, s53 offen %s" % (WS, SC))
    a("buffer_store_dword v90, v9, %s, s52 offen offset:32 %s" % (WS, SC))
    a("buffer_store_dword v91, v9, %s, s53 offen offset:32 %s" % (WS, SC))
    a("s_mov_b64 exec, s[54:55]")
    a("s_waitcnt vmcnt(0) lgkmcnt(0)")
    token(a)
    a("s_barrier")
    a("s_add_u32 s52, s2, %d" % FS_IDX)
    publish(a, 52)
    stamp(a, 15)
    fstamp_flush(a)
    a("s_endpgm")

def token(a):
    a("s_mul_i32 s%d, s%d, 1664525" % (S_T, S_T))
    a("s_add_u32 s%d, s%d, 1013904223" % (S_T, S_T))

def gen_fused(cfg=Cfg):
    global SL
    SL = "sc1" if cfg.ldsc else ""
    a = Asm()
    for l in kernel_header(KN): a(l)
    a("s_load_dwordx16 s[8:23], s[0:1], 0")
    a("s_load_dwordx8 s[24:31], s[0:1], 64")
    stamp(a, 0)
    a("s_cmp_ge_u32 s2, 256")
    a("s_cbranch_scc1 L_END")
    a("v_lshrrev_b32 v1, 6, v0")
    a("v_and_b32 v2, 63, v0")
    a("v_readfirstlane_b32 s49, v1")
    a("s_mov_b32 s50, 0x%x" % (WS_FLAG + E_IDX * 64))
    a("s_waitcnt lgkmcnt(0)")
    a("s_load_dword s48, s[30:31], s50")
    srd(a, 32, 30, 31, WS_STAMP)
    a("s_cmp_lt_u32 s2, 32")
    a("s_cbranch_scc1 L_STATS")
    a("s_sub_u32 s3, s2, 32")
    a("s_mul_i32 s56, s3, 9363")
    a("s_lshr_b32 s56, s56, 16")
    a("s_mul_i32 s57, s56, 7")
    a("s_sub_u32 s57, s3, s57")
    a("s_and_b32 s52, s3, 7")
    a("s_lshr_b32 s53, s3, 3")
    a("s_mul_i32 s58, s52, 28")
    a("s_add_u32 s58, s58, s53")
    a("s_lshr_b32 s59, s52, 1")
    a("s_lshl_b32 s59, s59, 2")
    a("s_and_b32 s54, s53, 3")
    a("s_add_u32 s59, s59, s54")
    a("s_and_b32 s60, s52, 1")
    a("s_mul_i32 s60, s60, 7")
    a("s_lshr_b32 s55, s53, 2")
    a("s_add_u32 s60, s60, s55")
    a("s_lshl_b32 s61, s52, 2")
    a("s_add_u32 s61, s61, s54")
    a("s_mov_b32 s62, s55")
    a("v_and_b32 v1, 7, v0")
    a("v_lshrrev_b32 v14, 3, v0")
    a("s_mul_i32 s52, s56, %d" % (64 * 896))
    a("s_lshl_b32 s53, s57, 7")
    a("s_add_u32 s52, s52, s53")
    a("v_mul_u32_u24 v8, %d, v14" % (2 * 896))
    a("v_lshl_add_u32 v8, v1, 4, v8")
    a("v_add_u32 v8, s52, v8")
    for j in range(5):
        d = (j - 3) * 896
        if d < 0: a("v_subrev_u32 v%d, %d, v8" % (3 + j, -d))
        else: a("v_add_u32 v%d, %d, v8" % (3 + j, d))
    a("s_lshl_b32 s53, s57, 9")
    a("v_lshl_add_u32 v9, v1, 6, s53")
    srd(a, 36, 10, 11, NB_SD)
    srd(a, 40, 14, 15, 448 * 4 * 2)
    srd(a, 44, 12, 13, NB_SD)
    srd(a, 4, 8, 9, NB_SD)
    for j in range(5):
        a.vm("buffer_load_dwordx4 v[%d:%d], v%d, s[36:39], 0 offen" % (16 + 4 * j, 19 + 4 * j, 3 + j), "k")
    for j in range(4):
        a.vm("buffer_load_dwordx4 v[%d:%d], v9, s[40:43], 0 offen offset:%d" % (52 + 4 * j, 55 + 4 * j, 16 * j), "k")
    a.vm("buffer_load_dwordx4 v[36:39], v8, s[44:47], 0 offen", "v")
    a.vm("buffer_load_dwordx4 v[40:43], v8, s[44:47], 0 offen offset:896", "v")
    a.vm("buffer_load_dwordx4 v[44:47], v8, s[4:7], 0 offen", "q")
    a.vm("buffer_load_dwordx4 v[48:51], v8, s[4:7], 0 offen offset:896", "q")
    srd(a, 36, 16, 17, NB_SD)
    a("v_lshlrev_b32 v10, 4, v0")
    a("s_lshl_b32 s52, s58, 13")
    a("s_add_u32 s53, s52, 4096")
    for c in range(2):
        for k in range(3):
            r = 200 + (c * 3 + k) * 4
            a.vm("buffer_load_dwordx4 v[%d:%d], v10, s[36:39], s%d offen offset:%d" % (r, r + 3, 52 + c, 4 * k), "ssm")
    a("v_and_b32 v11, 15, v2")
    a("v_lshrrev_b32 v12, 4, v2")
    a("v_add_u32 v13, v11, v12")
    a("v_subrev_u32 v13, 15, v13")
    a("v_lshlrev_b32 v15, 1, v13")
    a("v_mov_b32 v225, 0x40000000")
    a("v_cmp_gt_i32 vcc, 0, v13")
    a("v_cndmask_b32 v15, v15, v225, vcc")
    a("s_and_b32 s54, s49, 1")
    a("s_lshl_b32 s54, s54, 12")
    a("s_add_u32 s54, s54, s52")
    a.vm("buffer_load_ushort v224, v15, s[36:39], s54 offen", "ssm")
    a("s_lshl_b32 s54, s58, 2")
    a("s_load_dword s63, s[18:19], s54")
    srd(a, 40, 22, 23, D * F * 2)
    a("v_lshrrev_b32 v226, 4, v2")
    a("v_and_b32 v227, 15, v2")
    a("v_lshlrev_b32 v228, 2, v226")
    a("v_xor_b32 v227, v227, v228")
    a("v_mul_u32_u24 v226, 3584, v226")
    a("v_lshl_add_u32 v226, v227, 4, v226")
    a("s_mul_i32 s54, s49, %d" % (4 * 3584))
    a("s_lshl_b32 s55, s60, 8")
    a("s_add_u32 s54, s54, s55")
    a("s_lshl_b32 s55, s49, 10")
    def w1dma(ks):
        a("s_add_u32 m0, s55, %d" % (ks * 4096))
        a.vm("buffer_load_dwordx4 v226, s[40:43], s54 offen lds", "w1")
        a("s_add_u32 s54, s54, %d" % (16 * 3584))
    for ks in range(cfg.npre): w1dma(ks)
    stamp(a, 1)
    a("v_sub_u32 v10, 31, v14")
    a("v_lshrrev_b32 v11, 2, v10")
    a("v_xor_b32 v11, v11, v1")
    a("v_lshlrev_b32 v11, 4, v11")
    a("v_and_b32 v10, 3, v10")
    a("v_lshl_add_u32 v11, v10, 2, v11")
    a("v_lshl_add_u32 v11, v1, 10, v11")
    a("v_add_u32 v11, %d, v11" % R1)
    a("v_lshrrev_b32 v12, 2, v14")
    a("v_xor_b32 v12, v12, v1")
    a("v_lshlrev_b32 v12, 4, v12")
    a("v_and_b32 v10, 3, v14")
    a("v_lshl_add_u32 v12, v10, 2, v12")
    a("v_lshl_add_u32 v12, v1, 10, v12")
    a("v_add_u32 v12, %d, v12" % (R1 + 8192))
    a.vmwait("k")
    stamp(a, 2)
    W = lambda c, t: 68 + (c * 4 + t) * 2
    for c in range(4):
        r = 52 + 4 * c
        a("v_lshlrev_b32 v%d, 16, v%d" % (W(c, 0), r))
        a("v_lshlrev_b32 v%d, 16, v%d" % (W(c, 0) + 1, r + 2))
        a("v_and_b32 v%d, 0xffff0000, v%d" % (W(c, 1), r))
        a("v_and_b32 v%d, 0xffff0000, v%d" % (W(c, 1) + 1, r + 2))
        a("v_lshlrev_b32 v%d, 16, v%d" % (W(c, 2), r + 1))
        a("v_lshlrev_b32 v%d, 16, v%d" % (W(c, 2) + 1, r + 3))
        a("v_and_b32 v%d, 0xffff0000, v%d" % (W(c, 3), r + 1))
        a("v_and_b32 v%d, 0xffff0000, v%d" % (W(c, 3) + 1, r + 3))
    K = lambda j, c: 100 + (j * 4 + c) * 2
    for j in range(5):
        for c in range(4):
            r = 16 + 4 * j + c
            a("v_lshlrev_b32 v%d, 16, v%d" % (K(j, c), r))
            a("v_and_b32 v%d, 0xffff0000, v%d" % (K(j, c) + 1, r))
    U = lambda e, c: 140 + e * 8 + 2 * c
    P = lambda r: "v[%d:%d]" % (r, r + 1)
    for e in range(2):
        for c in range(4):
            a("v_pk_mul_f32 %s, %s, %s" % (P(U(e, c)), P(K(3 + e, c)), P(W(c, 0))))
        for t in range(1, 4):
            for c in range(4):
                a("v_pk_fma_f32 %s, %s, %s, %s" % (P(U(e, c)), P(K(3 + e - t, c)), P(W(c, t)), P(U(e, c))))
    a.vmwait("v")
    for e in range(2):
        for c in range(4):
            r = 36 + 4 * e + c
            t = 156 + (e * 4 + c) * 2
            a("v_lshlrev_b32 v%d, 16, v%d" % (t, r))
            a("v_and_b32 v%d, 0xffff0000, v%d" % (t + 1, r))
    for e in range(2):
        for c in range(4):
            t = 156 + (e * 4 + c) * 2
            a("v_pk_mul_f32 %s, %s, %s" % (P(U(e, c)), P(U(e, c)), P(t)))
    for i in range(8):
        a("v_cvt_pk_bf16_f32 v%d, v%d, v%d" % (172 + i, 148 + i, 140 + i))
    for i in range(8):
        a("ds_write_b32 v11, v%d offset:%d" % (172 + i, i * 128))
    a.vmwait("q")
    a("s_mov_b32 s52, 0x05040100")
    a("s_mov_b32 s53, 0x07060302")
    for i in range(4):
        a("v_perm_b32 v%d, v%d, v%d, s52" % (180 + 2 * i, 48 + i, 44 + i))
        a("v_perm_b32 v%d, v%d, v%d, s53" % (181 + 2 * i, 48 + i, 44 + i))
    for i in range(8):
        a("ds_write_b32 v12, v%d offset:%d" % (180 + i, i * 128))
    a("v_lshrrev_b32 v10, 3, v14")
    a("v_xor_b32 v15, v1, v10")
    a("v_lshlrev_b32 v15, 4, v15")
    a("v_lshl_add_u32 v15, v14, 7, v15")
    a("v_add_u32 v15, %d, v15" % R1)
    a("v_xor_b32 v3, 64, v15")
    a("v_lshlrev_b32 v13, 12, v14")
    a("v_lshl_add_u32 v13, v1, 4, v13")
    a("s_lshl_b32 s52, s57, 18")
    a("s_lshl_b32 s53, s56, 7")
    a("s_sub_u32 s50, 3968, s53")
    a("s_add_u32 s50, s50, s52")
    a("s_add_u32 s51, s52, s53")
    a("s_add_u32 s51, s51, 0x%x" % WS_XT)
    a("s_waitcnt lgkmcnt(0)")
    a("s_barrier")
    a("ds_read_b128 v[16:19], v15")
    a("ds_read_b128 v[20:23], v3 offset:4096")
    a("ds_read_b128 v[24:27], v15 offset:8192")
    a("ds_read_b128 v[28:31], v3 offset:12288")
    a("s_add_u32 s52, s50, %d" % (32 * 4096))
    a("s_add_u32 s53, s51, %d" % (32 * 4096))
    a("s_waitcnt lgkmcnt(3)")
    a.vm("buffer_store_dwordx4 v[16:19], v13, %s, s50 offen %s" % (WS, SC), "p1st")
    a("s_waitcnt lgkmcnt(2)")
    a.vm("buffer_store_dwordx4 v[20:23], v13, %s, s52 offen %s" % (WS, SC), "p1st")
    a("s_waitcnt lgkmcnt(1)")
    a.vm("buffer_store_dwordx4 v[24:27], v13, %s, s51 offen %s" % (WS, SC), "p1st")
    a("s_waitcnt lgkmcnt(0)")
    a.vm("buffer_store_dwordx4 v[28:31], v13, %s, s53 offen %s" % (WS, SC), "p1st")
    stamp(a, 3)
    token(a)
    a.vmwait("p1st")
    a("s_barrier")
    a("s_lshl_b32 s52, s57, 5")
    a("s_add_u32 s52, s52, s56")
    publish(a, 52)
    stamp(a, 4)
    for ks in range(cfg.npre, 28): w1dma(ks)
    if cfg.upto == 1:
        a("s_branch L_DONE")
    a("v_bfe_u32 v4, v2, 2, 2")
    a("v_lshrrev_b32 v5, 5, v2")
    a("v_lshl_add_u32 v5, v5, 2, v4")
    a("v_lshlrev_b32 v5, 8, v5")
    a("v_lshl_add_u32 v5, v4, 6, v5")
    a("v_bfe_u32 v4, v2, 4, 1")
    a("v_lshl_add_u32 v5, v4, 5, v5")
    a("v_and_b32 v4, 3, v2")
    a("v_lshl_add_u32 v5, v4, 3, v5")
    a("s_lshl_b32 s52, s49, 6")
    a("v_xor_b32 v6, s52, v5")
    a("v_add_u32 v7, 0x10000, v6")
    a.vmwait("w1")
    a("s_barrier")
    FR = 16
    for ks in range(28):
        b = 6 if ks < 16 else 7
        a("ds_read_b64_tr_b16 v[%d:%d], v%d offset:%d" % (FR + 4 * ks, FR + 4 * ks + 1, b, (ks & 15) * 4096))
        a("ds_read_b64_tr_b16 v[%d:%d], v%d offset:%d" % (FR + 4 * ks + 2, FR + 4 * ks + 3, b, (ks & 15) * 4096 + 2048))
    a("v_mov_b32 v8, 0x3f803f80")
    for i in range(4): a("v_mov_b32 v%d, 0" % (128 + i))
    a("s_waitcnt lgkmcnt(0)")
    a("s_barrier")
    for i in range(112):
        a("v_dot2_f32_bf16 v%d, v%d, v8, v%d" % (128 + (i & 3), FR + i, 128 + (i & 3)))
    a("v_lshlrev_b32 v9, 4, v0")
    a("v_add_u32 v9, 32, v9")
    a.vmwait("ssm")
    for c in range(2):
        L0, L1, L2 = 200 + c * 12, 204 + c * 12, 208 + c * 12
        for i in range(4):
            a("v_alignbit_b32 v%d, v%d, v%d, 16" % (232 + i, L1 + i, L0 + i))
        for i in range(4):
            a("v_alignbit_b32 v%d, v%d, v%d, 16" % (236 + i, L2 + i, L1 + i))
        base = HC + c * HC_CH
        a("ds_write_b128 v9, v[232:235] offset:%d" % (base + 0 * 4160))
        a("ds_write_b128 v9, v[%d:%d] offset:%d" % (L1, L1 + 3, base + 1 * 4160))
        a("ds_write_b128 v9, v[236:239] offset:%d" % (base + 2 * 4160))
        a("ds_write_b128 v9, v[%d:%d] offset:%d" % (L2, L2 + 3, base + 3 * 4160))
        if c == 0: a("s_waitcnt lgkmcnt(0)")
    a("v_and_b32 v10, 15, v2")
    a("v_lshrrev_b32 v11, 4, v2")
    a("v_mul_u32_u24 v9, 4160, v11")
    a("v_lshl_add_u32 v9, v10, 1, v9")
    a("s_and_b32 s52, s49, 1")
    a("s_mul_i32 s52, s52, %d" % HC_CH)
    a("v_add_u32 v9, s52, v9")
    a("ds_write_b16 v9, v224 offset:%d" % HC)
    a("v_lshrrev_b32 v13, 5, v2")
    a("v_mul_u32_u24 v13, %d, v13" % UR_CH)
    a("v_and_b32 v12, 31, v2")
    a("v_lshl_add_u32 v13, v12, 4, v13")
    a("v_add_u32 v13, %d, v13" % (UR + 4096))
    for i in range(4): a("v_mov_b32 v%d, 0" % (240 + i))
    a("ds_write_b128 v13, v[240:243]")
    a("v_add_f32 v128, v128, v129")
    a("v_add_f32 v130, v130, v131")
    a("v_add_f32 v128, v128, v130")
    a("v_mov_b32 v129, v128")
    a("v_permlane32_swap_b32 v128, v129")
    a("v_add_f32 v128, v128, v129")
    a("v_mul_f32 v128, 0xbb124925, v128")
    for i in range(112):
        r = FR + i
        t = 132 + 2 * (i & 3)
        a("v_lshlrev_b32 v%d, 16, v%d" % (t, r))
        a("v_and_b32 v%d, 0xffff0000, v%d" % (t + 1, r))
        a("v_pk_add_f32 v[%d:%d], v[%d:%d], v[128:129] op_sel_hi:[1,0]" % (t, t + 1, t, t + 1))
        a("v_cvt_pk_bf16_f32 v%d, v%d, v%d" % (140 + (i & 3), t, t + 1))
        a("v_accvgpr_write_b32 a%d, v%d" % (i, 140 + (i & 3)))
    stamp(a, 5)
    a("s_lshr_b32 s52, s58, 5")
    a("s_lshl_b32 s52, s52, 5")
    a("v_mov_b32 v12, s52")
    a("v_mov_b32 v13, %d" % (FS_IDX - 32))
    a("v_cmp_gt_u32 vcc, 32, v2")
    a("v_cndmask_b32 v12, v13, v12, vcc")
    a("v_add_u32 v12, v12, v2")
    a("v_lshlrev_b32 v12, 6, v12")
    a("s_mov_b32 s53, 0x%x" % WS_FLAG)
    a("s_waitcnt lgkmcnt(0)")
    poll(a, [12], 53)
    stamp(a, 6)
    a("s_lshr_b32 s52, s49, 1")
    a("s_and_b32 s53, s49, 1")
    a("s_lshl_b32 s54, s58, 13")
    a("s_lshl_b32 s55, s52, 12")
    a("s_add_u32 s55, s55, s54")
    a("s_lshl_b32 s50, s53, 11")
    a("s_add_u32 s51, s55, s50")
    a("s_mul_i32 s36, s52, %d" % UR_CH)
    a("s_add_u32 s36, s36, s50")
    a("s_add_u32 s36, s36, %d" % UR)
    a("v_lshlrev_b32 v4, 4, v2")
    a("s_mov_b32 m0, s36")
    a("s_add_u32 s37, s51, 1024")
    a.vm("buffer_load_dwordx4 v4, %s, s51 offen %s lds" % (WS, SL), "ur")
    a("s_add_u32 m0, s36, 1024")
    a.vm("buffer_load_dwordx4 v4, %s, s37 offen %s lds" % (WS, SL), "ur")
    a("v_and_b32 v12, 127, v0")
    a("v_lshlrev_b32 v13, 4, v12")
    a("v_lshrrev_b32 v14, 7, v0")
    a("v_lshl_add_u32 v13, v14, 12, v13")
    a("v_lshlrev_b32 v15, 5, v12")
    a("s_add_u32 s36, s54, 0x%x" % WS_XT)
    XR = 200
    for g in range(2):
        a.vm("buffer_load_dwordx4 v[%d:%d], v13, %s, s36 offen offset:%d %s" % (XR + 4 * g, XR + 4 * g + 3, WS, 2048 * g, SL), "ep")
    SA = 208
    a("s_mov_b32 s36, 0x%x" % WS_STA)
    a("s_mov_b32 s37, 0x%x" % WS_STB)
    a("s_add_u32 s38, s36, 4096")
    a("s_add_u32 s39, s37, 4096")
    for g in range(2):
        for hlf in range(2):
            a.vm("buffer_load_dwordx4 v[%d:%d], v15, %s, s%d offen offset:%d %s" % (SA + 8 * g + 4 * hlf, SA + 8 * g + 4 * hlf + 3, WS, 36 + 2 * g, 16 * hlf, SL), "ep")
            a.vm("buffer_load_dwordx4 v[%d:%d], v15, %s, s%d offen offset:%d %s" % (SA + 16 + 8 * g + 4 * hlf, SA + 16 + 8 * g + 4 * hlf + 3, WS, 37 + 2 * g, 16 * hlf, SL), "ep")
    a("v_and_b32 v16, 3, v10")
    a("v_mul_u32_u24 v16, 4160, v16")
    a("v_lshrrev_b32 v17, 2, v10")
    a("v_lshl_add_u32 v16, v17, 3, v16")
    a("v_lshl_add_u32 v16, v11, 4, v16")
    a("s_mul_i32 s36, s52, %d" % HC_CH)
    a("s_lshl_b32 s37, s53, 8")
    a("s_add_u32 s36, s36, s37")
    a("v_add_u32 v16, s36, v16")
    a("v_lshlrev_b32 v17, 5, v10")
    a("v_lshlrev_b32 v18, 4, v11")
    a("v_sub_u32 v17, v18, v17")
    a("s_mul_i32 s36, s52, %d" % UR_CH)
    a("s_add_u32 s36, s36, s37")
    a("s_add_u32 s36, s36, %d" % (UR + 480))
    a("v_add_u32 v17, s36, v17")
    a("s_lshl_b32 s36, s52, 4")
    a("s_lshr_b32 s37, s63, s36")
    a("s_and_b32 s37, s37, 0xffff")
    a("s_cmp_eq_u32 s53, 0")
    a("s_cselect_b32 s37, s37, 0")
    a("v_lshlrev_b32 v18, 3, v11")
    a("v_add_u32 v18, v18, v10")
    a("v_sub_u32 v18, 15, v18")
    a("v_and_b32 v19, 1, v18")
    a("v_lshlrev_b32 v19, 4, v19")
    a("v_mov_b32 v24, s37")
    a("v_lshlrev_b32 v19, v19, v24")
    a("v_ashrrev_i32 v18, 1, v18")
    for dw in range(4):
        a("v_cmp_eq_u32 vcc, %d, v18" % dw)
        a("v_cndmask_b32 v%d, 0, v19, vcc" % (20 + dw))
    ACC = 24
    for i in range(32): a("v_mov_b32 v%d, 0" % (ACC + i))
    AB = [56, 88]; BB = [120, 152]
    a.vmwait("ur")
    a("s_barrier")
    stamp(a, 7)
    def readA(st, rho, aa):
        r = AB[st] + 4 * aa
        off = 64 * rho + 512 * aa
        return ["ds_read_b64 v[%d:%d], v16 offset:%d" % (r, r + 1, off),
                "ds_read_b64 v[%d:%d], v16 offset:%d" % (r + 2, r + 3, off + 8)]
    def readB(st, rho, b):
        r = BB[st] + 4 * b
        return ["ds_read_b128 v[%d:%d], v17 offset:%d" % (r, r + 3, 64 * rho + 512 * (7 - b))]
    def mfma(t, areg, breg):
        return "v_mfma_f32_16x16x32_bf16 v[%d:%d], v[%d:%d], v[%d:%d], v[%d:%d]" % (ACC + 4 * t, ACC + 4 * t + 3, areg, areg + 3, breg, breg + 3, ACC + 4 * t, ACC + 4 * t + 3)
    for b in range(8):
        for l in readB(0, 0, b): a(l)
    for aa in range(8):
        for l in readA(0, 0, aa): a(l)
    for rho in range(4):
        st = rho & 1
        nxt = []
        if rho < 3:
            for b in range(8): nxt += readB(1 - st, rho + 1, b)
            for aa in range(8): nxt += readA(1 - st, rho + 1, aa)
        ms = []
        if rho == 0:
            for t in range(8): ms.append((mfma(t, 20, BB[st] + 4 * t), None))
        for aa in range(8):
            for t in range(aa, 8):
                ms.append((mfma(t, AB[st] + 4 * aa, BB[st] + 4 * (t - aa)), aa))
        a("s_waitcnt lgkmcnt(%d)" % (15 if rho == 0 else 0))
        ni = 0; waited = -1
        for i, (m, aa) in enumerate(ms):
            if rho == 0 and aa is not None and aa > waited and aa <= 1:
                a("s_waitcnt lgkmcnt(%d)" % (14 if aa == 0 else 0))
                waited = aa
            a(m)
            if (rho > 0 or waited == 1) and ni < len(nxt):
                a(nxt[ni]); ni += 1
        while ni < len(nxt):
            a(nxt[ni]); ni += 1
    stamp(a, 8)
    a("v_lshl_add_u32 v18, v10, 2, v11")
    a("v_bfe_u32 v19, v10, 1, 2")
    a("v_xor_b32 v18, v18, v19")
    a("v_lshlrev_b32 v18, 4, v18")
    a("s_lshl_b32 s36, s49, 13")
    a("s_add_u32 s36, s36, %d" % PB)
    a("v_add_u32 v18, s36, v18")
    for t in range(8):
        a("ds_write_b128 v18, v[%d:%d] offset:%d" % (ACC + 4 * t, ACC + 4 * t + 3, 1024 * t))
    a("v_and_b32 v19, 31, v12")
    a("v_lshlrev_b32 v20, 1, v19")
    a("v_bfe_u32 v21, v19, 2, 2")
    a("v_xor_b32 v20, v20, v21")
    a("v_lshlrev_b32 v20, 4, v20")
    a("v_lshrrev_b32 v21, 5, v12")
    a("v_lshl_add_u32 v20, v21, 10, v20")
    a("v_lshl_add_u32 v20, v14, 14, v20")
    a("v_add_u32 v20, %d, v20" % PB)
    a("v_xor_b32 v21, 16, v20")
    a("s_waitcnt lgkmcnt(0)")
    a("s_barrier")
    Z = 56
    for g in range(2):
        for hf in range(2):
            a("ds_read_b128 v[%d:%d], v20 offset:%d" % (Z + 16 * g + 8 * hf, Z + 16 * g + 8 * hf + 3, hf * 8192 + g * 4096))
            a("ds_read_b128 v[%d:%d], v21 offset:%d" % (Z + 16 * g + 8 * hf + 4, Z + 16 * g + 8 * hf + 7, hf * 8192 + g * 4096))
    a.vmwait("ep")
    a("s_add_u32 s36, s54, 0x%x" % WS_HT)
    for g in range(2):
        X = 120 + 16 * g
        for i in range(4):
            a("v_lshlrev_b32 v%d, 16, v%d" % (X + 2 * i, XR + 4 * g + i))
            a("v_and_b32 v%d, 0xffff0000, v%d" % (X + 2 * i + 1, XR + 4 * g + i))
        for i in range(4):
            A_ = SA + 8 * g + 2 * i; B_ = SA + 16 + 8 * g + 2 * i
            a("v_pk_fma_f32 v[%d:%d], v[%d:%d], v[%d:%d], v[%d:%d]" % (X + 8 + 2 * i, X + 9 + 2 * i, X + 2 * i, X + 2 * i + 1, A_, A_ + 1, B_, B_ + 1))
        a("s_waitcnt lgkmcnt(%d)" % (4 if g == 0 else 0))
        z = Z + 16 * g
        for i in range(4):
            a("v_pk_add_f32 v[%d:%d], v[%d:%d], v[%d:%d]" % (z + 2 * i, z + 2 * i + 1, z + 2 * i, z + 2 * i + 1, z + 8 + 2 * i, z + 9 + 2 * i))
        for i in range(4):
            a("v_pk_fma_f32 v[%d:%d], v[%d:%d], v[%d:%d], v[%d:%d]" % (z + 2 * i, z + 2 * i + 1, X + 8 + 2 * i, X + 9 + 2 * i, z + 2 * i, z + 2 * i + 1, X + 2 * i, X + 2 * i + 1))
        for i in range(4):
            a("v_cvt_pk_bf16_f32 v%d, v%d, v%d" % (z + 8 + i, z + 2 * i, z + 2 * i + 1))
        a.vm("buffer_store_dwordx4 v[%d:%d], v13, %s, s36 offen offset:%d %s" % (z + 8, z + 11, WS, 2048 * g, SC), "p2st")
    stamp(a, 9)
    a("s_barrier")
    srd(a, 40, 24, 25, D * F * 2)
    a("v_lshrrev_b32 v6, 3, v2")
    a("v_and_b32 v7, 7, v2")
    a("v_bfe_u32 v8, v2, 4, 1")
    a("v_lshlrev_b32 v8, 2, v8")
    a("v_xor_b32 v7, v7, v8")
    a("v_mul_u32_u24 v6, 896, v6")
    a("v_lshl_add_u32 v6, v7, 4, v6")
    a("s_mul_i32 s54, s49, %d" % (448 * 896))
    a("s_lshl_b32 s55, s62, 7")
    a("s_add_u32 s54, s54, s55")
    a("s_mul_i32 s55, s49, 28672")
    def w2dma(i, tag):
        a("s_add_u32 m0, s55, %d" % (i * 1024))
        a.vm("buffer_load_dwordx4 v6, s[40:43], s54 offen lds", tag)
        a("s_add_u32 s54, s54, %d" % (8 * 896))
    a.vmwait("p2st")
    a("s_barrier")
    a("s_add_u32 s52, s3, %d" % F2_IDX)
    publish(a, 52)
    stamp(a, 10)
    for i in range(28): w2dma(i, "w2a")
    if cfg.upto == 2:
        a("s_branch L_DONE")
    a("v_bfe_u32 v7, v2, 2, 2")
    a("v_lshrrev_b32 v8, 5, v2")
    a("v_lshl_add_u32 v8, v8, 2, v7")
    a("v_lshlrev_b32 v8, 7, v8")
    a("v_bfe_u32 v7, v2, 3, 1")
    a("v_lshl_add_u32 v8, v7, 6, v8")
    a("v_bfe_u32 v7, v2, 4, 1")
    a("v_lshl_add_u32 v8, v7, 5, v8")
    a("v_and_b32 v7, 3, v2")
    a("v_lshl_add_u32 v8, v7, 3, v8")
    a("v_add_u32 v9, s55, v8")
    a("v_xor_b32 v7, 64, v9")
    def w2tr(abase):
        for ks in range(14):
            for dt in range(2):
                r = abase + (ks * 2 + dt) * 4
                b = 9 if dt == 0 else 7
                a("ds_read_b64_tr_b16 a[%d:%d], v%d offset:%d" % (r, r + 1, b, ks * 2048))
                a("ds_read_b64_tr_b16 a[%d:%d], v%d offset:%d" % (r + 2, r + 3, b, ks * 2048 + 1024))
    a.vmwait("w2a")
    w2tr(112)
    a("v_lshlrev_b32 v12, 6, v2")
    a("v_add_u32 v13, %d, v12" % (64 * 64))
    a("v_add_u32 v14, %d, v12" % (128 * 64))
    a("v_min_u32 v15, 31, v2")
    a("v_lshlrev_b32 v15, 6, v15")
    a("v_add_u32 v15, %d, v15" % (192 * 64))
    a("s_mov_b32 s53, 0x%x" % (WS_FLAG + F2_IDX * 64))
    a("s_waitcnt lgkmcnt(0)")
    poll(a, [12, 13, 14, 15], 53)
    stamp(a, 11)
    a("v_lshrrev_b32 v12, 4, v2")
    a("v_and_b32 v13, 15, v2")
    a("v_lshlrev_b32 v14, 2, v12")
    a("v_xor_b32 v13, v13, v14")
    a("v_lshlrev_b32 v12, 12, v12")
    a("v_lshl_add_u32 v12, v13, 4, v12")
    a("s_lshl_b32 s52, s49, 14")
    a("s_lshl_b32 s53, s59, 8")
    a("s_add_u32 s52, s52, s53")
    a("s_add_u32 s52, s52, 0x%x" % WS_HT)
    a("s_lshl_b32 s53, s49, 10")
    for ks in range(28):
        a("s_add_u32 m0, s53, %d" % (ks * 4096))
        a.vm("buffer_load_dwordx4 v12, %s, s52 offen %s lds" % (WS, SL), "h%d" % ks)
        if ks != 27: a("s_add_u32 s52, s52, %d" % (16 * 4096))
    lab = a.label("EPO")
    a("s_or_b32 s52, s3, s49")
    a("s_cmp_lg_u32 s52, 0")
    a("s_cbranch_scc1 %s" % lab)
    a("s_mov_b32 s52, %d" % E_IDX)
    publish(a, 52)
    a(lab + ":")
    for i in range(4):
        a("s_add_u32 s52, s49, %d" % i)
        a("s_and_b32 s52, s52, 3")
        a("s_lshl_b32 s52, s52, 6")
        a("v_xor_b32 v%d, s52, v5" % (16 + i))
    ACC3 = 128
    for i in range(64): a("v_mov_b32 v%d, 0" % (ACC3 + i))
    HB = [192, 208]
    for i in range(4): a("v_mov_b32 v%d, 0" % (224 + i))
    a("v_mov_b32 v228, 0x3f803f80")
    def hreads(ks):
        st = ks & 1
        out = []
        for i in range(4):
            r = HB[st] + 4 * i
            out.append("ds_read_b64_tr_b16 v[%d:%d], v%d offset:%d" % (r, r + 1, 16 + i, (ks & 15) * 4096))
            out.append("ds_read_b64_tr_b16 v[%d:%d], v%d offset:%d" % (r + 2, r + 3, 16 + i, (ks & 15) * 4096 + 2048))
        return out
    sync = {0: 1, 2: 5, 6: 11, 12: 19, 20: 27}
    a.vmwait("h1"); a("s_barrier")
    stamp(a, 12)
    for l in hreads(0): a(l)
    for ks in range(28):
        st = ks & 1
        nxt = []
        if ks + 1 < 28:
            if ks + 1 in sync:
                a.vmwait("h%d" % sync[ks + 1]); a("s_barrier")
            if ks + 1 == 16:
                pass
            nxt = hreads(ks + 1)
        for i in range(4):
            a("s_waitcnt lgkmcnt(%d)" % (6 if (nxt or True) and ks + 1 < 28 else 6 - 2 * i))
            a("v_mfma_f32_32x32x16_bf16 v[%d:%d], a[%d:%d], v[%d:%d], v[%d:%d]" % (ACC3 + 16 * i, ACC3 + 16 * i + 15, 4 * ks, 4 * ks + 3, HB[st] + 4 * i, HB[st] + 4 * i + 3, ACC3 + 16 * i, ACC3 + 16 * i + 15))
            if nxt:
                if ks + 1 == 16 : a("v_add_u32 v%d, 0x10000, v%d" % (16 + i, 16 + i))
                a(nxt[2 * i]); a(nxt[2 * i + 1])
            if i < 2:
                for q in range(2):
                    o = HB[st] + 2 * i + q
                    a("v_dot2_f32_bf16 v%d, v%d, v228, v%d" % (224 + q, o, 224 + q))
                    a("v_dot2_f32_bf16 v%d, v%d, v%d, v%d" % (226 + q, o, o, 226 + q))
    stamp(a, 13)
    a("v_add_f32 v224, v224, v225")
    a("v_add_f32 v226, v226, v227")
    a("v_mov_b32 v225, v224")
    a("v_mov_b32 v227, v226")
    a("v_permlane32_swap_b32 v224, v225")
    a("v_permlane32_swap_b32 v226, v227")
    a("v_add_f32 v224, v224, v225")
    a("v_add_f32 v226, v226, v227")
    a("v_mul_f32 v224, 0x3b124925, v224")
    a("v_mul_f32 v226, 0x3b124925, v226")
    a("v_fma_f32 v226, -v224, v224, v226")
    a("v_max_f32 v226, 0, v226")
    a("v_add_f32 v226, 0x3727c5ac, v226")
    a("v_rsq_f32 v226, v226")
    lab = a.label("NOST2")
    a("s_cmp_lg_u32 s60, 0")
    a("s_cbranch_scc1 %s" % lab)
    a("s_lshl_b32 s52, s59, 2")
    a("s_add_u32 s52, s52, s49")
    a("s_lshl_b32 s52, s52, 7")
    a("s_add_u32 s52, s52, 0x%x" % WS_ST2)
    a("v_and_b32 v12, 31, v2")
    a("v_lshlrev_b32 v12, 2, v12")
    a("s_mov_b32 exec_hi, 0")
    a("buffer_store_dword v226, v12, %s, s52 offen %s" % (WS, SC))
    a("s_mov_b64 exec, -1")
    a(lab + ":")
    a("s_lshl_b32 s53, s60, 2")
    a("s_add_u32 s53, s53, s49")
    a("s_lshl_b32 s53, s53, 11")
    for i in range(4):
        a("s_add_u32 s52, s49, %d" % i)
        a("s_and_b32 s52, s52, 3")
        a("s_lshl_b32 s50, s59, 2")
        a("s_add_u32 s52, s52, s50")
        a("s_mul_i32 s52, s52, %d" % (112 * 1024))
        a("s_add_u32 s52, s52, s53")
        a("s_add_u32 s52, s52, 0x%x" % WS_H1F)
        acc = ACC3 + 16 * i
        o = 20 + 8 * i
        for q in range(8):
            a("v_cvt_pk_bf16_f32 v%d, v%d, v%d" % (o + q, acc + 2 * q, acc + 2 * q + 1))
        for q in range(8):
            a("v_pk_max_i16 v%d, v%d, 0" % (o + q, o + q))
        a.vm("buffer_store_dwordx4 v[%d:%d], v4, %s, s52 offen %s" % (o, o + 3, WS, SC), "p3st")
        a.vm("buffer_store_dwordx4 v[%d:%d], v4, %s, s52 offen offset:1024 %s" % (o + 4, o + 7, WS, SC), "p3st")
    a("s_barrier")
    a("v_lshrrev_b32 v12, 3, v2")
    a("v_and_b32 v13, 7, v2")
    a("v_bfe_u32 v14, v2, 4, 1")
    a("v_lshlrev_b32 v14, 2, v14")
    a("v_xor_b32 v13, v13, v14")
    a("v_lshlrev_b32 v12, 12, v12")
    a("v_lshl_add_u32 v12, v13, 4, v12")
    a("s_lshl_b32 s52, s62, 6")
    a("s_lshl_b32 s53, s49, 4")
    a("s_add_u32 s52, s52, s53")
    a("s_lshl_b32 s52, s52, 12")
    a("s_lshl_b32 s53, s61, 7")
    a("s_add_u32 s52, s52, s53")
    a("s_add_u32 s52, s52, 0x%x" % WS_HT)
    a("s_lshl_b32 s53, s49, 11")
    a("s_add_u32 s53, s53, %d" % R1)
    for i in range(2):
        a("s_add_u32 m0, s53, %d" % (i * 1024))
        a.vm("buffer_load_dwordx4 v12, %s, s52 offen %s lds" % (WS, SL), "hres")
        if i == 0: a("s_add_u32 s52, s52, %d" % (8 * 4096))
    a.vmwait("p3st")
    a("s_barrier")
    a("s_lshl_b32 s52, s59, 4")
    a("s_add_u32 s52, s52, s60")
    a("s_add_u32 s52, s52, %d" % F3_IDX)
    publish(a, 52)
    stamp(a, 14)
    for i in range(28): w2dma(i, "w2b")
    if cfg.upto == 3:
        a("s_branch L_DONE")
    a.vmwait("w2b")
    w2tr(0)
    a.vmwait("hres")
    a("v_min_u32 v12, 13, v2")
    a("v_lshlrev_b32 v12, 6, v12")
    a("s_lshr_b32 s52, s61, 1")
    a("s_lshl_b32 s52, s52, 10")
    a("s_add_u32 s53, s52, 0x%x" % (WS_FLAG + F3_IDX * 64))
    a("s_waitcnt lgkmcnt(0)")
    poll(a, [12], 53)
    stamp(a, 15)
    a("s_mul_i32 s52, s61, %d" % (2 * 112 * 1024))
    a("s_mul_i32 s53, s49, %d" % (28 * 1024))
    a("s_add_u32 s52, s52, s53")
    a("s_add_u32 s52, s52, 0x%x" % WS_H1F)
    a("s_add_u32 s53, s52, %d" % (112 * 1024))
    RING = 20; RB = 80
    def hloads(ks):
        r = RB + (ks % RING) * 8
        off = (ks % 4) * 1024
        a.vm("buffer_load_dwordx4 v[%d:%d], v4, %s, s52 offen offset:%d %s" % (r, r + 3, WS, off, SL), "H%d" % ks)
        a.vm("buffer_load_dwordx4 v[%d:%d], v4, %s, s53 offen offset:%d %s" % (r + 4, r + 7, WS, off, SL), "H%d" % ks)
        if ks % 4 == 3:
            a("s_add_u32 s52, s52, 4096"); a("s_add_u32 s53, s53, 4096")
    for ks in range(RING): hloads(ks)
    a("s_and_b32 s50, s49, 1")
    a("s_lshr_b32 s51, s49, 1")
    a("s_lshl_b32 s36, s61, 1")
    a("s_add_u32 s36, s36, s50")
    a("s_lshl_b32 s37, s36, 7")
    a("s_add_u32 s37, s37, 0x%x" % WS_ST2)
    a("v_and_b32 v12, 31, v2")
    a("v_lshlrev_b32 v13, 2, v12")
    a.vm("buffer_load_dword v248, v13, %s, s37 offen %s" % (WS, SL), "rstd")
    ACC4 = 16
    for i in range(64): a("v_mov_b32 v%d, 0" % (ACC4 + i))
    for ks in range(28):
        a.vmwait("H%d" % ks)
        r = RB + (ks % RING) * 8
        ab = (112 + ks * 8) if ks < 14 else ((ks - 14) * 8)
        for dt in range(2):
            for st in range(2):
                t = dt * 2 + st
                a("v_mfma_f32_32x32x16_bf16 v[%d:%d], a[%d:%d], v[%d:%d], v[%d:%d]" % (ACC4 + 16 * t, ACC4 + 16 * t + 15, ab + 4 * dt, ab + 4 * dt + 3, r + 4 * st, r + 4 * st + 3, ACC4 + 16 * t, ACC4 + 16 * t + 15))
        if ks + RING < 28: hloads(ks + RING)
    a("s_lshl_b32 s52, s49, 14")
    a("v_add_u32 v14, s52, v4")
    for t in range(4):
        for q in range(4):
            a("ds_write_b128 v14, v[%d:%d] offset:%d" % (ACC4 + 16 * t + 4 * q, ACC4 + 16 * t + 4 * q + 3, t * 4096 + q * 1024))
    a("s_lshl_b32 s52, s50, 6")
    a("v_xor_b32 v15, s52, v8")
    a("s_lshl_b32 s52, s51, 12")
    a("s_add_u32 s52, s52, %d" % R1)
    a("v_add_u32 v15, s52, v15")
    a("s_waitcnt lgkmcnt(0)")
    a("s_barrier")
    a("s_lshl_b32 s52, s49, 12")
    a("v_add_u32 v14, s52, v4")
    T = 80
    for sw in range(4):
        for q in range(4):
            a("ds_read_b128 v[%d:%d], v14 offset:%d" % (T + 16 * sw + 4 * q, T + 16 * sw + 4 * q + 3, sw * 16384 + q * 1024))
    for j4 in range(4):
        a("ds_read_b64_tr_b16 v[%d:%d], v15 offset:%d" % (240 + 2 * j4, 241 + 2 * j4, j4 * 1024))
    a("s_waitcnt lgkmcnt(12)")
    for i in range(0, 16, 2):
        a("v_pk_add_f32 v[%d:%d], v[%d:%d], v[%d:%d]" % (T + i, T + i + 1, T + i, T + i + 1, T + 16 + i, T + 17 + i))
    a("s_waitcnt lgkmcnt(4)")
    for i in range(0, 16, 2):
        a("v_pk_add_f32 v[%d:%d], v[%d:%d], v[%d:%d]" % (T + 32 + i, T + 33 + i, T + 32 + i, T + 33 + i, T + 48 + i, T + 49 + i))
    for i in range(0, 16, 2):
        a("v_pk_add_f32 v[%d:%d], v[%d:%d], v[%d:%d]" % (T + i, T + i + 1, T + i, T + i + 1, T + 32 + i, T + 33 + i))
    a.vmwait("rstd")
    a("s_waitcnt lgkmcnt(0)")
    for dw in range(8):
        hx = 160 + 2 * dw
        a("v_lshlrev_b32 v%d, 16, v%d" % (hx, 240 + dw))
        a("v_and_b32 v%d, 0xffff0000, v%d" % (hx + 1, 240 + dw))
        a("v_pk_fma_f32 v[%d:%d], v[%d:%d], v[248:249], v[%d:%d] op_sel_hi:[1,0,1]" % (hx, hx + 1, T + 2 * dw, T + 2 * dw + 1, hx, hx + 1))
        a("v_cvt_pk_bf16_f32 v%d, v%d, v%d" % (180 + dw, hx, hx + 1))
    for jp in range(2):
        A0 = 180 + 4 * jp
        a("v_permlane32_swap_b32 v%d, v%d" % (A0, A0 + 2))
        a("v_permlane32_swap_b32 v%d, v%d" % (A0 + 1, A0 + 3))
    srd(a, 36 + 4, 26, 27, NB_SD)
    a("v_mul_u32_u24 v7, 896, v12")
    a("v_lshrrev_b32 v9, 5, v2")
    a("v_lshl_add_u32 v7, v9, 4, v7")
    a("s_mul_i32 s52, s36, %d" % (32 * 896))
    a("s_lshl_b32 s53, s62, 1")
    a("s_add_u32 s53, s53, s51")
    a("s_lshl_b32 s53, s53, 6")
    a("s_add_u32 s52, s52, s53")
    a("buffer_store_dwordx4 v[180:183], v7, s[40:43], s52 offen")
    a("buffer_store_dwordx4 v[184:187], v7, s[40:43], s52 offen offset:32")
    a("L_DONE:")
    if common.STAMPS:
        fstamp_flush(a)
    a("L_END:")
    a("s_endpgm")
    gen_stats(a)
    return a.lines, dict(vgpr=256, sgpr=102, lds=LDS_TOTAL, grid=256, agpr=256)

def build(out, cfg=Cfg):
    lines, info = gen_fused(cfg)
    lines = fix_hazards(lines, verbose=True)
    txt = ["; generated by a hand-written generator (gen/fused.py)",
           "; @launch grid=(%d,1,1) block=(256,1,1) lds=%d" % (info["grid"], info["lds"]),
           '.amdgcn_target "amdgcn-amd-amdhsa--gfx950"', ".text"]
    txt += lines
    txt.append('.section .rodata,"a"')
    txt += kernel_desc(KN, info["vgpr"], info["sgpr"], accum=256, agpr=info["agpr"])
    open(out, "w").write("\n".join(txt) + "\n")

if __name__ == "__main__":
    import sys, os
    common.STAMPS = bool(os.environ.get("STAMPS"))
    out = sys.argv[1]
    for kv in sys.argv[2:]:
        k, v = kv.split("=")
        setattr(Cfg, k, int(v))
    build(out)
```

```python
from common import *
import common

KN = "sequential_preLN__ssm_conv_h3__dense_activation_relu__prompt_kernel"
R1 = 114688
LDS_TOTAL = R1 + 16384
HC = 0; HC_CH = 4 * 4160; UR = 2 * HC_CH; UR_CH = 4608; PB = UR + 2 * UR_CH
SC = "sc1"
SL = ""
S_T, S_WAVE = 48, 49
WS = "s[32:35]"

class Cfg:
    ldsc = 0
    npre = 10
    upto = 4

def fstamp_flush(a):
    if not common.STAMPS: return
    lab = a.label("STMP")
    a("s_waitcnt vmcnt(0)")
    a("s_memrealtime s[100:101]")
    a("s_waitcnt lgkmcnt(0)")
    a("s_cmp_lg_u32 s49, 0")
    a("s_cbranch_scc1 %s" % lab)
    if common.STAMPS == 2:
        a("s_cmp_lg_u32 s2, 100")
        a("s_cbranch_scc1 %s" % lab)
        a("s_mov_b64 exec, 1")
        a("v_mov_b32 v250, 0")
        for i in range(1, 16):
            a("s_sub_u32 s96, s%d, s64" % (64 + 2 * i))
            a("v_mov_b32 v251, s96")
            a("global_store_dword v250, v251, s[28:29] offset:%d" % (4 * (i - 1)))
        a("s_sub_u32 s96, s100, s64")
        a("v_mov_b32 v251, s96")
        a("global_store_dword v250, v251, s[28:29] offset:60")
        a(lab + ":")
        return
    a("s_lshl_b32 s96, s2, 7")
    a("s_add_u32 s96, s96, 0x%x" % WS_STAMP)
    a("s_add_u32 s98, s30, s96")
    a("s_addc_u32 s99, s31, 0")
    a("s_mov_b64 exec, 1")
    a("v_mov_b32 v250, 0")
    for i in range(16):
        a("v_mov_b32 v251, s%d" % (64 + 2 * i))
        a("global_store_dword v250, v251, s[98:99] offset:%d" % (4 * i))
    a("v_mov_b32 v251, s100")
    a("global_store_dword v250, v251, s[98:99] offset:64")
    a(lab + ":")

def publish(a, idx_sgpr):
    lab = a.label("PUB")
    a("s_cmp_lg_u32 s%d, 0" % S_WAVE)
    a("s_cbranch_scc1 %s" % lab)
    a("s_lshl_b32 s50, s%d, 6" % idx_sgpr)
    a("s_add_u32 s50, s50, 0x%x" % WS_FLAG)
    a("v_mov_b32 v250, s%d" % S_T)
    a("v_mov_b32 v251, 0")
    a("s_mov_b64 exec, 1")
    a("buffer_store_dword v250, v251, %s, s50 offen sc0 sc1" % WS)
    a("s_mov_b64 exec, -1")
    a(lab + ":")

def poll(a, vaddrs, soff_sgpr):
    lp = a.label("POLL"); done = a.label("PDONE")
    a("s_cmp_lg_u32 s%d, 0" % S_WAVE)
    a("s_cbranch_scc1 %s" % done)
    a("s_mov_b32 s51, 0")
    a(lp + ":")
    for i, v in enumerate(vaddrs):
        a("buffer_load_dword v%d, v%d, %s, s%d offen sc0 sc1" % (246 + i, v, WS, soff_sgpr))
    a("s_waitcnt vmcnt(0)")
    for i in range(len(vaddrs)):
        a("v_xor_b32 v%d, s%d, v%d" % (246 + i, S_T, 246 + i))
    for i in range(1, len(vaddrs)):
        a("v_or_b32 v246, v246, v%d" % (246 + i))
    a("v_cmp_ne_u32 vcc, 0, v246")
    a("s_nop 4")
    a("s_cmp_eq_u64 vcc, 0")
    a("s_cbranch_scc1 %s" % done)
    a("s_add_u32 s51, s51, 1")
    a("s_cmp_lt_u32 s51, 0x40000")
    a("s_cbranch_scc1 %s" % lp)
    a(done + ":")
    a("s_barrier")

def gen_stats(a):
    a("L_STATS:")
    a("v_and_b32 v1, 7, v0")
    a("v_lshrrev_b32 v2, 3, v0")
    a("s_mul_i32 s52, s2, %d" % (64 * 896))
    a("v_lshrrev_b32 v3, 3, v2")
    a("v_and_b32 v4, 7, v2")
    a("v_lshl_add_u32 v5, v3, 4, v4")
    a("v_mul_u32_u24 v6, 896, v5")
    a("v_lshl_add_u32 v6, v1, 4, v6")
    a("v_add_u32 v6, s52, v6")
    a("v_add_u32 v7, %d, v6" % (8 * 896))
    srd(a, 36, 8, 9, NB_SD)
    for p in range(2):
        for i in range(7):
            r = 16 + (p * 7 + i) * 4
            a("buffer_load_dwordx4 v[%d:%d], v%d, s[36:39], 0 offen offset:%d" % (r, r + 3, 6 + p, i * 128))
    a("v_mov_b32 v8, 0x3f803f80")
    for r in range(80, 88): a("v_mov_b32 v%d, 0" % r)
    for p in range(2):
        for i in range(7):
            a("s_waitcnt vmcnt(%d)" % (13 - (p * 7 + i)))
            for c in range(4):
                r = 16 + (p * 7 + i) * 4 + c
                o = 80 + 4 * p + 2 * (c & 1)
                a("v_dot2_f32_bf16 v%d, v%d, v8, v%d" % (o, r, o))
                a("v_dot2_f32_bf16 v%d, v%d, v%d, v%d" % (o + 1, r, r, o + 1))
    for p in range(2):
        a("v_add_f32 v%d, v%d, v%d" % (80 + 4 * p, 80 + 4 * p, 82 + 4 * p))
        a("v_add_f32 v%d, v%d, v%d" % (81 + 4 * p, 81 + 4 * p, 83 + 4 * p))
    for mod in ("quad_perm:[1,0,3,2]", "quad_perm:[2,3,0,1]", "row_half_mirror"):
        for r in (80, 81, 84, 85):
            a("v_add_f32_dpp v%d, v%d, v%d %s row_mask:0xf bank_mask:0xf" % (r, r, r, mod))
    for p in range(2):
        s_, q_ = 80 + 4 * p, 81 + 4 * p
        a("v_mul_f32 v%d, 0x3b124925, v%d" % (s_, s_))
        a("v_mul_f32 v%d, 0x3b124925, v%d" % (q_, q_))
        a("v_fma_f32 v%d, -v%d, v%d, v%d" % (q_, s_, s_, q_))
        a("v_max_f32 v%d, 0, v%d" % (q_, q_))
        a("v_add_f32 v%d, 0x3727c5ac, v%d" % (q_, q_))
        a("v_rsq_f32 v%d, v%d" % (88 + 2 * p, q_))
        a("v_mul_f32 v%d, v%d, v%d" % (89 + 2 * p, s_, 88 + 2 * p))
        a("v_sub_f32 v%d, 0, v%d" % (89 + 2 * p, 89 + 2 * p))
    a("s_lshl_b32 s52, s2, 8")
    a("s_add_u32 s52, s52, 0x%x" % WS_STA)
    a("s_add_u32 s53, s52, 8192")
    a("v_lshlrev_b32 v9, 2, v5")
    a("v_cmp_eq_u32 vcc, 0, v1")
    a("s_and_saveexec_b64 s[54:55], vcc")
    a("buffer_store_dword v88, v9, %s, s52 offen %s" % (WS, SC))
    a("buffer_store_dword v89, v9, %s, s53 offen %s" % (WS, SC))
    a("buffer_store_dword v90, v9, %s, s52 offen offset:32 %s" % (WS, SC))
    a("buffer_store_dword v91, v9, %s, s53 offen offset:32 %s" % (WS, SC))
    a("s_mov_b64 exec, s[54:55]")
    a("s_waitcnt vmcnt(0) lgkmcnt(0)")
    token(a)
    a("s_barrier")
    a("s_add_u32 s52, s2, %d" % FS_IDX)
    publish(a, 52)
    stamp(a, 15)
    fstamp_flush(a)
    a("s_endpgm")

def token(a):
    a("s_mul_i32 s%d, s%d, 1664525" % (S_T, S_T))
    a("s_add_u32 s%d, s%d, 1013904223" % (S_T, S_T))

def gen_fused(cfg=Cfg):
    global SL
    SL = "sc1" if cfg.ldsc else ""
    a = Asm()
    for l in kernel_header(KN): a(l)
    a("s_load_dwordx16 s[8:23], s[0:1], 0")
    a("s_load_dwordx8 s[24:31], s[0:1], 64")
    stamp(a, 0)
    a("s_cmp_ge_u32 s2, 256")
    a("s_cbranch_scc1 L_END")
    a("v_lshrrev_b32 v1, 6, v0")
    a("v_and_b32 v2, 63, v0")
    a("v_readfirstlane_b32 s49, v1")
    a("s_mov_b32 s50, 0x%x" % (WS_FLAG + E_IDX * 64))
    a("s_waitcnt lgkmcnt(0)")
    a("s_load_dword s48, s[30:31], s50")
    srd(a, 32, 30, 31, WS_STAMP)
    a("s_cmp_lt_u32 s2, 32")
    a("s_cbranch_scc1 L_STATS")
    a("s_sub_u32 s3, s2, 32")
    a("s_mul_i32 s56, s3, 9363")
    a("s_lshr_b32 s56, s56, 16")
    a("s_mul_i32 s57, s56, 7")
    a("s_sub_u32 s57, s3, s57")
    a("s_and_b32 s52, s3, 7")
    a("s_lshr_b32 s53, s3, 3")
    a("s_mul_i32 s58, s52, 28")
    a("s_add_u32 s58, s58, s53")
    a("s_lshr_b32 s59, s52, 1")
    a("s_lshl_b32 s59, s59, 2")
    a("s_and_b32 s54, s53, 3")
    a("s_add_u32 s59, s59, s54")
    a("s_and_b32 s60, s52, 1")
    a("s_mul_i32 s60, s60, 7")
    a("s_lshr_b32 s55, s53, 2")
    a("s_add_u32 s60, s60, s55")
    a("s_lshl_b32 s61, s52, 2")
    a("s_add_u32 s61, s61, s54")
    a("s_mov_b32 s62, s55")
    a("v_and_b32 v1, 7, v0")
    a("v_lshrrev_b32 v14, 3, v0")
    a("s_mul_i32 s52, s56, %d" % (64 * 896))
    a("s_lshl_b32 s53, s57, 7")
    a("s_add_u32 s52, s52, s53")
    a("v_mul_u32_u24 v8, %d, v14" % (2 * 896))
    a("v_lshl_add_u32 v8, v1, 4, v8")
    a("v_add_u32 v8, s52, v8")
    for j in range(5):
        d = (j - 3) * 896
        if d < 0: a("v_subrev_u32 v%d, %d, v8" % (3 + j, -d))
        else: a("v_add_u32 v%d, %d, v8" % (3 + j, d))
    a("s_lshl_b32 s53, s57, 9")
    a("v_lshl_add_u32 v9, v1, 6, s53")
    srd(a, 36, 10, 11, NB_SD)
    srd(a, 40, 14, 15, 448 * 4 * 2)
    srd(a, 44, 12, 13, NB_SD)
    srd(a, 4, 8, 9, NB_SD)
    for j in range(5):
        a.vm("buffer_load_dwordx4 v[%d:%d], v%d, s[36:39], 0 offen" % (16 + 4 * j, 19 + 4 * j, 3 + j), "k")
    for j in range(4):
        a.vm("buffer_load_dwordx4 v[%d:%d], v9, s[40:43], 0 offen offset:%d" % (52 + 4 * j, 55 + 4 * j, 16 * j), "k")
    a.vm("buffer_load_dwordx4 v[36:39], v8, s[44:47], 0 offen", "v")
    a.vm("buffer_load_dwordx4 v[40:43], v8, s[44:47], 0 offen offset:896", "v")
    a.vm("buffer_load_dwordx4 v[44:47], v8, s[4:7], 0 offen", "q")
    a.vm("buffer_load_dwordx4 v[48:51], v8, s[4:7], 0 offen offset:896", "q")
    srd(a, 36, 16, 17, NB_SD)
    a("v_lshlrev_b32 v10, 4, v0")
    a("s_lshl_b32 s52, s58, 13")
    a("s_add_u32 s53, s52, 4096")
    for c in range(2):
        for k in range(3):
            r = 200 + (c * 3 + k) * 4
            a.vm("buffer_load_dwordx4 v[%d:%d], v10, s[36:39], s%d offen offset:%d" % (r, r + 3, 52 + c, 4 * k), "ssm")
    a("v_and_b32 v11, 15, v2")
    a("v_lshrrev_b32 v12, 4, v2")
    a("v_add_u32 v13, v11, v12")
    a("v_subrev_u32 v13, 15, v13")
    a("v_lshlrev_b32 v15, 1, v13")
    a("v_mov_b32 v225, 0x40000000")
    a("v_cmp_gt_i32 vcc, 0, v13")
    a("v_cndmask_b32 v15, v15, v225, vcc")
    a("s_and_b32 s54, s49, 1")
    a("s_lshl_b32 s54, s54, 12")
    a("s_add_u32 s54, s54, s52")
    a.vm("buffer_load_ushort v224, v15, s[36:39], s54 offen", "ssm")
    a("s_lshl_b32 s54, s58, 2")
    a("s_load_dword s63, s[18:19], s54")
    srd(a, 40, 22, 23, D * F * 2)
    a("v_lshrrev_b32 v226, 4, v2")
    a("v_and_b32 v227, 15, v2")
    a("v_lshlrev_b32 v228, 2, v226")
    a("v_xor_b32 v227, v227, v228")
    a("v_mul_u32_u24 v226, 3584, v226")
    a("v_lshl_add_u32 v226, v227, 4, v226")
    a("s_mul_i32 s54, s49, %d" % (4 * 3584))
    a("s_lshl_b32 s55, s60, 8")
    a("s_add_u32 s54, s54, s55")
    a("s_lshl_b32 s55, s49, 10")
    def w1dma(ks):
        a("s_add_u32 m0, s55, %d" % (ks * 4096))
        a.vm("buffer_load_dwordx4 v226, s[40:43], s54 offen lds", "w1")
        a("s_add_u32 s54, s54, %d" % (16 * 3584))
    for ks in range(cfg.npre): w1dma(ks)
    stamp(a, 1)
    a("v_sub_u32 v10, 31, v14")
    a("v_lshrrev_b32 v11, 2, v10")
    a("v_xor_b32 v11, v11, v1")
    a("v_lshlrev_b32 v11, 4, v11")
    a("v_and_b32 v10, 3, v10")
    a("v_lshl_add_u32 v11, v10, 2, v11")
    a("v_lshl_add_u32 v11, v1, 10, v11")
    a("v_add_u32 v11, %d, v11" % R1)
    a("v_lshrrev_b32 v12, 2, v14")
    a("v_xor_b32 v12, v12, v1")
    a("v_lshlrev_b32 v12, 4, v12")
    a("v_and_b32 v10, 3, v14")
    a("v_lshl_add_u32 v12, v10, 2, v12")
    a("v_lshl_add_u32 v12, v1, 10, v12")
    a("v_add_u32 v12, %d, v12" % (R1 + 8192))
    a.vmwait("k")
    stamp(a, 2)
    W = lambda c, t: 68 + (c * 4 + t) * 2
    for c in range(4):
        r = 52 + 4 * c
        a("v_lshlrev_b32 v%d, 16, v%d" % (W(c, 0), r))
        a("v_lshlrev_b32 v%d, 16, v%d" % (W(c, 0) + 1, r + 2))
        a("v_and_b32 v%d, 0xffff0000, v%d" % (W(c, 1), r))
        a("v_and_b32 v%d, 0xffff0000, v%d" % (W(c, 1) + 1, r + 2))
        a("v_lshlrev_b32 v%d, 16, v%d" % (W(c, 2), r + 1))
        a("v_lshlrev_b32 v%d, 16, v%d" % (W(c, 2) + 1, r + 3))
        a("v_and_b32 v%d, 0xffff0000, v%d" % (W(c, 3), r + 1))
        a("v_and_b32 v%d, 0xffff0000, v%d" % (W(c, 3) + 1, r + 3))
    K = lambda j, c: 100 + (j * 4 + c) * 2
    for j in range(5):
        for c in range(4):
            r = 16 + 4 * j + c
            a("v_lshlrev_b32 v%d, 16, v%d" % (K(j, c), r))
            a("v_and_b32 v%d, 0xffff0000, v%d" % (K(j, c) + 1, r))
    U = lambda e, c: 140 + e * 8 + 2 * c
    P = lambda r: "v[%d:%d]" % (r, r + 1)
    for e in range(2):
        for c in range(4):
            a("v_pk_mul_f32 %s, %s, %s" % (P(U(e, c)), P(K(3 + e, c)), P(W(c, 0))))
        for t in range(1, 4):
            for c in range(4):
                a("v_pk_fma_f32 %s, %s, %s, %s" % (P(U(e, c)), P(K(3 + e - t, c)), P(W(c, t)), P(U(e, c))))
    a.vmwait("v")
    for e in range(2):
        for c in range(4):
            r = 36 + 4 * e + c
            t = 156 + (e * 4 + c) * 2
            a("v_lshlrev_b32 v%d, 16, v%d" % (t, r))
            a("v_and_b32 v%d, 0xffff0000, v%d" % (t + 1, r))
    for e in range(2):
        for c in range(4):
            t = 156 + (e * 4 + c) * 2
            a("v_pk_mul_f32 %s, %s, %s" % (P(U(e, c)), P(U(e, c)), P(t)))
    for i in range(8):
        a("v_cvt_pk_bf16_f32 v%d, v%d, v%d" % (172 + i, 148 + i, 140 + i))
    for i in range(8):
        a("ds_write_b32 v11, v%d offset:%d" % (172 + i, i * 128))
    a.vmwait("q")
    a("s_mov_b32 s52, 0x05040100")
    a("s_mov_b32 s53, 0x07060302")
    for i in range(4):
        a("v_perm_b32 v%d, v%d, v%d, s52" % (180 + 2 * i, 48 + i, 44 + i))
        a("v_perm_b32 v%d, v%d, v%d, s53" % (181 + 2 * i, 48 + i, 44 + i))
    for i in range(8):
        a("ds_write_b32 v12, v%d offset:%d" % (180 + i, i * 128))
    a("v_lshrrev_b32 v10, 3, v14")
    a("v_xor_b32 v15, v1, v10")
    a("v_lshlrev_b32 v15, 4, v15")
    a("v_lshl_add_u32 v15, v14, 7, v15")
    a("v_add_u32 v15, %d, v15" % R1)
    a("v_xor_b32 v3, 64, v15")
    a("v_lshlrev_b32 v13, 12, v14")
    a("v_lshl_add_u32 v13, v1, 4, v13")
    a("s_lshl_b32 s52, s57, 18")
    a("s_lshl_b32 s53, s56, 7")
    a("s_sub_u32 s50, 3968, s53")
    a("s_add_u32 s50, s50, s52")
    a("s_add_u32 s51, s52, s53")
    a("s_add_u32 s51, s51, 0x%x" % WS_XT)
    a("s_waitcnt lgkmcnt(0)")
    a("s_barrier")
    a("ds_read_b128 v[16:19], v15")
    a("ds_read_b128 v[20:23], v3 offset:4096")
    a("ds_read_b128 v[24:27], v15 offset:8192")
    a("ds_read_b128 v[28:31], v3 offset:12288")
    a("s_add_u32 s52, s50, %d" % (32 * 4096))
    a("s_add_u32 s53, s51, %d" % (32 * 4096))
    a("s_waitcnt lgkmcnt(3)")
    a.vm("buffer_store_dwordx4 v[16:19], v13, %s, s50 offen %s" % (WS, SC), "p1st")
    a("s_waitcnt lgkmcnt(2)")
    a.vm("buffer_store_dwordx4 v[20:23], v13, %s, s52 offen %s" % (WS, SC), "p1st")
    a("s_waitcnt lgkmcnt(1)")
    a.vm("buffer_store_dwordx4 v[24:27], v13, %s, s51 offen %s" % (WS, SC), "p1st")
    a("s_waitcnt lgkmcnt(0)")
    a.vm("buffer_store_dwordx4 v[28:31], v13, %s, s53 offen %s" % (WS, SC), "p1st")
    stamp(a, 3)
    token(a)
    a.vmwait("p1st")
    a("s_barrier")
    a("s_lshl_b32 s52, s57, 5")
    a("s_add_u32 s52, s52, s56")
    publish(a, 52)
    stamp(a, 4)
    for ks in range(cfg.npre, 28): w1dma(ks)
    if cfg.upto == 1:
        a("s_branch L_DONE")
    a("v_bfe_u32 v4, v2, 2, 2")
    a("v_lshrrev_b32 v5, 5, v2")
    a("v_lshl_add_u32 v5, v5, 2, v4")
    a("v_lshlrev_b32 v5, 8, v5")
    a("v_lshl_add_u32 v5, v4, 6, v5")
    a("v_bfe_u32 v4, v2, 4, 1")
    a("v_lshl_add_u32 v5, v4, 5, v5")
    a("v_and_b32 v4, 3, v2")
    a("v_lshl_add_u32 v5, v4, 3, v5")
    a("s_lshl_b32 s52, s49, 6")
    a("v_xor_b32 v6, s52, v5")
    a("v_add_u32 v7, 0x10000, v6")
    a.vmwait("w1")
    a("s_barrier")
    FR = 16
    for ks in range(28):
        b = 6 if ks < 16 else 7
        a("ds_read_b64_tr_b16 v[%d:%d], v%d offset:%d" % (FR + 4 * ks, FR + 4 * ks + 1, b, (ks & 15) * 4096))
        a("ds_read_b64_tr_b16 v[%d:%d], v%d offset:%d" % (FR + 4 * ks + 2, FR + 4 * ks + 3, b, (ks & 15) * 4096 + 2048))
    a("v_mov_b32 v8, 0x3f803f80")
    for i in range(4): a("v_mov_b32 v%d, 0" % (128 + i))
    a("s_waitcnt lgkmcnt(0)")
    a("s_barrier")
    for i in range(112):
        a("v_dot2_f32_bf16 v%d, v%d, v8, v%d" % (128 + (i & 3), FR + i, 128 + (i & 3)))
    a("v_lshlrev_b32 v9, 4, v0")
    a("v_add_u32 v9, 32, v9")
    a.vmwait("ssm")
    for c in range(2):
        L0, L1, L2 = 200 + c * 12, 204 + c * 12, 208 + c * 12
        for i in range(4):
            a("v_alignbit_b32 v%d, v%d, v%d, 16" % (232 + i, L1 + i, L0 + i))
        for i in range(4):
            a("v_alignbit_b32 v%d, v%d, v%d, 16" % (236 + i, L2 + i, L1 + i))
        base = HC + c * HC_CH
        a("ds_write_b128 v9, v[232:235] offset:%d" % (base + 0 * 4160))
        a("ds_write_b128 v9, v[%d:%d] offset:%d" % (L1, L1 + 3, base + 1 * 4160))
        a("ds_write_b128 v9, v[236:239] offset:%d" % (base + 2 * 4160))
        a("ds_write_b128 v9, v[%d:%d] offset:%d" % (L2, L2 + 3, base + 3 * 4160))
        if c == 0: a("s_waitcnt lgkmcnt(0)")
    a("v_and_b32 v10, 15, v2")
    a("v_lshrrev_b32 v11, 4, v2")
    a("v_mul_u32_u24 v9, 4160, v11")
    a("v_lshl_add_u32 v9, v10, 1, v9")
    a("s_and_b32 s52, s49, 1")
    a("s_mul_i32 s52, s52, %d" % HC_CH)
    a("v_add_u32 v9, s52, v9")
    a("ds_write_b16 v9, v224 offset:%d" % HC)
    a("v_lshrrev_b32 v13, 5, v2")
    a("v_mul_u32_u24 v13, %d, v13" % UR_CH)
    a("v_and_b32 v12, 31, v2")
    a("v_lshl_add_u32 v13, v12, 4, v13")
    a("v_add_u32 v13, %d, v13" % (UR + 4096))
    for i in range(4): a("v_mov_b32 v%d, 0" % (240 + i))
    a("ds_write_b128 v13, v[240:243]")
    a("v_add_f32 v128, v128, v129")
    a("v_add_f32 v130, v130, v131")
    a("v_add_f32 v128, v128, v130")
    a("v_mov_b32 v129, v128")
    a("v_permlane32_swap_b32 v128, v129")
    a("v_add_f32 v128, v128, v129")
    a("v_mul_f32 v128, 0xbb124925, v128")
    for i in range(112):
        r = FR + i
        t = 132 + 2 * (i & 3)
        a("v_lshlrev_b32 v%d, 16, v%d" % (t, r))
        a("v_and_b32 v%d, 0xffff0000, v%d" % (t + 1, r))
        a("v_pk_add_f32 v[%d:%d], v[%d:%d], v[128:129] op_sel_hi:[1,0]" % (t, t + 1, t, t + 1))
        a("v_cvt_pk_bf16_f32 v%d, v%d, v%d" % (140 + (i & 3), t, t + 1))
        a("v_accvgpr_write_b32 a%d, v%d" % (i, 140 + (i & 3)))
    stamp(a, 5)
    a("s_lshr_b32 s52, s58, 5")
    a("s_lshl_b32 s52, s52, 5")
    a("v_mov_b32 v12, s52")
    a("v_mov_b32 v13, %d" % (FS_IDX - 32))
    a("v_cmp_gt_u32 vcc, 32, v2")
    a("v_cndmask_b32 v12, v13, v12, vcc")
    a("v_add_u32 v12, v12, v2")
    a("v_lshlrev_b32 v12, 6, v12")
    a("s_mov_b32 s53, 0x%x" % WS_FLAG)
    a("s_waitcnt lgkmcnt(0)")
    poll(a, [12], 53)
    stamp(a, 6)
    a("s_lshr_b32 s52, s49, 1")
    a("s_and_b32 s53, s49, 1")
    a("s_lshl_b32 s54, s58, 13")
    a("s_lshl_b32 s55, s52, 12")
    a("s_add_u32 s55, s55, s54")
    a("s_lshl_b32 s50, s53, 11")
    a("s_add_u32 s51, s55, s50")
    a("s_mul_i32 s36, s52, %d" % UR_CH)
    a("s_add_u32 s36, s36, s50")
    a("s_add_u32 s36, s36, %d" % UR)
    a("v_lshlrev_b32 v4, 4, v2")
    a("s_mov_b32 m0, s36")
    a("s_add_u32 s37, s51, 1024")
    a.vm("buffer_load_dwordx4 v4, %s, s51 offen %s lds" % (WS, SL), "ur")
    a("s_add_u32 m0, s36, 1024")
    a.vm("buffer_load_dwordx4 v4, %s, s37 offen %s lds" % (WS, SL), "ur")
    a("v_and_b32 v12, 127, v0")
    a("v_lshlrev_b32 v13, 4, v12")
    a("v_lshrrev_b32 v14, 7, v0")
    a("v_lshl_add_u32 v13, v14, 12, v13")
    a("v_lshlrev_b32 v15, 5, v12")
    a("s_add_u32 s36, s54, 0x%x" % WS_XT)
    XR = 200
    for g in range(2):
        a.vm("buffer_load_dwordx4 v[%d:%d], v13, %s, s36 offen offset:%d %s" % (XR + 4 * g, XR + 4 * g + 3, WS, 2048 * g, SL), "ep")
    SA = 208
    a("s_mov_b32 s36, 0x%x" % WS_STA)
    a("s_mov_b32 s37, 0x%x" % WS_STB)
    a("s_add_u32 s38, s36, 4096")
    a("s_add_u32 s39, s37, 4096")
    for g in range(2):
        for hlf in range(2):
            a.vm("buffer_load_dwordx4 v[%d:%d], v15, %s, s%d offen offset:%d %s" % (SA + 8 * g + 4 * hlf, SA + 8 * g + 4 * hlf + 3, WS, 36 + 2 * g, 16 * hlf, SL), "ep")
            a.vm("buffer_load_dwordx4 v[%d:%d], v15, %s, s%d offen offset:%d %s" % (SA + 16 + 8 * g + 4 * hlf, SA + 16 + 8 * g + 4 * hlf + 3, WS, 37 + 2 * g, 16 * hlf, SL), "ep")
    a("v_and_b32 v16, 3, v10")
    a("v_mul_u32_u24 v16, 4160, v16")
    a("v_lshrrev_b32 v17, 2, v10")
    a("v_lshl_add_u32 v16, v17, 3, v16")
    a("v_lshl_add_u32 v16, v11, 4, v16")
    a("s_mul_i32 s36, s52, %d" % HC_CH)
    a("s_lshl_b32 s37, s53, 8")
    a("s_add_u32 s36, s36, s37")
    a("v_add_u32 v16, s36, v16")
    a("v_lshlrev_b32 v17, 5, v10")
    a("v_lshlrev_b32 v18, 4, v11")
    a("v_sub_u32 v17, v18, v17")
    a("s_mul_i32 s36, s52, %d" % UR_CH)
    a("s_add_u32 s36, s36, s37")
    a("s_add_u32 s36, s36, %d" % (UR + 480))
    a("v_add_u32 v17, s36, v17")
    a("s_lshl_b32 s36, s52, 4")
    a("s_lshr_b32 s37, s63, s36")
    a("s_and_b32 s37, s37, 0xffff")
    a("s_cmp_eq_u32 s53, 0")
    a("s_cselect_b32 s37, s37, 0")
    a("v_lshlrev_b32 v18, 3, v11")
    a("v_add_u32 v18, v18, v10")
    a("v_sub_u32 v18, 15, v18")
    a("v_and_b32 v19, 1, v18")
    a("v_lshlrev_b32 v19, 4, v19")
    a("v_mov_b32 v24, s37")
    a("v_lshlrev_b32 v19, v19, v24")
    a("v_ashrrev_i32 v18, 1, v18")
    for dw in range(4):
        a("v_cmp_eq_u32 vcc, %d, v18" % dw)
        a("v_cndmask_b32 v%d, 0, v19, vcc" % (20 + dw))
    ACC = 24
    for i in range(32): a("v_mov_b32 v%d, 0" % (ACC + i))
    AB = [56, 88]; BB = [120, 152]
    a.vmwait("ur")
    a("s_barrier")
    stamp(a, 7)
    def readA(st, rho, aa):
        r = AB[st] + 4 * aa
        off = 64 * rho + 512 * aa
        return ["ds_read_b64 v[%d:%d], v16 offset:%d" % (r, r + 1, off),
                "ds_read_b64 v[%d:%d], v16 offset:%d" % (r + 2, r + 3, off + 8)]
    def readB(st, rho, b):
        r = BB[st] + 4 * b
        return ["ds_read_b128 v[%d:%d], v17 offset:%d" % (r, r + 3, 64 * rho + 512 * (7 - b))]
    def mfma(t, areg, breg):
        return "v_mfma_f32_16x16x32_bf16 v[%d:%d], v[%d:%d], v[%d:%d], v[%d:%d]" % (ACC + 4 * t, ACC + 4 * t + 3, areg, areg + 3, breg, breg + 3, ACC + 4 * t, ACC + 4 * t + 3)
    for b in range(8):
        for l in readB(0, 0, b): a(l)
    for aa in range(8):
        for l in readA(0, 0, aa): a(l)
    for rho in range(4):
        st = rho & 1
        nxt = []
        if rho < 3:
            for b in range(8): nxt += readB(1 - st, rho + 1, b)
            for aa in range(8): nxt += readA(1 - st, rho + 1, aa)
        ms = []
        if rho == 0:
            for t in range(8): ms.append((mfma(t, 20, BB[st] + 4 * t), None))
        for aa in range(8):
            for t in range(aa, 8):
                ms.append((mfma(t, AB[st] + 4 * aa, BB[st] + 4 * (t - aa)), aa))
        a("s_waitcnt lgkmcnt(%d)" % (15 if rho == 0 else 0))
        ni = 0; waited = -1
        for i, (m, aa) in enumerate(ms):
            if rho == 0 and aa is not None and aa > waited and aa <= 1:
                a("s_waitcnt lgkmcnt(%d)" % (14 if aa == 0 else 0))
                waited = aa
            a(m)
            if (rho > 0 or waited == 1) and ni < len(nxt):
                a(nxt[ni]); ni += 1
        while ni < len(nxt):
            a(nxt[ni]); ni += 1
    stamp(a, 8)
    a("v_lshl_add_u32 v18, v10, 2, v11")
    a("v_bfe_u32 v19, v10, 1, 2")
    a("v_xor_b32 v18, v18, v19")
    a("v_lshlrev_b32 v18, 4, v18")
    a("s_lshl_b32 s36, s49, 13")
    a("s_add_u32 s36, s36, %d" % PB)
    a("v_add_u32 v18, s36, v18")
    for t in range(8):
        a("ds_write_b128 v18, v[%d:%d] offset:%d" % (ACC + 4 * t, ACC + 4 * t + 3, 1024 * t))
    a("v_and_b32 v19, 31, v12")
    a("v_lshlrev_b32 v20, 1, v19")
    a("v_bfe_u32 v21, v19, 2, 2")
    a("v_xor_b32 v20, v20, v21")
    a("v_lshlrev_b32 v20, 4, v20")
    a("v_lshrrev_b32 v21, 5, v12")
    a("v_lshl_add_u32 v20, v21, 10, v20")
    a("v_lshl_add_u32 v20, v14, 14, v20")
    a("v_add_u32 v20, %d, v20" % PB)
    a("v_xor_b32 v21, 16, v20")
    a("s_waitcnt lgkmcnt(0)")
    a("s_barrier")
    Z = 56
    for g in range(2):
        for hf in range(2):
            a("ds_read_b128 v[%d:%d], v20 offset:%d" % (Z + 16 * g + 8 * hf, Z + 16 * g + 8 * hf + 3, hf * 8192 + g * 4096))
            a("ds_read_b128 v[%d:%d], v21 offset:%d" % (Z + 16 * g + 8 * hf + 4, Z + 16 * g + 8 * hf + 7, hf * 8192 + g * 4096))
    a.vmwait("ep")
    a("s_add_u32 s36, s54, 0x%x" % WS_HT)
    for g in range(2):
        X = 120 + 16 * g
        for i in range(4):
            a("v_lshlrev_b32 v%d, 16, v%d" % (X + 2 * i, XR + 4 * g + i))
            a("v_and_b32 v%d, 0xffff0000, v%d" % (X + 2 * i + 1, XR + 4 * g + i))
        for i in range(4):
            A_ = SA + 8 * g + 2 * i; B_ = SA + 16 + 8 * g + 2 * i
            a("v_pk_fma_f32 v[%d:%d], v[%d:%d], v[%d:%d], v[%d:%d]" % (X + 8 + 2 * i, X + 9 + 2 * i, X + 2 * i, X + 2 * i + 1, A_, A_ + 1, B_, B_ + 1))
        a("s_waitcnt lgkmcnt(%d)" % (4 if g == 0 else 0))
        z = Z + 16 * g
        for i in range(4):
            a("v_pk_add_f32 v[%d:%d], v[%d:%d], v[%d:%d]" % (z + 2 * i, z + 2 * i + 1, z + 2 * i, z + 2 * i + 1, z + 8 + 2 * i, z + 9 + 2 * i))
        for i in range(4):
            a("v_pk_fma_f32 v[%d:%d], v[%d:%d], v[%d:%d], v[%d:%d]" % (z + 2 * i, z + 2 * i + 1, X + 8 + 2 * i, X + 9 + 2 * i, z + 2 * i, z + 2 * i + 1, X + 2 * i, X + 2 * i + 1))
        for i in range(4):
            a("v_cvt_pk_bf16_f32 v%d, v%d, v%d" % (z + 8 + i, z + 2 * i, z + 2 * i + 1))
        a.vm("buffer_store_dwordx4 v[%d:%d], v13, %s, s36 offen offset:%d %s" % (z + 8, z + 11, WS, 2048 * g, SC), "p2st")
    stamp(a, 9)
    a("s_barrier")
    srd(a, 40, 24, 25, D * F * 2)
    a("v_lshrrev_b32 v6, 3, v2")
    a("v_and_b32 v7, 7, v2")
    a("v_bfe_u32 v8, v2, 4, 1")
    a("v_lshlrev_b32 v8, 2, v8")
    a("v_xor_b32 v7, v7, v8")
    a("v_mul_u32_u24 v6, 896, v6")
    a("v_lshl_add_u32 v6, v7, 4, v6")
    a("s_mul_i32 s54, s49, %d" % (448 * 896))
    a("s_lshl_b32 s55, s62, 7")
    a("s_add_u32 s54, s54, s55")
    a("s_mul_i32 s55, s49, 28672")
    def w2dma(i, tag):
        a("s_add_u32 m0, s55, %d" % (i * 1024))
        a.vm("buffer_load_dwordx4 v6, s[40:43], s54 offen lds", tag)
        a("s_add_u32 s54, s54, %d" % (8 * 896))
    a.vmwait("p2st")
    a("s_barrier")
    a("s_add_u32 s52, s3, %d" % F2_IDX)
    publish(a, 52)
    stamp(a, 10)
    for i in range(28): w2dma(i, "w2a")
    if cfg.upto == 2:
        a("s_branch L_DONE")
    a("v_bfe_u32 v7, v2, 2, 2")
    a("v_lshrrev_b32 v8, 5, v2")
    a("v_lshl_add_u32 v8, v8, 2, v7")
    a("v_lshlrev_b32 v8, 7, v8")
    a("v_bfe_u32 v7, v2, 3, 1")
    a("v_lshl_add_u32 v8, v7, 6, v8")
    a("v_bfe_u32 v7, v2, 4, 1")
    a("v_lshl_add_u32 v8, v7, 5, v8")
    a("v_and_b32 v7, 3, v2")
    a("v_lshl_add_u32 v8, v7, 3, v8")
    a("v_add_u32 v9, s55, v8")
    a("v_xor_b32 v7, 64, v9")
    def w2tr(abase):
        for ks in range(14):
            for dt in range(2):
                r = abase + (ks * 2 + dt) * 4
                b = 9 if dt == 0 else 7
                a("ds_read_b64_tr_b16 a[%d:%d], v%d offset:%d" % (r, r + 1, b, ks * 2048))
                a("ds_read_b64_tr_b16 a[%d:%d], v%d offset:%d" % (r + 2, r + 3, b, ks * 2048 + 1024))
    a.vmwait("w2a")
    w2tr(112)
    a("v_lshlrev_b32 v12, 6, v2")
    a("v_add_u32 v13, %d, v12" % (64 * 64))
    a("v_add_u32 v14, %d, v12" % (128 * 64))
    a("v_min_u32 v15, 31, v2")
    a("v_lshlrev_b32 v15, 6, v15")
    a("v_add_u32 v15, %d, v15" % (192 * 64))
    a("s_mov_b32 s53, 0x%x" % (WS_FLAG + F2_IDX * 64))
    a("s_waitcnt lgkmcnt(0)")
    poll(a, [12, 13, 14, 15], 53)
    stamp(a, 11)
    a("v_lshrrev_b32 v12, 4, v2")
    a("v_and_b32 v13, 15, v2")
    a("v_lshlrev_b32 v14, 2, v12")
    a("v_xor_b32 v13, v13, v14")
    a("v_lshlrev_b32 v12, 12, v12")
    a("v_lshl_add_u32 v12, v13, 4, v12")
    a("s_lshl_b32 s52, s49, 14")
    a("s_lshl_b32 s53, s59, 8")
    a("s_add_u32 s52, s52, s53")
    a("s_add_u32 s52, s52, 0x%x" % WS_HT)
    a("s_lshl_b32 s53, s49, 10")
    for ks in range(28):
        a("s_add_u32 m0, s53, %d" % (ks * 4096))
        a.vm("buffer_load_dwordx4 v12, %s, s52 offen %s lds" % (WS, SL), "h%d" % ks)
        if ks != 27: a("s_add_u32 s52, s52, %d" % (16 * 4096))
    lab = a.label("EPO")
    a("s_or_b32 s52, s3, s49")
    a("s_cmp_lg_u32 s52, 0")
    a("s_cbranch_scc1 %s" % lab)
    a("s_mov_b32 s52, %d" % E_IDX)
    publish(a, 52)
    a(lab + ":")
    for i in range(4):
        a("s_add_u32 s52, s49, %d" % i)
        a("s_and_b32 s52, s52, 3")
        a("s_lshl_b32 s52, s52, 6")
        a("v_xor_b32 v%d, s52, v5" % (16 + i))
    ACC3 = 128
    for i in range(64): a("v_mov_b32 v%d, 0" % (ACC3 + i))
    HB = [192, 208]
    for i in range(4): a("v_mov_b32 v%d, 0" % (224 + i))
    a("v_mov_b32 v228, 0x3f803f80")
    def hreads(ks):
        st = ks & 1
        out = []
        for i in range(4):
            r = HB[st] + 4 * i
            out.append("ds_read_b64_tr_b16 v[%d:%d], v%d offset:%d" % (r, r + 1, 16 + i, (ks & 15) * 4096))
            out.append("ds_read_b64_tr_b16 v[%d:%d], v%d offset:%d" % (r + 2, r + 3, 16 + i, (ks & 15) * 4096 + 2048))
        return out
    sync = {0: 1, 2: 5, 6: 11, 12: 19, 20: 27}
    a.vmwait("h1"); a("s_barrier")
    stamp(a, 12)
    for l in hreads(0): a(l)
    for ks in range(28):
        st = ks & 1
        nxt = []
        if ks + 1 < 28:
            if ks + 1 in sync:
                a.vmwait("h%d" % sync[ks + 1]); a("s_barrier")
            if ks + 1 == 16:
                pass
            nxt = hreads(ks + 1)
        for i in range(4):
            a("s_waitcnt lgkmcnt(%d)" % (6 if (nxt or True) and ks + 1 < 28 else 6 - 2 * i))
            a("v_mfma_f32_32x32x16_bf16 v[%d:%d], a[%d:%d], v[%d:%d], v[%d:%d]" % (ACC3 + 16 * i, ACC3 + 16 * i + 15, 4 * ks, 4 * ks + 3, HB[st] + 4 * i, HB[st] + 4 * i + 3, ACC3 + 16 * i, ACC3 + 16 * i + 15))
            if nxt:
                if ks + 1 == 16 : a("v_add_u32 v%d, 0x10000, v%d" % (16 + i, 16 + i))
                a(nxt[2 * i]); a(nxt[2 * i + 1])
            if i < 2:
                for q in range(2):
                    o = HB[st] + 2 * i + q
                    a("v_dot2_f32_bf16 v%d, v%d, v228, v%d" % (224 + q, o, 224 + q))
                    a("v_dot2_f32_bf16 v%d, v%d, v%d, v%d" % (226 + q, o, o, 226 + q))
    stamp(a, 13)
    a("v_add_f32 v224, v224, v225")
    a("v_add_f32 v226, v226, v227")
    a("v_mov_b32 v225, v224")
    a("v_mov_b32 v227, v226")
    a("v_permlane32_swap_b32 v224, v225")
    a("v_permlane32_swap_b32 v226, v227")
    a("v_add_f32 v224, v224, v225")
    a("v_add_f32 v226, v226, v227")
    a("v_mul_f32 v224, 0x3b124925, v224")
    a("v_mul_f32 v226, 0x3b124925, v226")
    a("v_fma_f32 v226, -v224, v224, v226")
    a("v_max_f32 v226, 0, v226")
    a("v_add_f32 v226, 0x3727c5ac, v226")
    a("v_rsq_f32 v226, v226")
    lab = a.label("NOST2")
    a("s_cmp_lg_u32 s60, 0")
    a("s_cbranch_scc1 %s" % lab)
    a("s_lshl_b32 s52, s59, 2")
    a("s_add_u32 s52, s52, s49")
    a("s_lshl_b32 s52, s52, 7")
    a("s_add_u32 s52, s52, 0x%x" % WS_ST2)
    a("v_and_b32 v12, 31, v2")
    a("v_lshlrev_b32 v12, 2, v12")
    a("s_mov_b32 exec_hi, 0")
    a("buffer_store_dword v226, v12, %s, s52 offen %s" % (WS, SC))
    a("s_mov_b64 exec, -1")
    a(lab + ":")
    a("s_lshl_b32 s53, s60, 2")
    a("s_add_u32 s53, s53, s49")
    a("s_lshl_b32 s53, s53, 11")
    for i in range(4):
        a("s_add_u32 s52, s49, %d" % i)
        a("s_and_b32 s52, s52, 3")
        a("s_lshl_b32 s50, s59, 2")
        a("s_add_u32 s52, s52, s50")
        a("s_mul_i32 s52, s52, %d" % (112 * 1024))
        a("s_add_u32 s52, s52, s53")
        a("s_add_u32 s52, s52, 0x%x" % WS_H1F)
        acc = ACC3 + 16 * i
        o = 20 + 8 * i
        for q in range(8):
            a("v_cvt_pk_bf16_f32 v%d, v%d, v%d" % (o + q, acc + 2 * q, acc + 2 * q + 1))
        for q in range(8):
            a("v_pk_max_i16 v%d, v%d, 0" % (o + q, o + q))
        a.vm("buffer_store_dwordx4 v[%d:%d], v4, %s, s52 offen %s" % (o, o + 3, WS, SC), "p3st")
        a.vm("buffer_store_dwordx4 v[%d:%d], v4, %s, s52 offen offset:1024 %s" % (o + 4, o + 7, WS, SC), "p3st")
    a("s_barrier")
    a("v_lshrrev_b32 v12, 3, v2")
    a("v_and_b32 v13, 7, v2")
    a("v_bfe_u32 v14, v2, 4, 1")
    a("v_lshlrev_b32 v14, 2, v14")
    a("v_xor_b32 v13, v13, v14")
    a("v_lshlrev_b32 v12, 12, v12")
    a("v_lshl_add_u32 v12, v13, 4, v12")
    a("s_lshl_b32 s52, s62, 6")
    a("s_lshl_b32 s53, s49, 4")
    a("s_add_u32 s52, s52, s53")
    a("s_lshl_b32 s52, s52, 12")
    a("s_lshl_b32 s53, s61, 7")
    a("s_add_u32 s52, s52, s53")
    a("s_add_u32 s52, s52, 0x%x" % WS_HT)
    a("s_lshl_b32 s53, s49, 11")
    a("s_add_u32 s53, s53, %d" % R1)
    for i in range(2):
        a("s_add_u32 m0, s53, %d" % (i * 1024))
        a.vm("buffer_load_dwordx4 v12, %s, s52 offen %s lds" % (WS, SL), "hres")
        if i == 0: a("s_add_u32 s52, s52, %d" % (8 * 4096))
    a.vmwait("p3st")
    a("s_barrier")
    a("s_lshl_b32 s52, s59, 4")
    a("s_add_u32 s52, s52, s60")
    a("s_add_u32 s52, s52, %d" % F3_IDX)
    publish(a, 52)
    stamp(a, 14)
    for i in range(28): w2dma(i, "w2b")
    if cfg.upto == 3:
        a("s_branch L_DONE")
    a.vmwait("w2b")
    w2tr(0)
    a.vmwait("hres")
    a("v_min_u32 v12, 13, v2")
    a("v_lshlrev_b32 v12, 6, v12")
    a("s_lshr_b32 s52, s61, 1")
    a("s_lshl_b32 s52, s52, 10")
    a("s_add_u32 s53, s52, 0x%x" % (WS_FLAG + F3_IDX * 64))
    a("s_waitcnt lgkmcnt(0)")
    poll(a, [12], 53)
    stamp(a, 15)
    a("s_mul_i32 s52, s61, %d" % (2 * 112 * 1024))
    a("s_mul_i32 s53, s49, %d" % (28 * 1024))
    a("s_add_u32 s52, s52, s53")
    a("s_add_u32 s52, s52, 0x%x" % WS_H1F)
    a("s_add_u32 s53, s52, %d" % (112 * 1024))
    RING = 20; RB = 80
    def hloads(ks):
        r = RB + (ks % RING) * 8
        off = (ks % 4) * 1024
        a.vm("buffer_load_dwordx4 v[%d:%d], v4, %s, s52 offen offset:%d %s" % (r, r + 3, WS, off, SL), "H%d" % ks)
        a.vm("buffer_load_dwordx4 v[%d:%d], v4, %s, s53 offen offset:%d %s" % (r + 4, r + 7, WS, off, SL), "H%d" % ks)
        if ks % 4 == 3:
            a("s_add_u32 s52, s52, 4096"); a("s_add_u32 s53, s53, 4096")
    for ks in range(RING): hloads(ks)
    a("s_and_b32 s50, s49, 1")
    a("s_lshr_b32 s51, s49, 1")
    a("s_lshl_b32 s36, s61, 1")
    a("s_add_u32 s36, s36, s50")
    a("s_lshl_b32 s37, s36, 7")
    a("s_add_u32 s37, s37, 0x%x" % WS_ST2)
    a("v_and_b32 v12, 31, v2")
    a("v_lshlrev_b32 v13, 2, v12")
    a.vm("buffer_load_dword v248, v13, %s, s37 offen %s" % (WS, SL), "rstd")
    ACC4 = 16
    for i in range(64): a("v_mov_b32 v%d, 0" % (ACC4 + i))
    for ks in range(28):
        a.vmwait("H%d" % ks)
        r = RB + (ks % RING) * 8
        ab = (112 + ks * 8) if ks < 14 else ((ks - 14) * 8)
        for dt in range(2):
            for st in range(2):
                t = dt * 2 + st
                a("v_mfma_f32_32x32x16_bf16 v[%d:%d], a[%d:%d], v[%d:%d], v[%d:%d]" % (ACC4 + 16 * t, ACC4 + 16 * t + 15, ab + 4 * dt, ab + 4 * dt + 3, r + 4 * st, r + 4 * st + 3, ACC4 + 16 * t, ACC4 + 16 * t + 15))
        if ks + RING < 28: hloads(ks + RING)
    a("s_lshl_b32 s52, s49, 14")
    a("v_add_u32 v14, s52, v4")
    for t in range(4):
        for q in range(4):
            a("ds_write_b128 v14, v[%d:%d] offset:%d" % (ACC4 + 16 * t + 4 * q, ACC4 + 16 * t + 4 * q + 3, t * 4096 + q * 1024))
    a("s_lshl_b32 s52, s50, 6")
    a("v_xor_b32 v15, s52, v8")
    a("s_lshl_b32 s52, s51, 12")
    a("s_add_u32 s52, s52, %d" % R1)
    a("v_add_u32 v15, s52, v15")
    a("s_waitcnt lgkmcnt(0)")
    a("s_barrier")
    a("s_lshl_b32 s52, s49, 12")
    a("v_add_u32 v14, s52, v4")
    T = 80
    for sw in range(4):
        for q in range(4):
            a("ds_read_b128 v[%d:%d], v14 offset:%d" % (T + 16 * sw + 4 * q, T + 16 * sw + 4 * q + 3, sw * 16384 + q * 1024))
    for j4 in range(4):
        a("ds_read_b64_tr_b16 v[%d:%d], v15 offset:%d" % (240 + 2 * j4, 241 + 2 * j4, j4 * 1024))
    a("s_waitcnt lgkmcnt(12)")
    for i in range(0, 16, 2):
        a("v_pk_add_f32 v[%d:%d], v[%d:%d], v[%d:%d]" % (T + i, T + i + 1, T + i, T + i + 1, T + 16 + i, T + 17 + i))
    a("s_waitcnt lgkmcnt(4)")
    for i in range(0, 16, 2):
        a("v_pk_add_f32 v[%d:%d], v[%d:%d], v[%d:%d]" % (T + 32 + i, T + 33 + i, T + 32 + i, T + 33 + i, T + 48 + i, T + 49 + i))
    for i in range(0, 16, 2):
        a("v_pk_add_f32 v[%d:%d], v[%d:%d], v[%d:%d]" % (T + i, T + i + 1, T + i, T + i + 1, T + 32 + i, T + 33 + i))
    a.vmwait("rstd")
    a("s_waitcnt lgkmcnt(0)")
    for dw in range(8):
        hx = 160 + 2 * dw
        a("v_lshlrev_b32 v%d, 16, v%d" % (hx, 240 + dw))
        a("v_and_b32 v%d, 0xffff0000, v%d" % (hx + 1, 240 + dw))
        a("v_pk_fma_f32 v[%d:%d], v[%d:%d], v[248:249], v[%d:%d] op_sel_hi:[1,0,1]" % (hx, hx + 1, T + 2 * dw, T + 2 * dw + 1, hx, hx + 1))
        a("v_cvt_pk_bf16_f32 v%d, v%d, v%d" % (180 + dw, hx, hx + 1))
    for jp in range(2):
        A0 = 180 + 4 * jp
        a("v_permlane32_swap_b32 v%d, v%d" % (A0, A0 + 2))
        a("v_permlane32_swap_b32 v%d, v%d" % (A0 + 1, A0 + 3))
    srd(a, 36 + 4, 26, 27, NB_SD)
    a("v_mul_u32_u24 v7, 896, v12")
    a("v_lshrrev_b32 v9, 5, v2")
    a("v_lshl_add_u32 v7, v9, 4, v7")
    a("s_mul_i32 s52, s36, %d" % (32 * 896))
    a("s_lshl_b32 s53, s62, 1")
    a("s_add_u32 s53, s53, s51")
    a("s_lshl_b32 s53, s53, 6")
    a("s_add_u32 s52, s52, s53")
    a("buffer_store_dwordx4 v[180:183], v7, s[40:43], s52 offen")
    a("buffer_store_dwordx4 v[184:187], v7, s[40:43], s52 offen offset:32")
    a("L_DONE:")
    if common.STAMPS:
        fstamp_flush(a)
    a("L_END:")
    a("s_endpgm")
    gen_stats(a)
    return a.lines, dict(vgpr=256, sgpr=102, lds=LDS_TOTAL, grid=256, agpr=256)

def build(out, cfg=Cfg):
    lines, info = gen_fused(cfg)
    lines = fix_hazards(lines, verbose=True)
    txt = ["; generated by a hand-written generator (gen/fused.py)",
           "; @launch grid=(%d,1,1) block=(256,1,1) lds=%d" % (info["grid"], info["lds"]),
           '.amdgcn_target "amdgcn-amd-amdhsa--gfx950"', ".text"]
    txt += lines
    txt.append('.section .rodata,"a"')
    txt += kernel_desc(KN, info["vgpr"], info["sgpr"], accum=256, agpr=info["agpr"])
    open(out, "w").write("\n".join(txt) + "\n")

if __name__ == "__main__":
    import sys, os
    common.STAMPS = int(os.environ.get("STAMPS", "0"))
    out = sys.argv[1]
    for kv in sys.argv[2:]:
        k, v = kv.split("=")
        setattr(Cfg, k, int(v))
    build(out)
```

```python
import re

TRANS = ("v_exp_", "v_log_", "v_rcp_", "v_rsq_", "v_sqrt_", "v_sin_", "v_cos_")

def parse_regs(tok):
    tok = tok.strip()
    if tok.startswith("-"): tok = tok[1:]
    if tok.startswith("abs(") and tok.endswith(")"): tok = tok[4:-1]
    if tok.startswith("|") and tok.endswith("|"): tok = tok[1:-1]
    m = re.fullmatch(r"([vas])(\d+)", tok)
    if m: return [(m.group(1), int(m.group(2)))]
    m = re.fullmatch(r"([vas])\[(\d+):(\d+)\]", tok)
    if m: return [(m.group(1), i) for i in range(int(m.group(2)), int(m.group(3)) + 1)]
    if tok == "vcc": return [("s", "vcc")]
    if tok in ("vcc_lo", "vcc_hi"): return [("s", "vcc")]
    if tok == "exec": return [("s", "exec")]
    if tok == "m0": return [("s", "m0")]
    return []

class Ins:
    __slots__ = ("text", "op", "ops", "mods", "kind", "wr", "rd", "passes", "srcc", "srcab", "is_label", "note")
    def __init__(self, text):
        self.text = text
        t = text.split(";")[0].strip()
        self.is_label = t.endswith(":")
        self.kind = None; self.wr = set(); self.rd = set(); self.passes = 0; self.srcc = set(); self.srcab = set()
        self.op = ""; self.ops = []; self.mods = ""
        if not t or self.is_label or t.startswith("."):
            return
        parts = t.split(None, 1)
        self.op = parts[0]
        rest = parts[1] if len(parts) > 1 else ""
        ops = []; cur = ""; depth = 0
        for ch in rest:
            if ch in "[(": depth += 1
            if ch in "])": depth -= 1
            if ch == "," and depth == 0:
                ops.append(cur.strip()); cur = ""
            else: cur += ch
        if cur.strip(): ops.append(cur.strip())
        if ops:
            last = ops[-1].split(None, 1)
            ops[-1] = last[0]
            self.mods = last[1] if len(last) > 1 else ""
        self.ops = ops
        self.classify()
    def R(self, i):
        return set(parse_regs(self.ops[i])) if i < len(self.ops) else set()
    def allR(self, start):
        s = set()
        for i in range(start, len(self.ops)): s |= self.R(i)
        return s
    def classify(self):
        op = self.op
        if op.startswith("v_mfma"):
            self.kind = "mfma"
            self.passes = 8 if "32x32x16" in op or "32x32x8" in op else 4
            if "32x32x2_f32" in op: self.passes = 16
            if "16x16x4_f32" in op: self.passes = 8
            self.wr = self.R(0); self.srcab = self.R(1) | self.R(2); self.srcc = self.R(3)
            self.rd = self.srcab | self.srcc
        elif op.startswith("v_"):
            self.kind = "valu"
            if op.startswith("v_cmp"):
                self.wr = self.R(0); self.rd = self.allR(1)
                if op.startswith("v_cmpx"): self.wr |= {("s", "exec")}
            elif op.startswith("v_readfirstlane") or op.startswith("v_readlane"):
                self.wr = self.R(0); self.rd = self.allR(1)
            elif op.startswith("v_permlane") and "swap" in op:
                self.wr = self.R(0) | self.R(1); self.rd = self.R(0) | self.R(1)
            elif op.startswith(("v_add_co", "v_sub_co", "v_subrev_co", "v_addc_co", "v_subb_co", "v_mad_u64", "v_div_scale")):
                self.wr = self.R(0) | self.R(1); self.rd = self.allR(2)
            else:
                self.wr = self.R(0); self.rd = self.allR(1)
                if op.startswith(("v_fmac", "v_mac", "v_dot2c", "v_pk_fmac", "v_writelane")) : self.rd |= self.R(0)
                if op.startswith("v_cndmask") and len(self.ops) == 3: self.rd |= {("s", "vcc")}
                if "_dpp" in op or "_sdwa" in op or "row_" in self.mods or "quad_perm" in self.mods or "wave_" in self.mods:
                    self.rd |= self.R(0)
        elif op.startswith(("buffer_load", "global_load", "flat_load", "scratch_load")):
            self.kind = "vmem"
            if "lds" in self.mods.split() or "_lds_" in op:
                self.rd = self.allR(0) | {("s", "m0")}
                self.kind = "vmem_lds"
            else:
                self.wr = self.R(0); self.rd = self.allR(1)
        elif op.startswith(("buffer_store", "global_store", "flat_store", "buffer_atomic", "global_atomic")):
            self.kind = "vmem_st"
            self.rd = self.allR(0)
            if "atomic" in op and "sc0" in self.mods.split():
                self.wr = self.R(0)
        elif op.startswith("ds_"):
            self.kind = "ds"
            if op.startswith(("ds_read", "ds_bpermute", "ds_permute", "ds_swizzle")):
                self.wr = self.R(0); self.rd = self.allR(1)
            else:
                self.rd = self.allR(0)
        elif op.startswith("s_"):
            self.kind = "salu"
            if op in ("s_waitcnt", "s_barrier", "s_nop", "s_endpgm", "s_sleep", "s_setprio", "s_branch") or op.startswith("s_cbranch"):
                pass
            elif op.startswith("s_cmp") or op.startswith("s_bitcmp"):
                self.rd = self.allR(0)
            elif op.startswith(("s_load", "s_buffer_load", "s_memtime", "s_memrealtime", "s_getreg")):
                self.wr = self.R(0); self.rd = self.allR(1)
            else:
                self.wr = self.R(0); self.rd = self.allR(1)
                if "saveexec" in op: self.wr |= {("s", "exec")}; self.rd |= {("s", "exec")}
        else:
            self.kind = "other"
    def nstates(self):
        if self.op == "s_nop":
            return int(self.ops[0], 0) + 1
        if self.kind is None: return 0
        return 1
    def is_wide_store(self):
        return self.kind == "vmem_st" and ("x3" in self.op or "x4" in self.op)
    def store_data(self):
        if self.op.startswith("buffer_store"): return self.R(0)
        if self.op.startswith("global_store"): return self.R(1)
        return set()

def need(prod, cons):
    n = 0
    pv = {r for r in prod.wr if r[0] in "va"}
    ps = {r for r in prod.wr if r[0] == "s"}
    if prod.kind == "valu":
        if cons.kind == "mfma" and pv & cons.rd: n = max(n, 2)
        if cons.kind == "valu":
            if ps & cons.rd:
                n = max(n, 2)
                if cons.op.startswith(("v_readlane", "v_writelane")) : n = max(n, 4)
            if pv & cons.rd:
                if cons.op.startswith(("v_readfirstlane", "v_readlane")): n = max(n, 1)
                if "_dpp" in cons.op or "row_" in cons.mods or "quad_perm" in cons.mods or "wave_" in cons.mods: n = max(n, 2)
                if cons.op.startswith("v_permlane"): n = max(n, 2)
                if prod.op.startswith(TRANS) and not cons.op.startswith(TRANS): n = max(n, 1)
                if prod.op.startswith(TRANS): n = max(n, 1)
                if ("sdwa" in prod.op and "dst_sel:DWORD" not in prod.mods) or ("op_sel:" in prod.mods and not prod.op.startswith("v_pk")): n = max(n, 1)
            if prod.op.startswith("v_dot"):
                if pv & (cons.rd | cons.wr):
                    if cons.op == prod.op:
                        ab = cons.R(1) | cons.R(2)
                        if pv & ab: n = max(n, 3)
                    else: n = max(n, 3)
            if ("s", "exec") in ps and cons.op.startswith("v_permlane"): n = max(n, 4)
        if cons.kind in ("vmem", "vmem_st", "vmem_lds") and ps & cons.rd: n = max(n, 5)
        if prod.op.startswith("v_dot") and cons.kind != "valu" and pv & (cons.rd | cons.wr): n = max(n, 3)
        if cons.kind == "mfma" and ("s", "exec") in ps: n = max(n, 4)
    if prod.kind == "mfma":
        P = prod.passes
        tab_c = {2: 4, 4: 6, 8: 10, 16: 18}[P]
        tab_ab = {2: 5, 4: 8, 8: 12, 16: 20}[P]
        if cons.kind == "mfma":
            if pv & cons.srcab: n = max(n, tab_ab)
            if pv & cons.srcc:
                if cons.srcc == prod.wr and cons.passes == prod.passes: pass
                else: n = max(n, tab_c)
            if (pv & cons.wr) and not (pv & cons.srcc): n = max(n, tab_c)
        elif cons.kind in ("valu", "vmem", "vmem_st", "vmem_lds", "ds"):
            if pv & (cons.rd | cons.wr): n = max(n, tab_ab)
        if cons.kind == "valu" and prod.srcc & cons.wr:
            n = max(n, {2: 1, 4: 3, 8: 7, 16: 15}[P])
    if prod.is_wide_store():
        d = prod.store_data()
        if d & cons.wr:
            n = max(n, 2 if cons.kind == "valu" else 1)
    if prod.kind == "salu" and ("s", "m0") in ps and cons.kind == "vmem_lds": n = max(n, 1)
    return n

WINDOW = 24
def fix_hazards(lines, verbose=False):
    ins = []
    for l in lines:
        for sub in l.split("\n"):
            ins.append(Ins(sub))
    out = []
    added = 0
    for cur in ins:
        if cur.kind is not None and cur.op != "s_nop":
            dist = 0; req = 0
            for prev in reversed(out):
                if prev.kind is None: continue
                k = need(prev, cur)
                if k - dist > req: req = k - dist
                dist += prev.nstates()
                if dist >= WINDOW: break
            if req > 0:
                added += req
                while req > 0:
                    k = min(req, 16)
                    out.append(Ins("    s_nop %d" % (k - 1)))
                    req -= k
        out.append(cur)
    labels = {}
    for i, x in enumerate(out):
        if x.is_label: labels[x.text.split(";")[0].strip()[:-1]] = i
    problems = []
    for i, x in enumerate(out):
        if x.kind == "salu" and (x.op == "s_branch" or x.op.startswith("s_cbranch")):
            tgt = x.ops[0]
            if tgt not in labels: continue
            j = labels[tgt]
            tail = [p for p in out[max(0, i - 60):i + 1] if p.kind is not None]
            head = [p for p in out[j:j + 60] if p.kind is not None]
            d0 = 0
            for hi, c in enumerate(head):
                dist = d0
                for p in reversed(tail):
                    k = need(p, c)
                    if k > dist:
                        problems.append("branch %s -> %s: '%s' needs %d states before '%s' (has %d)" % (x.text.strip(), tgt, p.text.strip(), k, c.text.strip(), dist))
                    dist += p.nstates()
                    if dist >= WINDOW: break
                d0 += c.nstates()
                if d0 >= WINDOW: break
                if c.op == "s_branch" or c.op == "s_endpgm": break
    if problems:
        raise RuntimeError("hazards across branches:\n" + "\n".join(problems))
    if verbose: print("hazard pass: added %d wait states" % added)
    return [x.text for x in out]

class Asm:
    def __init__(self):
        self.lines = []
        self.uid = 0
    def __call__(self, s, *a):
        if a: s = s % a
        for l in s.split("\n"):
            l = l.rstrip()
            if not l.strip(): continue
            st = l.strip()
            if st.endswith(":") or st.startswith(".") or st.startswith(";"):
                self.lines.append(st)
            else:
                self.lines.append("    " + st)
    GUID = [0]
    def label(self, base="L"):
        Asm.GUID[0] += 1
        return "%s_%d" % (base, Asm.GUID[0])
    def vm(self, line, tag=None):
        self(line)
        if not hasattr(self, "vmlist"): self.vmlist = []
        self.vmlist.append(tag)
    def vmwait(self, tag):
        idx = max(i for i, t in enumerate(self.vmlist) if t == tag)
        n = len(self.vmlist) - 1 - idx
        self("s_waitcnt vmcnt(%d)" % min(n, 63))
        assert n <= 63, "vmcnt overflow %d" % n
    def lk(self, line, tag=None):
        self(line)
        if not hasattr(self, "lklist"): self.lklist = []
        self.lklist.append(tag)
    def lkwait(self, tag):
        idx = max(i for i, t in enumerate(self.lklist) if t == tag)
        n = len(self.lklist) - 1 - idx
        self("s_waitcnt lgkmcnt(%d)" % min(n, 15))
    def vmdrain(self):
        self("s_waitcnt vmcnt(0)")
    def vmcount(self):
        return len(getattr(self, "vmlist", []))
    def comment(self, s):
        self.lines.append("    ; " + s)

def vr(b, n=1):
    return "v%d" % b if n == 1 else "v[%d:%d]" % (b, b + n - 1)
def ar(b, n=1):
    return "a%d" % b if n == 1 else "a[%d:%d]" % (b, b + n - 1)
def sr(b, n=1):
    return "s%d" % b if n == 1 else "s[%d:%d]" % (b, b + n - 1)

def kernel_header(name):
    return [".globl %s" % name, ".p2align 8", ".type %s,@function" % name, "%s:" % name]

def kernel_desc(name, vgpr, sgpr, accum=None, agpr=0):
    if accum is None: accum = (vgpr + 3) // 4 * 4
    nfv = accum + agpr if agpr else vgpr
    return [".p2align 6", ".amdhsa_kernel %s" % name,
            "  .amdhsa_next_free_vgpr %d" % nfv,
            "  .amdhsa_next_free_sgpr %d" % sgpr,
            "  .amdhsa_accum_offset %d" % accum,
            "  .amdhsa_group_segment_fixed_size 0",
            "  .amdhsa_kernarg_size 96",
            "  .amdhsa_user_sgpr_count 2",
            "  .amdhsa_user_sgpr_kernarg_segment_ptr 1",
            "  .amdhsa_system_sgpr_workgroup_id_x 1",
            ".end_amdhsa_kernel"]
```

```python
from common import *
import common

KN = "sequential_preLN__ssm_conv_h3__dense_activation_relu__prompt_kernel"
R1 = 114688
LDS_TOTAL = R1 + 16384
HC = 0; HC_CH = 4 * 4160; UR = 2 * HC_CH; UR_CH = 4608; PB = UR + 2 * UR_CH
SC = "sc1"
SL = ""
S_T, S_WAVE = 48, 49
WS = "s[32:35]"

class Cfg:
    ldsc = 0
    fine = 0
    npre = 10
    upto = 4

def fstamp_flush(a):
    if not common.STAMPS: return
    lab = a.label("STMP")
    a("s_waitcnt vmcnt(0)")
    a("s_memrealtime s[100:101]")
    a("s_waitcnt lgkmcnt(0)")
    a("s_cmp_lg_u32 s49, 0")
    a("s_cbranch_scc1 %s" % lab)
    if common.STAMPS == 2:
        a("s_cmp_lg_u32 s2, 100")
        a("s_cbranch_scc1 %s" % lab)
        a("s_mov_b64 exec, 1")
        a("v_mov_b32 v250, 0")
        for i in range(1, 16):
            a("s_sub_u32 s96, s%d, s64" % (64 + 2 * i))
            a("v_mov_b32 v251, s96")
            a("global_store_dword v250, v251, s[28:29] offset:%d" % (4 * (i - 1)))
        a("s_sub_u32 s96, s100, s64")
        a("v_mov_b32 v251, s96")
        a("global_store_dword v250, v251, s[28:29] offset:60")
        a(lab + ":")
        return
    a("s_lshl_b32 s96, s2, 7")
    a("s_add_u32 s96, s96, 0x%x" % WS_STAMP)
    a("s_add_u32 s98, s30, s96")
    a("s_addc_u32 s99, s31, 0")
    a("s_mov_b64 exec, 1")
    a("v_mov_b32 v250, 0")
    for i in range(16):
        a("v_mov_b32 v251, s%d" % (64 + 2 * i))
        a("global_store_dword v250, v251, s[98:99] offset:%d" % (4 * i))
    a("v_mov_b32 v251, s100")
    a("global_store_dword v250, v251, s[98:99] offset:64")
    a(lab + ":")

def publish(a, idx_sgpr):
    lab = a.label("PUB")
    a("s_cmp_lg_u32 s%d, 0" % S_WAVE)
    a("s_cbranch_scc1 %s" % lab)
    a("s_lshl_b32 s50, s%d, 6" % idx_sgpr)
    a("s_add_u32 s50, s50, 0x%x" % WS_FLAG)
    a("v_mov_b32 v250, s%d" % S_T)
    a("v_mov_b32 v251, 0")
    a("s_mov_b64 exec, 1")
    a("buffer_store_dword v250, v251, %s, s50 offen sc0 sc1" % WS)
    a("s_mov_b64 exec, -1")
    a(lab + ":")

def poll(a, vaddrs, soff_sgpr):
    lp = a.label("POLL"); done = a.label("PDONE")
    a("s_cmp_lg_u32 s%d, 0" % S_WAVE)
    a("s_cbranch_scc1 %s" % done)
    a("s_mov_b32 s51, 0")
    a(lp + ":")
    for i, v in enumerate(vaddrs):
        a("buffer_load_dword v%d, v%d, %s, s%d offen sc0 sc1" % (246 + i, v, WS, soff_sgpr))
    a("s_waitcnt vmcnt(0)")
    for i in range(len(vaddrs)):
        a("v_xor_b32 v%d, s%d, v%d" % (246 + i, S_T, 246 + i))
    for i in range(1, len(vaddrs)):
        a("v_or_b32 v246, v246, v%d" % (246 + i))
    a("v_cmp_ne_u32 vcc, 0, v246")
    a("s_nop 4")
    a("s_cmp_eq_u64 vcc, 0")
    a("s_cbranch_scc1 %s" % done)
    a("s_add_u32 s51, s51, 1")
    a("s_cmp_lt_u32 s51, 0x40000")
    a("s_cbranch_scc1 %s" % lp)
    a(done + ":")
    a("s_barrier")

def gen_stats(a):
    a("L_STATS:")
    a("v_and_b32 v1, 7, v0")
    a("v_lshrrev_b32 v2, 3, v0")
    a("s_mul_i32 s52, s2, %d" % (64 * 896))
    a("v_lshrrev_b32 v3, 3, v2")
    a("v_and_b32 v4, 7, v2")
    a("v_lshl_add_u32 v5, v3, 4, v4")
    a("v_mul_u32_u24 v6, 896, v5")
    a("v_lshl_add_u32 v6, v1, 4, v6")
    a("v_add_u32 v6, s52, v6")
    a("v_add_u32 v7, %d, v6" % (8 * 896))
    srd(a, 36, 8, 9, NB_SD)
    for p in range(2):
        for i in range(7):
            r = 16 + (p * 7 + i) * 4
            a("buffer_load_dwordx4 v[%d:%d], v%d, s[36:39], 0 offen offset:%d" % (r, r + 3, 6 + p, i * 128))
    a("v_mov_b32 v8, 0x3f803f80")
    for r in range(80, 88): a("v_mov_b32 v%d, 0" % r)
    for p in range(2):
        for i in range(7):
            a("s_waitcnt vmcnt(%d)" % (13 - (p * 7 + i)))
            for c in range(4):
                r = 16 + (p * 7 + i) * 4 + c
                o = 80 + 4 * p + 2 * (c & 1)
                a("v_dot2_f32_bf16 v%d, v%d, v8, v%d" % (o, r, o))
                a("v_dot2_f32_bf16 v%d, v%d, v%d, v%d" % (o + 1, r, r, o + 1))
    for p in range(2):
        a("v_add_f32 v%d, v%d, v%d" % (80 + 4 * p, 80 + 4 * p, 82 + 4 * p))
        a("v_add_f32 v%d, v%d, v%d" % (81 + 4 * p, 81 + 4 * p, 83 + 4 * p))
    for mod in ("quad_perm:[1,0,3,2]", "quad_perm:[2,3,0,1]", "row_half_mirror"):
        for r in (80, 81, 84, 85):
            a("v_add_f32_dpp v%d, v%d, v%d %s row_mask:0xf bank_mask:0xf" % (r, r, r, mod))
    for p in range(2):
        s_, q_ = 80 + 4 * p, 81 + 4 * p
        a("v_mul_f32 v%d, 0x3b124925, v%d" % (s_, s_))
        a("v_mul_f32 v%d, 0x3b124925, v%d" % (q_, q_))
        a("v_fma_f32 v%d, -v%d, v%d, v%d" % (q_, s_, s_, q_))
        a("v_max_f32 v%d, 0, v%d" % (q_, q_))
        a("v_add_f32 v%d, 0x3727c5ac, v%d" % (q_, q_))
        a("v_rsq_f32 v%d, v%d" % (88 + 2 * p, q_))
        a("v_mul_f32 v%d, v%d, v%d" % (89 + 2 * p, s_, 88 + 2 * p))
        a("v_sub_f32 v%d, 0, v%d" % (89 + 2 * p, 89 + 2 * p))
    a("s_lshl_b32 s52, s2, 8")
    a("s_add_u32 s52, s52, 0x%x" % WS_STA)
    a("s_add_u32 s53, s52, 8192")
    a("v_lshlrev_b32 v9, 2, v5")
    a("v_cmp_eq_u32 vcc, 0, v1")
    a("s_and_saveexec_b64 s[54:55], vcc")
    a("buffer_store_dword v88, v9, %s, s52 offen %s" % (WS, SC))
    a("buffer_store_dword v89, v9, %s, s53 offen %s" % (WS, SC))
    a("buffer_store_dword v90, v9, %s, s52 offen offset:32 %s" % (WS, SC))
    a("buffer_store_dword v91, v9, %s, s53 offen offset:32 %s" % (WS, SC))
    a("s_mov_b64 exec, s[54:55]")
    a("s_waitcnt vmcnt(0) lgkmcnt(0)")
    token(a)
    a("s_barrier")
    a("s_add_u32 s52, s2, %d" % FS_IDX)
    publish(a, 52)
    stamp(a, 15)
    fstamp_flush(a)
    a("s_endpgm")

def token(a):
    a("s_mul_i32 s%d, s%d, 1664525" % (S_T, S_T))
    a("s_add_u32 s%d, s%d, 1013904223" % (S_T, S_T))

def gen_fused(cfg=Cfg):
    global SL
    SL = "sc1" if cfg.ldsc else ""
    a = Asm()
    for l in kernel_header(KN): a(l)
    a("s_load_dwordx16 s[8:23], s[0:1], 0")
    a("s_load_dwordx8 s[24:31], s[0:1], 64")
    stamp(a, 0)
    a("s_cmp_ge_u32 s2, 256")
    a("s_cbranch_scc1 L_END")
    a("v_lshrrev_b32 v1, 6, v0")
    a("v_and_b32 v2, 63, v0")
    a("v_readfirstlane_b32 s49, v1")
    a("s_mov_b32 s50, 0x%x" % (WS_FLAG + E_IDX * 64))
    a("s_waitcnt lgkmcnt(0)")
    if cfg.fine: stamp(a, 5)
    a("s_load_dword s48, s[30:31], s50")
    srd(a, 32, 30, 31, WS_STAMP)
    a("s_cmp_lt_u32 s2, 32")
    a("s_cbranch_scc1 L_STATS")
    a("s_sub_u32 s3, s2, 32")
    a("s_mul_i32 s56, s3, 9363")
    a("s_lshr_b32 s56, s56, 16")
    a("s_mul_i32 s57, s56, 7")
    a("s_sub_u32 s57, s3, s57")
    a("s_and_b32 s52, s3, 7")
    a("s_lshr_b32 s53, s3, 3")
    a("s_mul_i32 s58, s52, 28")
    a("s_add_u32 s58, s58, s53")
    a("s_lshr_b32 s59, s52, 1")
    a("s_lshl_b32 s59, s59, 2")
    a("s_and_b32 s54, s53, 3")
    a("s_add_u32 s59, s59, s54")
    a("s_and_b32 s60, s52, 1")
    a("s_mul_i32 s60, s60, 7")
    a("s_lshr_b32 s55, s53, 2")
    a("s_add_u32 s60, s60, s55")
    a("s_lshl_b32 s61, s52, 2")
    a("s_add_u32 s61, s61, s54")
    a("s_mov_b32 s62, s55")
    a("v_and_b32 v1, 7, v0")
    a("v_lshrrev_b32 v14, 3, v0")
    a("s_mul_i32 s52, s56, %d" % (64 * 896))
    a("s_lshl_b32 s53, s57, 7")
    a("s_add_u32 s52, s52, s53")
    a("v_mul_u32_u24 v8, %d, v14" % (2 * 896))
    a("v_lshl_add_u32 v8, v1, 4, v8")
    a("v_add_u32 v8, s52, v8")
    for j in range(5):
        d = (j - 3) * 896
        if d < 0: a("v_subrev_u32 v%d, %d, v8" % (3 + j, -d))
        else: a("v_add_u32 v%d, %d, v8" % (3 + j, d))
    a("s_lshl_b32 s53, s57, 9")
    a("v_lshl_add_u32 v9, v1, 6, s53")
    srd(a, 36, 10, 11, NB_SD)
    srd(a, 40, 14, 15, 448 * 4 * 2)
    srd(a, 44, 12, 13, NB_SD)
    srd(a, 4, 8, 9, NB_SD)
    if cfg.fine: stamp(a, 6)
    for j in range(5):
        a.vm("buffer_load_dwordx4 v[%d:%d], v%d, s[36:39], 0 offen" % (16 + 4 * j, 19 + 4 * j, 3 + j), "k")
    for j in range(4):
        a.vm("buffer_load_dwordx4 v[%d:%d], v9, s[40:43], 0 offen offset:%d" % (52 + 4 * j, 55 + 4 * j, 16 * j), "k")
    a.vm("buffer_load_dwordx4 v[36:39], v8, s[44:47], 0 offen", "v")
    a.vm("buffer_load_dwordx4 v[40:43], v8, s[44:47], 0 offen offset:896", "v")
    a.vm("buffer_load_dwordx4 v[44:47], v8, s[4:7], 0 offen", "q")
    a.vm("buffer_load_dwordx4 v[48:51], v8, s[4:7], 0 offen offset:896", "q")
    if cfg.fine: stamp(a, 7)
    srd(a, 36, 16, 17, NB_SD)
    a("v_lshlrev_b32 v10, 4, v0")
    a("s_lshl_b32 s52, s58, 13")
    a("s_add_u32 s53, s52, 4096")
    for c in range(2):
        for k in range(3):
            r = 200 + (c * 3 + k) * 4
            a.vm("buffer_load_dwordx4 v[%d:%d], v10, s[36:39], s%d offen offset:%d" % (r, r + 3, 52 + c, 4 * k), "ssm")
    a("v_and_b32 v11, 15, v2")
    a("v_lshrrev_b32 v12, 4, v2")
    a("v_add_u32 v13, v11, v12")
    a("v_subrev_u32 v13, 15, v13")
    a("v_lshlrev_b32 v15, 1, v13")
    a("v_mov_b32 v225, 0x40000000")
    a("v_cmp_gt_i32 vcc, 0, v13")
    a("v_cndmask_b32 v15, v15, v225, vcc")
    a("s_and_b32 s54, s49, 1")
    a("s_lshl_b32 s54, s54, 12")
    a("s_add_u32 s54, s54, s52")
    a.vm("buffer_load_ushort v224, v15, s[36:39], s54 offen", "ssm")
    a("s_lshl_b32 s54, s58, 2")
    a("s_load_dword s63, s[18:19], s54")
    if cfg.fine: stamp(a, 8)
    srd(a, 40, 22, 23, D * F * 2)
    a("v_lshrrev_b32 v226, 4, v2")
    a("v_and_b32 v227, 15, v2")
    a("v_lshlrev_b32 v228, 2, v226")
    a("v_xor_b32 v227, v227, v228")
    a("v_mul_u32_u24 v226, 3584, v226")
    a("v_lshl_add_u32 v226, v227, 4, v226")
    a("s_mul_i32 s54, s49, %d" % (4 * 3584))
    a("s_lshl_b32 s55, s60, 8")
    a("s_add_u32 s54, s54, s55")
    a("s_lshl_b32 s55, s49, 10")
    def w1dma(ks):
        a("s_add_u32 m0, s55, %d" % (ks * 4096))
        a.vm("buffer_load_dwordx4 v226, s[40:43], s54 offen lds", "w1")
        a("s_add_u32 s54, s54, %d" % (16 * 3584))
    for ks in range(cfg.npre): w1dma(ks)
    stamp(a, 1)
    a("v_sub_u32 v10, 31, v14")
    a("v_lshrrev_b32 v11, 2, v10")
    a("v_xor_b32 v11, v11, v1")
    a("v_lshlrev_b32 v11, 4, v11")
    a("v_and_b32 v10, 3, v10")
    a("v_lshl_add_u32 v11, v10, 2, v11")
    a("v_lshl_add_u32 v11, v1, 10, v11")
    a("v_add_u32 v11, %d, v11" % R1)
    a("v_lshrrev_b32 v12, 2, v14")
    a("v_xor_b32 v12, v12, v1")
    a("v_lshlrev_b32 v12, 4, v12")
    a("v_and_b32 v10, 3, v14")
    a("v_lshl_add_u32 v12, v10, 2, v12")
    a("v_lshl_add_u32 v12, v1, 10, v12")
    a("v_add_u32 v12, %d, v12" % (R1 + 8192))
    a.vmwait("k")
    stamp(a, 2)
    W = lambda c, t: 68 + (c * 4 + t) * 2
    for c in range(4):
        r = 52 + 4 * c
        a("v_lshlrev_b32 v%d, 16, v%d" % (W(c, 0), r))
        a("v_lshlrev_b32 v%d, 16, v%d" % (W(c, 0) + 1, r + 2))
        a("v_and_b32 v%d, 0xffff0000, v%d" % (W(c, 1), r))
        a("v_and_b32 v%d, 0xffff0000, v%d" % (W(c, 1) + 1, r + 2))
        a("v_lshlrev_b32 v%d, 16, v%d" % (W(c, 2), r + 1))
        a("v_lshlrev_b32 v%d, 16, v%d" % (W(c, 2) + 1, r + 3))
        a("v_and_b32 v%d, 0xffff0000, v%d" % (W(c, 3), r + 1))
        a("v_and_b32 v%d, 0xffff0000, v%d" % (W(c, 3) + 1, r + 3))
    K = lambda j, c: 100 + (j * 4 + c) * 2
    for j in range(5):
        for c in range(4):
            r = 16 + 4 * j + c
            a("v_lshlrev_b32 v%d, 16, v%d" % (K(j, c), r))
            a("v_and_b32 v%d, 0xffff0000, v%d" % (K(j, c) + 1, r))
    U = lambda e, c: 140 + e * 8 + 2 * c
    P = lambda r: "v[%d:%d]" % (r, r + 1)
    for e in range(2):
        for c in range(4):
            a("v_pk_mul_f32 %s, %s, %s" % (P(U(e, c)), P(K(3 + e, c)), P(W(c, 0))))
        for t in range(1, 4):
            for c in range(4):
                a("v_pk_fma_f32 %s, %s, %s, %s" % (P(U(e, c)), P(K(3 + e - t, c)), P(W(c, t)), P(U(e, c))))
    a.vmwait("v")
    for e in range(2):
        for c in range(4):
            r = 36 + 4 * e + c
            t = 156 + (e * 4 + c) * 2
            a("v_lshlrev_b32 v%d, 16, v%d" % (t, r))
            a("v_and_b32 v%d, 0xffff0000, v%d" % (t + 1, r))
    for e in range(2):
        for c in range(4):
            t = 156 + (e * 4 + c) * 2
            a("v_pk_mul_f32 %s, %s, %s" % (P(U(e, c)), P(U(e, c)), P(t)))
    for i in range(8):
        a("v_cvt_pk_bf16_f32 v%d, v%d, v%d" % (172 + i, 148 + i, 140 + i))
    for i in range(8):
        a("ds_write_b32 v11, v%d offset:%d" % (172 + i, i * 128))
    a.vmwait("q")
    a("s_mov_b32 s52, 0x05040100")
    a("s_mov_b32 s53, 0x07060302")
    for i in range(4):
        a("v_perm_b32 v%d, v%d, v%d, s52" % (180 + 2 * i, 48 + i, 44 + i))
        a("v_perm_b32 v%d, v%d, v%d, s53" % (181 + 2 * i, 48 + i, 44 + i))
    for i in range(8):
        a("ds_write_b32 v12, v%d offset:%d" % (180 + i, i * 128))
    a("v_lshrrev_b32 v10, 3, v14")
    a("v_xor_b32 v15, v1, v10")
    a("v_lshlrev_b32 v15, 4, v15")
    a("v_lshl_add_u32 v15, v14, 7, v15")
    a("v_add_u32 v15, %d, v15" % R1)
    a("v_xor_b32 v3, 64, v15")
    a("v_lshlrev_b32 v13, 12, v14")
    a("v_lshl_add_u32 v13, v1, 4, v13")
    a("s_lshl_b32 s52, s57, 18")
    a("s_lshl_b32 s53, s56, 7")
    a("s_sub_u32 s50, 3968, s53")
    a("s_add_u32 s50, s50, s52")
    a("s_add_u32 s51, s52, s53")
    a("s_add_u32 s51, s51, 0x%x" % WS_XT)
    a("s_waitcnt lgkmcnt(0)")
    a("s_barrier")
    a("ds_read_b128 v[16:19], v15")
    a("ds_read_b128 v[20:23], v3 offset:4096")
    a("ds_read_b128 v[24:27], v15 offset:8192")
    a("ds_read_b128 v[28:31], v3 offset:12288")
    a("s_add_u32 s52, s50, %d" % (32 * 4096))
    a("s_add_u32 s53, s51, %d" % (32 * 4096))
    a("s_waitcnt lgkmcnt(3)")
    a.vm("buffer_store_dwordx4 v[16:19], v13, %s, s50 offen %s" % (WS, SC), "p1st")
    a("s_waitcnt lgkmcnt(2)")
    a.vm("buffer_store_dwordx4 v[20:23], v13, %s, s52 offen %s" % (WS, SC), "p1st")
    a("s_waitcnt lgkmcnt(1)")
    a.vm("buffer_store_dwordx4 v[24:27], v13, %s, s51 offen %s" % (WS, SC), "p1st")
    a("s_waitcnt lgkmcnt(0)")
    a.vm("buffer_store_dwordx4 v[28:31], v13, %s, s53 offen %s" % (WS, SC), "p1st")
    stamp(a, 3)
    token(a)
    a.vmwait("p1st")
    a("s_barrier")
    a("s_lshl_b32 s52, s57, 5")
    a("s_add_u32 s52, s52, s56")
    publish(a, 52)
    stamp(a, 4)
    for ks in range(cfg.npre, 28): w1dma(ks)
    if cfg.upto == 1:
        a("s_branch L_DONE")
    if cfg.fine:
        a("s_branch L_DONE")
    a("v_bfe_u32 v4, v2, 2, 2")
    a("v_lshrrev_b32 v5, 5, v2")
    a("v_lshl_add_u32 v5, v5, 2, v4")
    a("v_lshlrev_b32 v5, 8, v5")
    a("v_lshl_add_u32 v5, v4, 6, v5")
    a("v_bfe_u32 v4, v2, 4, 1")
    a("v_lshl_add_u32 v5, v4, 5, v5")
    a("v_and_b32 v4, 3, v2")
    a("v_lshl_add_u32 v5, v4, 3, v5")
    a("s_lshl_b32 s52, s49, 6")
    a("v_xor_b32 v6, s52, v5")
    a("v_add_u32 v7, 0x10000, v6")
    a.vmwait("w1")
    a("s_barrier")
    FR = 16
    for ks in range(28):
        b = 6 if ks < 16 else 7
        a("ds_read_b64_tr_b16 v[%d:%d], v%d offset:%d" % (FR + 4 * ks, FR + 4 * ks + 1, b, (ks & 15) * 4096))
        a("ds_read_b64_tr_b16 v[%d:%d], v%d offset:%d" % (FR + 4 * ks + 2, FR + 4 * ks + 3, b, (ks & 15) * 4096 + 2048))
    a("v_mov_b32 v8, 0x3f803f80")
    for i in range(4): a("v_mov_b32 v%d, 0" % (128 + i))
    a("s_waitcnt lgkmcnt(0)")
    a("s_barrier")
    for i in range(112):
        a("v_dot2_f32_bf16 v%d, v%d, v8, v%d" % (128 + (i & 3), FR + i, 128 + (i & 3)))
    a("v_lshlrev_b32 v9, 4, v0")
    a("v_add_u32 v9, 32, v9")
    a.vmwait("ssm")
    for c in range(2):
        L0, L1, L2 = 200 + c * 12, 204 + c * 12, 208 + c * 12
        for i in range(4):
            a("v_alignbit_b32 v%d, v%d, v%d, 16" % (232 + i, L1 + i, L0 + i))
        for i in range(4):
            a("v_alignbit_b32 v%d, v%d, v%d, 16" % (236 + i, L2 + i, L1 + i))
        base = HC + c * HC_CH
        a("ds_write_b128 v9, v[232:235] offset:%d" % (base + 0 * 4160))
        a("ds_write_b128 v9, v[%d:%d] offset:%d" % (L1, L1 + 3, base + 1 * 4160))
        a("ds_write_b128 v9, v[236:239] offset:%d" % (base + 2 * 4160))
        a("ds_write_b128 v9, v[%d:%d] offset:%d" % (L2, L2 + 3, base + 3 * 4160))
        if c == 0: a("s_waitcnt lgkmcnt(0)")
    a("v_and_b32 v10, 15, v2")
    a("v_lshrrev_b32 v11, 4, v2")
    a("v_mul_u32_u24 v9, 4160, v11")
    a("v_lshl_add_u32 v9, v10, 1, v9")
    a("s_and_b32 s52, s49, 1")
    a("s_mul_i32 s52, s52, %d" % HC_CH)
    a("v_add_u32 v9, s52, v9")
    a("ds_write_b16 v9, v224 offset:%d" % HC)
    a("v_lshrrev_b32 v13, 5, v2")
    a("v_mul_u32_u24 v13, %d, v13" % UR_CH)
    a("v_and_b32 v12, 31, v2")
    a("v_lshl_add_u32 v13, v12, 4, v13")
    a("v_add_u32 v13, %d, v13" % (UR + 4096))
    for i in range(4): a("v_mov_b32 v%d, 0" % (240 + i))
    a("ds_write_b128 v13, v[240:243]")
    a("v_add_f32 v128, v128, v129")
    a("v_add_f32 v130, v130, v131")
    a("v_add_f32 v128, v128, v130")
    a("v_mov_b32 v129, v128")
    a("v_permlane32_swap_b32 v128, v129")
    a("v_add_f32 v128, v128, v129")
    a("v_mul_f32 v128, 0xbb124925, v128")
    for i in range(112):
        r = FR + i
        t = 132 + 2 * (i & 3)
        a("v_lshlrev_b32 v%d, 16, v%d" % (t, r))
        a("v_and_b32 v%d, 0xffff0000, v%d" % (t + 1, r))
        a("v_pk_add_f32 v[%d:%d], v[%d:%d], v[128:129] op_sel_hi:[1,0]" % (t, t + 1, t, t + 1))
        a("v_cvt_pk_bf16_f32 v%d, v%d, v%d" % (140 + (i & 3), t, t + 1))
        a("v_accvgpr_write_b32 a%d, v%d" % (i, 140 + (i & 3)))
    stamp(a, 5)
    a("s_lshr_b32 s52, s58, 5")
    a("s_lshl_b32 s52, s52, 5")
    a("v_mov_b32 v12, s52")
    a("v_mov_b32 v13, %d" % (FS_IDX - 32))
    a("v_cmp_gt_u32 vcc, 32, v2")
    a("v_cndmask_b32 v12, v13, v12, vcc")
    a("v_add_u32 v12, v12, v2")
    a("v_lshlrev_b32 v12, 6, v12")
    a("s_mov_b32 s53, 0x%x" % WS_FLAG)
    a("s_waitcnt lgkmcnt(0)")
    poll(a, [12], 53)
    stamp(a, 6)
    a("s_lshr_b32 s52, s49, 1")
    a("s_and_b32 s53, s49, 1")
    a("s_lshl_b32 s54, s58, 13")
    a("s_lshl_b32 s55, s52, 12")
    a("s_add_u32 s55, s55, s54")
    a("s_lshl_b32 s50, s53, 11")
    a("s_add_u32 s51, s55, s50")
    a("s_mul_i32 s36, s52, %d" % UR_CH)
    a("s_add_u32 s36, s36, s50")
    a("s_add_u32 s36, s36, %d" % UR)
    a("v_lshlrev_b32 v4, 4, v2")
    a("s_mov_b32 m0, s36")
    a("s_add_u32 s37, s51, 1024")
    a.vm("buffer_load_dwordx4 v4, %s, s51 offen %s lds" % (WS, SL), "ur")
    a("s_add_u32 m0, s36, 1024")
    a.vm("buffer_load_dwordx4 v4, %s, s37 offen %s lds" % (WS, SL), "ur")
    a("v_and_b32 v12, 127, v0")
    a("v_lshlrev_b32 v13, 4, v12")
    a("v_lshrrev_b32 v14, 7, v0")
    a("v_lshl_add_u32 v13, v14, 12, v13")
    a("v_lshlrev_b32 v15, 5, v12")
    a("s_add_u32 s36, s54, 0x%x" % WS_XT)
    XR = 200
    for g in range(2):
        a.vm("buffer_load_dwordx4 v[%d:%d], v13, %s, s36 offen offset:%d %s" % (XR + 4 * g, XR + 4 * g + 3, WS, 2048 * g, SL), "ep")
    SA = 208
    a("s_mov_b32 s36, 0x%x" % WS_STA)
    a("s_mov_b32 s37, 0x%x" % WS_STB)
    a("s_add_u32 s38, s36, 4096")
    a("s_add_u32 s39, s37, 4096")
    for g in range(2):
        for hlf in range(2):
            a.vm("buffer_load_dwordx4 v[%d:%d], v15, %s, s%d offen offset:%d %s" % (SA + 8 * g + 4 * hlf, SA + 8 * g + 4 * hlf + 3, WS, 36 + 2 * g, 16 * hlf, SL), "ep")
            a.vm("buffer_load_dwordx4 v[%d:%d], v15, %s, s%d offen offset:%d %s" % (SA + 16 + 8 * g + 4 * hlf, SA + 16 + 8 * g + 4 * hlf + 3, WS, 37 + 2 * g, 16 * hlf, SL), "ep")
    a("v_and_b32 v16, 3, v10")
    a("v_mul_u32_u24 v16, 4160, v16")
    a("v_lshrrev_b32 v17, 2, v10")
    a("v_lshl_add_u32 v16, v17, 3, v16")
    a("v_lshl_add_u32 v16, v11, 4, v16")
    a("s_mul_i32 s36, s52, %d" % HC_CH)
    a("s_lshl_b32 s37, s53, 8")
    a("s_add_u32 s36, s36, s37")
    a("v_add_u32 v16, s36, v16")
    a("v_lshlrev_b32 v17, 5, v10")
    a("v_lshlrev_b32 v18, 4, v11")
    a("v_sub_u32 v17, v18, v17")
    a("s_mul_i32 s36, s52, %d" % UR_CH)
    a("s_add_u32 s36, s36, s37")
    a("s_add_u32 s36, s36, %d" % (UR + 480))
    a("v_add_u32 v17, s36, v17")
    a("s_lshl_b32 s36, s52, 4")
    a("s_lshr_b32 s37, s63, s36")
    a("s_and_b32 s37, s37, 0xffff")
    a("s_cmp_eq_u32 s53, 0")
    a("s_cselect_b32 s37, s37, 0")
    a("v_lshlrev_b32 v18, 3, v11")
    a("v_add_u32 v18, v18, v10")
    a("v_sub_u32 v18, 15, v18")
    a("v_and_b32 v19, 1, v18")
    a("v_lshlrev_b32 v19, 4, v19")
    a("v_mov_b32 v24, s37")
    a("v_lshlrev_b32 v19, v19, v24")
    a("v_ashrrev_i32 v18, 1, v18")
    for dw in range(4):
        a("v_cmp_eq_u32 vcc, %d, v18" % dw)
        a("v_cndmask_b32 v%d, 0, v19, vcc" % (20 + dw))
    ACC = 24
    for i in range(32): a("v_mov_b32 v%d, 0" % (ACC + i))
    AB = [56, 88]; BB = [120, 152]
    a.vmwait("ur")
    a("s_barrier")
    stamp(a, 7)
    def readA(st, rho, aa):
        r = AB[st] + 4 * aa
        off = 64 * rho + 512 * aa
        return ["ds_read_b64 v[%d:%d], v16 offset:%d" % (r, r + 1, off),
                "ds_read_b64 v[%d:%d], v16 offset:%d" % (r + 2, r + 3, off + 8)]
    def readB(st, rho, b):
        r = BB[st] + 4 * b
        return ["ds_read_b128 v[%d:%d], v17 offset:%d" % (r, r + 3, 64 * rho + 512 * (7 - b))]
    def mfma(t, areg, breg):
        return "v_mfma_f32_16x16x32_bf16 v[%d:%d], v[%d:%d], v[%d:%d], v[%d:%d]" % (ACC + 4 * t, ACC + 4 * t + 3, areg, areg + 3, breg, breg + 3, ACC + 4 * t, ACC + 4 * t + 3)
    for b in range(8):
        for l in readB(0, 0, b): a(l)
    for aa in range(8):
        for l in readA(0, 0, aa): a(l)
    for rho in range(4):
        st = rho & 1
        nxt = []
        if rho < 3:
            for b in range(8): nxt += readB(1 - st, rho + 1, b)
            for aa in range(8): nxt += readA(1 - st, rho + 1, aa)
        ms = []
        if rho == 0:
            for t in range(8): ms.append((mfma(t, 20, BB[st] + 4 * t), None))
        for aa in range(8):
            for t in range(aa, 8):
                ms.append((mfma(t, AB[st] + 4 * aa, BB[st] + 4 * (t - aa)), aa))
        a("s_waitcnt lgkmcnt(%d)" % (15 if rho == 0 else 0))
        ni = 0; waited = -1
        for i, (m, aa) in enumerate(ms):
            if rho == 0 and aa is not None and aa > waited and aa <= 1:
                a("s_waitcnt lgkmcnt(%d)" % (14 if aa == 0 else 0))
                waited = aa
            a(m)
            if (rho > 0 or waited == 1) and ni < len(nxt):
                a(nxt[ni]); ni += 1
        while ni < len(nxt):
            a(nxt[ni]); ni += 1
    stamp(a, 8)
    a("v_lshl_add_u32 v18, v10, 2, v11")
    a("v_bfe_u32 v19, v10, 1, 2")
    a("v_xor_b32 v18, v18, v19")
    a("v_lshlrev_b32 v18, 4, v18")
    a("s_lshl_b32 s36, s49, 13")
    a("s_add_u32 s36, s36, %d" % PB)
    a("v_add_u32 v18, s36, v18")
    for t in range(8):
        a("ds_write_b128 v18, v[%d:%d] offset:%d" % (ACC + 4 * t, ACC + 4 * t + 3, 1024 * t))
    a("v_and_b32 v19, 31, v12")
    a("v_lshlrev_b32 v20, 1, v19")
    a("v_bfe_u32 v21, v19, 2, 2")
    a("v_xor_b32 v20, v20, v21")
    a("v_lshlrev_b32 v20, 4, v20")
    a("v_lshrrev_b32 v21, 5, v12")
    a("v_lshl_add_u32 v20, v21, 10, v20")
    a("v_lshl_add_u32 v20, v14, 14, v20")
    a("v_add_u32 v20, %d, v20" % PB)
    a("v_xor_b32 v21, 16, v20")
    a("s_waitcnt lgkmcnt(0)")
    a("s_barrier")
    Z = 56
    for g in range(2):
        for hf in range(2):
            a("ds_read_b128 v[%d:%d], v20 offset:%d" % (Z + 16 * g + 8 * hf, Z + 16 * g + 8 * hf + 3, hf * 8192 + g * 4096))
            a("ds_read_b128 v[%d:%d], v21 offset:%d" % (Z + 16 * g + 8 * hf + 4, Z + 16 * g + 8 * hf + 7, hf * 8192 + g * 4096))
    a.vmwait("ep")
    a("s_add_u32 s36, s54, 0x%x" % WS_HT)
    for g in range(2):
        X = 120 + 16 * g
        for i in range(4):
            a("v_lshlrev_b32 v%d, 16, v%d" % (X + 2 * i, XR + 4 * g + i))
            a("v_and_b32 v%d, 0xffff0000, v%d" % (X + 2 * i + 1, XR + 4 * g + i))
        for i in range(4):
            A_ = SA + 8 * g + 2 * i; B_ = SA + 16 + 8 * g + 2 * i
            a("v_pk_fma_f32 v[%d:%d], v[%d:%d], v[%d:%d], v[%d:%d]" % (X + 8 + 2 * i, X + 9 + 2 * i, X + 2 * i, X + 2 * i + 1, A_, A_ + 1, B_, B_ + 1))
        a("s_waitcnt lgkmcnt(%d)" % (4 if g == 0 else 0))
        z = Z + 16 * g
        for i in range(4):
            a("v_pk_add_f32 v[%d:%d], v[%d:%d], v[%d:%d]" % (z + 2 * i, z + 2 * i + 1, z + 2 * i, z + 2 * i + 1, z + 8 + 2 * i, z + 9 + 2 * i))
        for i in range(4):
            a("v_pk_fma_f32 v[%d:%d], v[%d:%d], v[%d:%d], v[%d:%d]" % (z + 2 * i, z + 2 * i + 1, X + 8 + 2 * i, X + 9 + 2 * i, z + 2 * i, z + 2 * i + 1, X + 2 * i, X + 2 * i + 1))
        for i in range(4):
            a("v_cvt_pk_bf16_f32 v%d, v%d, v%d" % (z + 8 + i, z + 2 * i, z + 2 * i + 1))
        a.vm("buffer_store_dwordx4 v[%d:%d], v13, %s, s36 offen offset:%d %s" % (z + 8, z + 11, WS, 2048 * g, SC), "p2st")
    stamp(a, 9)
    a("s_barrier")
    srd(a, 40, 24, 25, D * F * 2)
    a("v_lshrrev_b32 v6, 3, v2")
    a("v_and_b32 v7, 7, v2")
    a("v_bfe_u32 v8, v2, 4, 1")
    a("v_lshlrev_b32 v8, 2, v8")
    a("v_xor_b32 v7, v7, v8")
    a("v_mul_u32_u24 v6, 896, v6")
    a("v_lshl_add_u32 v6, v7, 4, v6")
    a("s_mul_i32 s54, s49, %d" % (448 * 896))
    a("s_lshl_b32 s55, s62, 7")
    a("s_add_u32 s54, s54, s55")
    a("s_mul_i32 s55, s49, 28672")
    def w2dma(i, tag):
        a("s_add_u32 m0, s55, %d" % (i * 1024))
        a.vm("buffer_load_dwordx4 v6, s[40:43], s54 offen lds", tag)
        a("s_add_u32 s54, s54, %d" % (8 * 896))
    a.vmwait("p2st")
    a("s_barrier")
    a("s_add_u32 s52, s3, %d" % F2_IDX)
    publish(a, 52)
    stamp(a, 10)
    for i in range(28): w2dma(i, "w2a")
    if cfg.upto == 2:
        a("s_branch L_DONE")
    a("v_bfe_u32 v7, v2, 2, 2")
    a("v_lshrrev_b32 v8, 5, v2")
    a("v_lshl_add_u32 v8, v8, 2, v7")
    a("v_lshlrev_b32 v8, 7, v8")
    a("v_bfe_u32 v7, v2, 3, 1")
    a("v_lshl_add_u32 v8, v7, 6, v8")
    a("v_bfe_u32 v7, v2, 4, 1")
    a("v_lshl_add_u32 v8, v7, 5, v8")
    a("v_and_b32 v7, 3, v2")
    a("v_lshl_add_u32 v8, v7, 3, v8")
    a("v_add_u32 v9, s55, v8")
    a("v_xor_b32 v7, 64, v9")
    def w2tr(abase):
        for ks in range(14):
            for dt in range(2):
                r = abase + (ks * 2 + dt) * 4
                b = 9 if dt == 0 else 7
                a("ds_read_b64_tr_b16 a[%d:%d], v%d offset:%d" % (r, r + 1, b, ks * 2048))
                a("ds_read_b64_tr_b16 a[%d:%d], v%d offset:%d" % (r + 2, r + 3, b, ks * 2048 + 1024))
    a.vmwait("w2a")
    w2tr(112)
    a("v_lshlrev_b32 v12, 6, v2")
    a("v_add_u32 v13, %d, v12" % (64 * 64))
    a("v_add_u32 v14, %d, v12" % (128 * 64))
    a("v_min_u32 v15, 31, v2")
    a("v_lshlrev_b32 v15, 6, v15")
    a("v_add_u32 v15, %d, v15" % (192 * 64))
    a("s_mov_b32 s53, 0x%x" % (WS_FLAG + F2_IDX * 64))
    a("s_waitcnt lgkmcnt(0)")
    poll(a, [12, 13, 14, 15], 53)
    stamp(a, 11)
    a("v_lshrrev_b32 v12, 4, v2")
    a("v_and_b32 v13, 15, v2")
    a("v_lshlrev_b32 v14, 2, v12")
    a("v_xor_b32 v13, v13, v14")
    a("v_lshlrev_b32 v12, 12, v12")
    a("v_lshl_add_u32 v12, v13, 4, v12")
    a("s_lshl_b32 s52, s49, 14")
    a("s_lshl_b32 s53, s59, 8")
    a("s_add_u32 s52, s52, s53")
    a("s_add_u32 s52, s52, 0x%x" % WS_HT)
    a("s_lshl_b32 s53, s49, 10")
    for ks in range(28):
        a("s_add_u32 m0, s53, %d" % (ks * 4096))
        a.vm("buffer_load_dwordx4 v12, %s, s52 offen %s lds" % (WS, SL), "h%d" % ks)
        if ks != 27: a("s_add_u32 s52, s52, %d" % (16 * 4096))
    lab = a.label("EPO")
    a("s_or_b32 s52, s3, s49")
    a("s_cmp_lg_u32 s52, 0")
    a("s_cbranch_scc1 %s" % lab)
    a("s_mov_b32 s52, %d" % E_IDX)
    publish(a, 52)
    a(lab + ":")
    for i in range(4):
        a("s_add_u32 s52, s49, %d" % i)
        a("s_and_b32 s52, s52, 3")
        a("s_lshl_b32 s52, s52, 6")
        a("v_xor_b32 v%d, s52, v5" % (16 + i))
    ACC3 = 128
    for i in range(64): a("v_mov_b32 v%d, 0" % (ACC3 + i))
    HB = [192, 208]
    for i in range(4): a("v_mov_b32 v%d, 0" % (224 + i))
    a("v_mov_b32 v228, 0x3f803f80")
    def hreads(ks):
        st = ks & 1
        out = []
        for i in range(4):
            r = HB[st] + 4 * i
            out.append("ds_read_b64_tr_b16 v[%d:%d], v%d offset:%d" % (r, r + 1, 16 + i, (ks & 15) * 4096))
            out.append("ds_read_b64_tr_b16 v[%d:%d], v%d offset:%d" % (r + 2, r + 3, 16 + i, (ks & 15) * 4096 + 2048))
        return out
    sync = {0: 1, 2: 5, 6: 11, 12: 19, 20: 27}
    a.vmwait("h1"); a("s_barrier")
    stamp(a, 12)
    for l in hreads(0): a(l)
    for ks in range(28):
        st = ks & 1
        nxt = []
        if ks + 1 < 28:
            if ks + 1 in sync:
                a.vmwait("h%d" % sync[ks + 1]); a("s_barrier")
            if ks + 1 == 16:
                pass
            nxt = hreads(ks + 1)
        for i in range(4):
            a("s_waitcnt lgkmcnt(%d)" % (6 if (nxt or True) and ks + 1 < 28 else 6 - 2 * i))
            a("v_mfma_f32_32x32x16_bf16 v[%d:%d], a[%d:%d], v[%d:%d], v[%d:%d]" % (ACC3 + 16 * i, ACC3 + 16 * i + 15, 4 * ks, 4 * ks + 3, HB[st] + 4 * i, HB[st] + 4 * i + 3, ACC3 + 16 * i, ACC3 + 16 * i + 15))
            if nxt:
                if ks + 1 == 16 : a("v_add_u32 v%d, 0x10000, v%d" % (16 + i, 16 + i))
                a(nxt[2 * i]); a(nxt[2 * i + 1])
            if i < 2:
                for q in range(2):
                    o = HB[st] + 2 * i + q
                    a("v_dot2_f32_bf16 v%d, v%d, v228, v%d" % (224 + q, o, 224 + q))
                    a("v_dot2_f32_bf16 v%d, v%d, v%d, v%d" % (226 + q, o, o, 226 + q))
    stamp(a, 13)
    a("v_add_f32 v224, v224, v225")
    a("v_add_f32 v226, v226, v227")
    a("v_mov_b32 v225, v224")
    a("v_mov_b32 v227, v226")
    a("v_permlane32_swap_b32 v224, v225")
    a("v_permlane32_swap_b32 v226, v227")
    a("v_add_f32 v224, v224, v225")
    a("v_add_f32 v226, v226, v227")
    a("v_mul_f32 v224, 0x3b124925, v224")
    a("v_mul_f32 v226, 0x3b124925, v226")
    a("v_fma_f32 v226, -v224, v224, v226")
    a("v_max_f32 v226, 0, v226")
    a("v_add_f32 v226, 0x3727c5ac, v226")
    a("v_rsq_f32 v226, v226")
    lab = a.label("NOST2")
    a("s_cmp_lg_u32 s60, 0")
    a("s_cbranch_scc1 %s" % lab)
    a("s_lshl_b32 s52, s59, 2")
    a("s_add_u32 s52, s52, s49")
    a("s_lshl_b32 s52, s52, 7")
    a("s_add_u32 s52, s52, 0x%x" % WS_ST2)
    a("v_and_b32 v12, 31, v2")
    a("v_lshlrev_b32 v12, 2, v12")
    a("s_mov_b32 exec_hi, 0")
    a("buffer_store_dword v226, v12, %s, s52 offen %s" % (WS, SC))
    a("s_mov_b64 exec, -1")
    a(lab + ":")
    a("s_lshl_b32 s53, s60, 2")
    a("s_add_u32 s53, s53, s49")
    a("s_lshl_b32 s53, s53, 11")
    for i in range(4):
        a("s_add_u32 s52, s49, %d" % i)
        a("s_and_b32 s52, s52, 3")
        a("s_lshl_b32 s50, s59, 2")
        a("s_add_u32 s52, s52, s50")
        a("s_mul_i32 s52, s52, %d" % (112 * 1024))
        a("s_add_u32 s52, s52, s53")
        a("s_add_u32 s52, s52, 0x%x" % WS_H1F)
        acc = ACC3 + 16 * i
        o = 20 + 8 * i
        for q in range(8):
            a("v_cvt_pk_bf16_f32 v%d, v%d, v%d" % (o + q, acc + 2 * q, acc + 2 * q + 1))
        for q in range(8):
            a("v_pk_max_i16 v%d, v%d, 0" % (o + q, o + q))
        a.vm("buffer_store_dwordx4 v[%d:%d], v4, %s, s52 offen %s" % (o, o + 3, WS, SC), "p3st")
        a.vm("buffer_store_dwordx4 v[%d:%d], v4, %s, s52 offen offset:1024 %s" % (o + 4, o + 7, WS, SC), "p3st")
    a("s_barrier")
    a("v_lshrrev_b32 v12, 3, v2")
    a("v_and_b32 v13, 7, v2")
    a("v_bfe_u32 v14, v2, 4, 1")
    a("v_lshlrev_b32 v14, 2, v14")
    a("v_xor_b32 v13, v13, v14")
    a("v_lshlrev_b32 v12, 12, v12")
    a("v_lshl_add_u32 v12, v13, 4, v12")
    a("s_lshl_b32 s52, s62, 6")
    a("s_lshl_b32 s53, s49, 4")
    a("s_add_u32 s52, s52, s53")
    a("s_lshl_b32 s52, s52, 12")
    a("s_lshl_b32 s53, s61, 7")
    a("s_add_u32 s52, s52, s53")
    a("s_add_u32 s52, s52, 0x%x" % WS_HT)
    a("s_lshl_b32 s53, s49, 11")
    a("s_add_u32 s53, s53, %d" % R1)
    for i in range(2):
        a("s_add_u32 m0, s53, %d" % (i * 1024))
        a.vm("buffer_load_dwordx4 v12, %s, s52 offen %s lds" % (WS, SL), "hres")
        if i == 0: a("s_add_u32 s52, s52, %d" % (8 * 4096))
    a.vmwait("p3st")
    a("s_barrier")
    a("s_lshl_b32 s52, s59, 4")
    a("s_add_u32 s52, s52, s60")
    a("s_add_u32 s52, s52, %d" % F3_IDX)
    publish(a, 52)
    stamp(a, 14)
    for i in range(28): w2dma(i, "w2b")
    if cfg.upto == 3:
        a("s_branch L_DONE")
    a.vmwait("w2b")
    w2tr(0)
    a.vmwait("hres")
    a("v_min_u32 v12, 13, v2")
    a("v_lshlrev_b32 v12, 6, v12")
    a("s_lshr_b32 s52, s61, 1")
    a("s_lshl_b32 s52, s52, 10")
    a("s_add_u32 s53, s52, 0x%x" % (WS_FLAG + F3_IDX * 64))
    a("s_waitcnt lgkmcnt(0)")
    poll(a, [12], 53)
    stamp(a, 15)
    a("s_mul_i32 s52, s61, %d" % (2 * 112 * 1024))
    a("s_mul_i32 s53, s49, %d" % (28 * 1024))
    a("s_add_u32 s52, s52, s53")
    a("s_add_u32 s52, s52, 0x%x" % WS_H1F)
    a("s_add_u32 s53, s52, %d" % (112 * 1024))
    RING = 20; RB = 80
    def hloads(ks):
        r = RB + (ks % RING) * 8
        off = (ks % 4) * 1024
        a.vm("buffer_load_dwordx4 v[%d:%d], v4, %s, s52 offen offset:%d %s" % (r, r + 3, WS, off, SL), "H%d" % ks)
        a.vm("buffer_load_dwordx4 v[%d:%d], v4, %s, s53 offen offset:%d %s" % (r + 4, r + 7, WS, off, SL), "H%d" % ks)
        if ks % 4 == 3:
            a("s_add_u32 s52, s52, 4096"); a("s_add_u32 s53, s53, 4096")
    for ks in range(RING): hloads(ks)
    a("s_and_b32 s50, s49, 1")
    a("s_lshr_b32 s51, s49, 1")
    a("s_lshl_b32 s36, s61, 1")
    a("s_add_u32 s36, s36, s50")
    a("s_lshl_b32 s37, s36, 7")
    a("s_add_u32 s37, s37, 0x%x" % WS_ST2)
    a("v_and_b32 v12, 31, v2")
    a("v_lshlrev_b32 v13, 2, v12")
    a.vm("buffer_load_dword v248, v13, %s, s37 offen %s" % (WS, SL), "rstd")
    ACC4 = 16
    for i in range(64): a("v_mov_b32 v%d, 0" % (ACC4 + i))
    for ks in range(28):
        a.vmwait("H%d" % ks)
        r = RB + (ks % RING) * 8
        ab = (112 + ks * 8) if ks < 14 else ((ks - 14) * 8)
        for dt in range(2):
            for st in range(2):
                t = dt * 2 + st
                a("v_mfma_f32_32x32x16_bf16 v[%d:%d], a[%d:%d], v[%d:%d], v[%d:%d]" % (ACC4 + 16 * t, ACC4 + 16 * t + 15, ab + 4 * dt, ab + 4 * dt + 3, r + 4 * st, r + 4 * st + 3, ACC4 + 16 * t, ACC4 + 16 * t + 15))
        if ks + RING < 28: hloads(ks + RING)
    a("s_lshl_b32 s52, s49, 14")
    a("v_add_u32 v14, s52, v4")
    for t in range(4):
        for q in range(4):
            a("ds_write_b128 v14, v[%d:%d] offset:%d" % (ACC4 + 16 * t + 4 * q, ACC4 + 16 * t + 4 * q + 3, t * 4096 + q * 1024))
    a("s_lshl_b32 s52, s50, 6")
    a("v_xor_b32 v15, s52, v8")
    a("s_lshl_b32 s52, s51, 12")
    a("s_add_u32 s52, s52, %d" % R1)
    a("v_add_u32 v15, s52, v15")
    a("s_waitcnt lgkmcnt(0)")
    a("s_barrier")
    a("s_lshl_b32 s52, s49, 12")
    a("v_add_u32 v14, s52, v4")
    T = 80
    for sw in range(4):
        for q in range(4):
            a("ds_read_b128 v[%d:%d], v14 offset:%d" % (T + 16 * sw + 4 * q, T + 16 * sw + 4 * q + 3, sw * 16384 + q * 1024))
    for j4 in range(4):
        a("ds_read_b64_tr_b16 v[%d:%d], v15 offset:%d" % (240 + 2 * j4, 241 + 2 * j4, j4 * 1024))
    a("s_waitcnt lgkmcnt(12)")
    for i in range(0, 16, 2):
        a("v_pk_add_f32 v[%d:%d], v[%d:%d], v[%d:%d]" % (T + i, T + i + 1, T + i, T + i + 1, T + 16 + i, T + 17 + i))
    a("s_waitcnt lgkmcnt(4)")
    for i in range(0, 16, 2):
        a("v_pk_add_f32 v[%d:%d], v[%d:%d], v[%d:%d]" % (T + 32 + i, T + 33 + i, T + 32 + i, T + 33 + i, T + 48 + i, T + 49 + i))
    for i in range(0, 16, 2):
        a("v_pk_add_f32 v[%d:%d], v[%d:%d], v[%d:%d]" % (T + i, T + i + 1, T + i, T + i + 1, T + 32 + i, T + 33 + i))
    a.vmwait("rstd")
    a("s_waitcnt lgkmcnt(0)")
    for dw in range(8):
        hx = 160 + 2 * dw
        a("v_lshlrev_b32 v%d, 16, v%d" % (hx, 240 + dw))
        a("v_and_b32 v%d, 0xffff0000, v%d" % (hx + 1, 240 + dw))
        a("v_pk_fma_f32 v[%d:%d], v[%d:%d], v[248:249], v[%d:%d] op_sel_hi:[1,0,1]" % (hx, hx + 1, T + 2 * dw, T + 2 * dw + 1, hx, hx + 1))
        a("v_cvt_pk_bf16_f32 v%d, v%d, v%d" % (180 + dw, hx, hx + 1))
    for jp in range(2):
        A0 = 180 + 4 * jp
        a("v_permlane32_swap_b32 v%d, v%d" % (A0, A0 + 2))
        a("v_permlane32_swap_b32 v%d, v%d" % (A0 + 1, A0 + 3))
    srd(a, 36 + 4, 26, 27, NB_SD)
    a("v_mul_u32_u24 v7, 896, v12")
    a("v_lshrrev_b32 v9, 5, v2")
    a("v_lshl_add_u32 v7, v9, 4, v7")
    a("s_mul_i32 s52, s36, %d" % (32 * 896))
    a("s_lshl_b32 s53, s62, 1")
    a("s_add_u32 s53, s53, s51")
    a("s_lshl_b32 s53, s53, 6")
    a("s_add_u32 s52, s52, s53")
    a("buffer_store_dwordx4 v[180:183], v7, s[40:43], s52 offen")
    a("buffer_store_dwordx4 v[184:187], v7, s[40:43], s52 offen offset:32")
    a("L_DONE:")
    if common.STAMPS:
        fstamp_flush(a)
    a("L_END:")
    a("s_endpgm")
    gen_stats(a)
    return a.lines, dict(vgpr=256, sgpr=102, lds=LDS_TOTAL, grid=256, agpr=256)

def build(out, cfg=Cfg):
    lines, info = gen_fused(cfg)
    lines = fix_hazards(lines, verbose=True)
    txt = ["; generated by a hand-written generator (gen/fused.py)",
           "; @launch grid=(%d,1,1) block=(256,1,1) lds=%d" % (info["grid"], info["lds"]),
           '.amdgcn_target "amdgcn-amd-amdhsa--gfx950"', ".text"]
    txt += lines
    txt.append('.section .rodata,"a"')
    txt += kernel_desc(KN, info["vgpr"], info["sgpr"], accum=256, agpr=info["agpr"])
    open(out, "w").write("\n".join(txt) + "\n")

if __name__ == "__main__":
    import sys, os
    common.STAMPS = int(os.environ.get("STAMPS", "0"))
    out = sys.argv[1]
    for kv in sys.argv[2:]:
        k, v = kv.split("=")
        setattr(Cfg, k, int(v))
    build(out)
```

```python
from common import *
F3C_IDX = 1280
import common
from fused import fstamp_flush, publish, poll, token, KN, S_T, S_WAVE, WS
import fused

SC = "sc1"
R0 = 0
R1 = 114688
HC = R1; HC_CH = 4 * 4160; UR = HC + 2 * HC_CH; UR_CH = 4608
LDS_TOTAL = 163840
R2W = 12288
HRES = 65536
PB = R0
WS_CM = 0x1330000
WS_ST2P = 0x1340000

class Cfg:
    pubA = 16
    chkB = 17
    w1pre = 8
    sset = 0
    upto = 4
    wpre = 1
    hpre = 16
    Hpre = 14

SETS = {
 0: ["start","ldiss","k_in","p1st","F1pub","prepoll","B1","URin","conv","p2st","F2pub","B2","h_in","P3mm","F3pub","B3"],
 1: ["start","B3","H_iss","H0","H7","H14","H21","H27","red_w","red_b","red_r","out_st", "F3pub", "w2b_iss", "w2b_in", "w2b_tr"],
 2: ["start","p2st","cs","F2pub","cen","w2a_in","w2a_tr","B2","h_iss","h_in","ps0_14","ps0","ps0e","ps1","ps1e","F3pub"],
}
def S(a, name):
    names = SETS[Cfg.sset]
    if name in names: stamp(a, names.index(name))

def poll_late(a, vaddr, soff_sgpr, reg, tag):
    lp = a.label("POLL"); done = a.label("PDONE")
    a.vmwait(tag)
    a("v_cmp_ne_u32 vcc, s%d, v%d" % (S_T, reg))
    a("s_nop 4")
    a("s_cmp_eq_u64 vcc, 0")
    a("s_cbranch_scc1 %s" % done)
    a("s_mov_b32 s51, 0")
    a(lp + ":")
    a("buffer_load_dword v%d, v%d, %s, s%d offen sc0 sc1" % (reg, vaddr, WS, soff_sgpr))
    a("s_waitcnt vmcnt(0)")
    a("v_cmp_ne_u32 vcc, s%d, v%d" % (S_T, reg))
    a("s_nop 4")
    a("s_cmp_eq_u64 vcc, 0")
    a("s_cbranch_scc1 %s" % done)
    a("s_add_u32 s51, s51, 1")
    a("s_cmp_lt_u32 s51, 0x40000")
    a("s_cbranch_scc1 %s" % lp)
    a(done + ":")

def interleave(a, main, side, every):
    si = 0
    for i, l in enumerate(main):
        a(l)
        if (i + 1) % every == 0 and si < len(side):
            side[si](); si += 1
    while si < len(side):
        side[si](); si += 1

def gen_stats(a):
    a("L_STATS:")
    a("v_and_b32 v1, 7, v0")
    a("v_lshrrev_b32 v2, 3, v0")
    a("s_mul_i32 s52, s2, %d" % (64 * 896))
    a("v_lshrrev_b32 v3, 3, v2")
    a("v_and_b32 v4, 7, v2")
    a("v_lshl_add_u32 v5, v3, 4, v4")
    a("v_mul_u32_u24 v6, 896, v5")
    a("v_lshl_add_u32 v6, v1, 4, v6")
    a("v_add_u32 v6, s52, v6")
    a("v_add_u32 v7, %d, v6" % (8 * 896))
    srd(a, 36, 8, 9, NB_SD)
    for p in range(2):
        for i in range(7):
            r = 16 + (p * 7 + i) * 4
            a("buffer_load_dwordx4 v[%d:%d], v%d, s[36:39], 0 offen offset:%d" % (r, r + 3, 6 + p, i * 128))
    srd(a, 40, 22, 23, D * F * 2)
    a("v_mul_u32_u24 v10, 3584, v2")
    a("v_lshl_add_u32 v10, v1, 4, v10")
    a("s_lshl_b32 s52, s2, 7")
    a("s_cmp_lt_u32 s2, 28")
    a("s_cselect_b32 s52, s52, 0x40000000")
    for i in range(14):
        a("buffer_load_dwordx4 v[%d:%d], v10, s[40:43], s52 offen" % (100 + 4 * i, 103 + 4 * i))
        if i != 13: a("s_add_u32 s52, s52, %d" % (32 * 3584))
    a("v_mov_b32 v8, 0x3f803f80")
    for r in range(80, 88): a("v_mov_b32 v%d, 0" % r)
    for p in range(2):
        for i in range(7):
            a("s_waitcnt vmcnt(%d)" % (27 - (p * 7 + i)))
            for c in range(4):
                r = 16 + (p * 7 + i) * 4 + c
                o = 80 + 4 * p + 2 * (c & 1)
                a("v_dot2_f32_bf16 v%d, v%d, v8, v%d" % (o, r, o))
                a("v_dot2_f32_bf16 v%d, v%d, v%d, v%d" % (o + 1, r, r, o + 1))
    for p in range(2):
        a("v_add_f32 v%d, v%d, v%d" % (80 + 4 * p, 80 + 4 * p, 82 + 4 * p))
        a("v_add_f32 v%d, v%d, v%d" % (81 + 4 * p, 81 + 4 * p, 83 + 4 * p))
    for mod in ("quad_perm:[1,0,3,2]", "quad_perm:[2,3,0,1]", "row_half_mirror"):
        for r in (80, 81, 84, 85):
            a("v_add_f32_dpp v%d, v%d, v%d %s row_mask:0xf bank_mask:0xf" % (r, r, r, mod))
    for p in range(2):
        s_, q_ = 80 + 4 * p, 81 + 4 * p
        a("v_mul_f32 v%d, 0x3b124925, v%d" % (s_, s_))
        a("v_mul_f32 v%d, 0x3b124925, v%d" % (q_, q_))
        a("v_fma_f32 v%d, -v%d, v%d, v%d" % (q_, s_, s_, q_))
        a("v_max_f32 v%d, 0, v%d" % (q_, q_))
        a("v_add_f32 v%d, 0x3727c5ac, v%d" % (q_, q_))
        a("v_rsq_f32 v%d, v%d" % (88 + 2 * p, q_))
        a("v_mul_f32 v%d, v%d, v%d" % (89 + 2 * p, s_, 88 + 2 * p))
        a("v_sub_f32 v%d, 0, v%d" % (89 + 2 * p, 89 + 2 * p))
    a("s_lshl_b32 s52, s2, 8")
    a("s_add_u32 s52, s52, 0x%x" % WS_STA)
    a("s_add_u32 s53, s52, 8192")
    a("v_lshlrev_b32 v9, 2, v5")
    a("v_cmp_eq_u32 vcc, 0, v1")
    a("s_and_saveexec_b64 s[54:55], vcc")
    a("buffer_store_dword v88, v9, %s, s52 offen %s" % (WS, SC))
    a("buffer_store_dword v89, v9, %s, s53 offen %s" % (WS, SC))
    a("buffer_store_dword v90, v9, %s, s52 offen offset:32 %s" % (WS, SC))
    a("buffer_store_dword v91, v9, %s, s53 offen offset:32 %s" % (WS, SC))
    a("s_mov_b64 exec, s[54:55]")
    a("v_mov_b32 v8, 0x00003f80")
    a("v_mov_b32 v9, 0x3f800000")
    for r in range(16, 24): a("v_mov_b32 v%d, 0" % r)
    for i in range(14):
        a("s_waitcnt vmcnt(%d)" % (13 - i + 4))
        for c in range(4):
            a("v_dot2_f32_bf16 v%d, v%d, v8, v%d" % (16 + 2 * c, 100 + 4 * i + c, 16 + 2 * c))
            a("v_dot2_f32_bf16 v%d, v%d, v9, v%d" % (17 + 2 * c, 100 + 4 * i + c, 17 + 2 * c))
    a("v_lshlrev_b32 v24, 8, v2")
    a("v_lshl_add_u32 v24, v1, 5, v24")
    a("ds_write_b128 v24, v[16:19]")
    a("ds_write_b128 v24, v[20:23] offset:16")
    a("v_and_b32 v25, 63, v0")
    a("v_lshrrev_b32 v26, 6, v0")
    a("v_lshlrev_b32 v27, 11, v26")
    a("v_lshl_add_u32 v27, v25, 2, v27")
    a("s_waitcnt lgkmcnt(0)")
    a("s_barrier")
    for i in range(8):
        a("ds_read_b32 v%d, v27 offset:%d" % (28 + i, i * 256))
    a("s_waitcnt lgkmcnt(0)")
    for i in range(1, 8):
        a("v_add_f32 v28, v28, v%d" % (28 + i))
    a("v_lshlrev_b32 v27, 8, v26")
    a("v_lshl_add_u32 v27, v25, 2, v27")
    a("ds_write_b32 v27, v28 offset:8192")
    a("v_lshlrev_b32 v27, 2, v25")
    a("s_waitcnt lgkmcnt(0)")
    a("s_barrier")
    for i in range(4):
        a("ds_read_b32 v%d, v27 offset:%d" % (28 + i, 8192 + i * 256))
    a("s_waitcnt lgkmcnt(0)")
    a("v_add_f32 v28, v28, v29")
    a("v_add_f32 v30, v30, v31")
    a("v_add_f32 v28, v28, v30")
    a("v_mul_f32 v28, 0xbb124925, v28")
    lab = a.label("NOCM")
    a("s_cmp_ge_u32 s2, 28")
    a("s_cbranch_scc1 %s" % lab)
    a("s_cmp_lg_u32 s49, 0")
    a("s_cbranch_scc1 %s" % lab)
    a("s_lshl_b32 s52, s2, 8")
    a("s_add_u32 s52, s52, 0x%x" % WS_CM)
    a("buffer_store_dword v28, v27, %s, s52 offen %s" % (WS, SC))
    a(lab + ":")
    a("s_waitcnt vmcnt(0) lgkmcnt(0)")
    token(a)
    a("s_barrier")
    a("s_add_u32 s52, s2, %d" % FS_IDX)
    publish(a, 52)
    S(a, "B3")
    fstamp_flush(a)
    a("s_endpgm")

def gen(cfg=Cfg):
    a = Asm()
    for l in kernel_header(KN): a(l)
    a("s_load_dwordx16 s[8:23], s[0:1], 0")
    a("s_load_dwordx8 s[24:31], s[0:1], 64")
    S(a, "start")
    a("s_cmp_ge_u32 s2, 256")
    a("s_cbranch_scc1 L_END")
    a("v_lshrrev_b32 v1, 6, v0")
    a("v_and_b32 v2, 63, v0")
    a("v_readfirstlane_b32 s49, v1")
    a("s_mov_b32 s50, 0x%x" % (WS_FLAG + E_IDX * 64))
    a("s_sub_u32 s3, s2, 32")
    a("s_mul_i32 s56, s3, 9363")
    a("s_lshr_b32 s56, s56, 16")
    a("s_mul_i32 s57, s56, 7")
    a("s_sub_u32 s57, s3, s57")
    a("s_and_b32 s52, s3, 7")
    a("s_lshr_b32 s53, s3, 3")
    a("s_mul_i32 s58, s52, 28")
    a("s_add_u32 s58, s58, s53")
    a("s_lshr_b32 s59, s52, 1")
    a("s_lshl_b32 s59, s59, 2")
    a("s_and_b32 s54, s53, 3")
    a("s_add_u32 s59, s59, s54")
    a("s_and_b32 s60, s52, 1")
    a("s_mul_i32 s60, s60, 7")
    a("s_lshr_b32 s55, s53, 2")
    a("s_add_u32 s60, s60, s55")
    a("s_lshl_b32 s61, s52, 2")
    a("s_add_u32 s61, s61, s54")
    a("s_mov_b32 s62, s55")
    a("v_and_b32 v1, 7, v0")
    a("v_lshrrev_b32 v14, 3, v0")
    a("s_mul_i32 s52, s56, %d" % (64 * 896))
    a("s_lshl_b32 s53, s57, 7")
    a("s_add_u32 s52, s52, s53")
    a("v_mul_u32_u24 v8, %d, v14" % (2 * 896))
    a("v_lshl_add_u32 v8, v1, 4, v8")
    a("v_add_u32 v8, s52, v8")
    for j in range(5):
        d = (j - 3) * 896
        if d < 0: a("v_subrev_u32 v%d, %d, v8" % (3 + j, -d))
        else: a("v_add_u32 v%d, %d, v8" % (3 + j, d))
    a("s_lshl_b32 s53, s57, 9")
    a("v_lshl_add_u32 v9, v1, 6, s53")
    a("s_waitcnt lgkmcnt(0)")
    a("s_load_dword s48, s[30:31], s50")
    srd(a, 32, 30, 31, WS_STAMP)
    a("s_cmp_lt_u32 s2, 32")
    a("s_cbranch_scc1 L_STATS")
    srd(a, 36, 10, 11, NB_SD)
    srd(a, 44, 12, 13, NB_SD)
    srd(a, 40, 14, 15, 448 * 4 * 2)
    srd(a, 4, 8, 9, NB_SD)
    for j in range(5):
        a.vm("buffer_load_dwordx4 v[%d:%d], v%d, s[36:39], 0 offen" % (16 + 4 * j, 19 + 4 * j, 3 + j), "k")
    for j in range(4):
        a.vm("buffer_load_dwordx4 v[%d:%d], v9, s[40:43], 0 offen offset:%d" % (52 + 4 * j, 55 + 4 * j, 16 * j), "k")
    a.vm("buffer_load_dwordx4 v[36:39], v8, s[44:47], 0 offen", "v")
    a.vm("buffer_load_dwordx4 v[40:43], v8, s[44:47], 0 offen offset:896", "v")
    a.vm("buffer_load_dwordx4 v[44:47], v8, s[4:7], 0 offen", "q")
    a.vm("buffer_load_dwordx4 v[48:51], v8, s[4:7], 0 offen offset:896", "q")
    srd(a, 36, 16, 17, NB_SD)
    a("v_lshlrev_b32 v10, 4, v0")
    a("s_lshl_b32 s52, s58, 13")
    a("s_add_u32 s53, s52, 4096")
    for c in range(2):
        r = 200 + 8 * c
        a.vm("buffer_load_dwordx4 v[%d:%d], v10, s[36:39], s%d offen" % (r, r + 3, 52 + c), "ssm")
        a.vm("buffer_load_dwordx2 v[%d:%d], v10, s[36:39], s%d offen offset:16" % (r + 4, r + 5, 52 + c), "ssm")
    a("v_and_b32 v11, 15, v2")
    a("v_lshrrev_b32 v12, 4, v2")
    a("v_add_u32 v13, v11, v12")
    a("v_subrev_u32 v13, 15, v13")
    a("v_lshlrev_b32 v15, 1, v13")
    a("v_mov_b32 v225, 0x40000000")
    a("v_cmp_gt_i32 vcc, 0, v13")
    a("v_cndmask_b32 v15, v15, v225, vcc")
    a("s_and_b32 s54, s49, 1")
    a("s_lshl_b32 s54, s54, 12")
    a("s_add_u32 s54, s54, s52")
    a.vm("buffer_load_ushort v224, v15, s[36:39], s54 offen", "ssm")
    a("s_lshl_b32 s54, s58, 2")
    a("s_load_dword s63, s[18:19], s54")
    S(a, "ldiss")
    a("v_sub_u32 v10, 31, v14")
    a("v_lshrrev_b32 v11, 2, v10")
    a("v_xor_b32 v11, v11, v1")
    a("v_lshlrev_b32 v11, 4, v11")
    a("v_and_b32 v10, 3, v10")
    a("v_lshl_add_u32 v11, v10, 2, v11")
    a("v_lshl_add_u32 v11, v1, 10, v11")
    a("v_add_u32 v11, %d, v11" % R1)
    a("v_lshrrev_b32 v12, 2, v14")
    a("v_xor_b32 v12, v12, v1")
    a("v_lshlrev_b32 v12, 4, v12")
    a("v_and_b32 v10, 3, v14")
    a("v_lshl_add_u32 v12, v10, 2, v12")
    a("v_lshl_add_u32 v12, v1, 10, v12")
    a("v_add_u32 v12, %d, v12" % (R1 + 8192))
    a("v_lshrrev_b32 v10, 3, v14")
    a("v_xor_b32 v15, v1, v10")
    a("v_lshlrev_b32 v15, 4, v15")
    a("v_lshl_add_u32 v15, v14, 7, v15")
    a("v_add_u32 v15, %d, v15" % R1)
    a("v_xor_b32 v3, 64, v15") if False else None
    a("v_lshlrev_b32 v13, 12, v14")
    a("v_lshl_add_u32 v13, v1, 4, v13")
    a("s_lshl_b32 s52, s57, 18")
    a("s_lshl_b32 s53, s56, 7")
    a("s_sub_u32 s50, 3968, s53")
    a("s_add_u32 s50, s50, s52")
    a("s_add_u32 s51, s52, s53")
    a("s_add_u32 s51, s51, 0x%x" % WS_XT)
    a.vmwait("k")
    S(a, "k_in")
    W = lambda c, t: 68 + (c * 4 + t) * 2
    for c in range(4):
        r = 52 + 4 * c
        a("v_lshlrev_b32 v%d, 16, v%d" % (W(c, 0), r))
        a("v_lshlrev_b32 v%d, 16, v%d" % (W(c, 0) + 1, r + 2))
        a("v_and_b32 v%d, 0xffff0000, v%d" % (W(c, 1), r))
        a("v_and_b32 v%d, 0xffff0000, v%d" % (W(c, 1) + 1, r + 2))
        a("v_lshlrev_b32 v%d, 16, v%d" % (W(c, 2), r + 1))
        a("v_lshlrev_b32 v%d, 16, v%d" % (W(c, 2) + 1, r + 3))
        a("v_and_b32 v%d, 0xffff0000, v%d" % (W(c, 3), r + 1))
        a("v_and_b32 v%d, 0xffff0000, v%d" % (W(c, 3) + 1, r + 3))
    K = lambda j, c: 100 + (j * 4 + c) * 2
    for j in range(5):
        for c in range(4):
            r = 16 + 4 * j + c
            a("v_lshlrev_b32 v%d, 16, v%d" % (K(j, c), r))
            a("v_and_b32 v%d, 0xffff0000, v%d" % (K(j, c) + 1, r))
    U = lambda e, c: 140 + e * 8 + 2 * c
    P = lambda r: "v[%d:%d]" % (r, r + 1)
    for e in range(2):
        for c in range(4):
            a("v_pk_mul_f32 %s, %s, %s" % (P(U(e, c)), P(K(3 + e, c)), P(W(c, 0))))
        for t in range(1, 4):
            for c in range(4):
                a("v_pk_fma_f32 %s, %s, %s, %s" % (P(U(e, c)), P(K(3 + e - t, c)), P(W(c, t)), P(U(e, c))))
    a("v_xor_b32 v3, 64, v15")
    a.vmwait("v")
    for e in range(2):
        for c in range(4):
            r = 36 + 4 * e + c
            t = 156 + (e * 4 + c) * 2
            a("v_lshlrev_b32 v%d, 16, v%d" % (t, r))
            a("v_and_b32 v%d, 0xffff0000, v%d" % (t + 1, r))
    for e in range(2):
        for c in range(4):
            t = 156 + (e * 4 + c) * 2
            a("v_pk_mul_f32 %s, %s, %s" % (P(U(e, c)), P(U(e, c)), P(t)))
    for i in range(8):
        a("v_cvt_pk_bf16_f32 v%d, v%d, v%d" % (172 + i, 148 + i, 140 + i))
    for i in range(8):
        a("ds_write_b32 v11, v%d offset:%d" % (172 + i, i * 128))
    a.vmwait("q")
    a("s_mov_b32 s52, 0x05040100")
    a("s_mov_b32 s53, 0x07060302")
    for i in range(4):
        a("v_perm_b32 v%d, v%d, v%d, s52" % (180 + 2 * i, 48 + i, 44 + i))
        a("v_perm_b32 v%d, v%d, v%d, s53" % (181 + 2 * i, 48 + i, 44 + i))
    for i in range(8):
        a("ds_write_b32 v12, v%d offset:%d" % (180 + i, i * 128))
    a("s_waitcnt lgkmcnt(0)")
    a("s_barrier")
    a("ds_read_b128 v[16:19], v15")
    a("ds_read_b128 v[20:23], v3 offset:4096")
    a("ds_read_b128 v[24:27], v15 offset:8192")
    a("ds_read_b128 v[28:31], v3 offset:12288")
    a("s_add_u32 s52, s50, %d" % (32 * 4096))
    a("s_add_u32 s53, s51, %d" % (32 * 4096))
    a("s_waitcnt lgkmcnt(3)")
    a.vm("buffer_store_dwordx4 v[16:19], v13, %s, s50 offen %s" % (WS, SC), "p1st")
    a("s_waitcnt lgkmcnt(2)")
    a.vm("buffer_store_dwordx4 v[20:23], v13, %s, s52 offen %s" % (WS, SC), "p1st")
    a("s_waitcnt lgkmcnt(1)")
    a.vm("buffer_store_dwordx4 v[24:27], v13, %s, s51 offen %s" % (WS, SC), "p1st")
    a("s_waitcnt lgkmcnt(0)")
    a.vm("buffer_store_dwordx4 v[28:31], v13, %s, s53 offen %s" % (WS, SC), "p1st")
    S(a, "p1st")
    token(a)
    for c in range(2):
        w0 = 200 + 8 * c
        o = 232 + 0
        b = 140 + 12 * c
        for i in range(4): a("v_alignbit_b32 v%d, v%d, v%d, 16" % (b + i, w0 + i + 1, w0 + i))
        for i in range(4): a("v_mov_b32 v%d, v%d" % (b + 4 + i, w0 + i + 1))
        for i in range(4): a("v_alignbit_b32 v%d, v%d, v%d, 16" % (b + 8 + i, w0 + i + 2, w0 + i + 1))
    a.lines.insert(len(a.lines) - 24, "    s_waitcnt vmcnt(%d)" % (a.vmcount() - 1 - max(i for i, t in enumerate(a.vmlist) if t == "ssm")))
    srd(a, 40, 22, 23, D * F * 2)
    a("v_lshrrev_b32 v6, 4, v2")
    a("v_and_b32 v7, 15, v2")
    a("v_lshlrev_b32 v8, 2, v6")
    a("v_xor_b32 v7, v7, v8")
    a("v_mul_u32_u24 v6, 3584, v6")
    a("v_lshl_add_u32 v6, v7, 4, v6")
    a("s_mul_i32 s54, s49, %d" % (4 * 3584))
    a("s_lshl_b32 s55, s60, 8")
    a("s_add_u32 s54, s54, s55")
    a("s_lshl_b32 s55, s49, 10")
    def w1dma(ks):
        a("s_add_u32 m0, s55, %d" % (ks * 4096))
        a.vm("buffer_load_dwordx4 v6, s[40:43], s54 offen lds", "w1")
        if ks != 27: a("s_add_u32 s54, s54, %d" % (16 * 3584))
    for ks in range(cfg.w1pre): w1dma(ks)
    a.vmwait("p1st")
    a("s_barrier")
    a("s_lshl_b32 s52, s57, 5")
    a("s_add_u32 s52, s52, s56")
    publish(a, 52)
    S(a, "F1pub")
    if cfg.wpre:
        srd(a, 44, 24, 25, D * F * 2)
        a("s_mul_i32 s52, s3, 56")
        a("s_mul_i32 s53, s49, 14")
        a("s_add_u32 s52, s52, s53")
        a("v_min_u32 v226, 13, v2")
        a("v_add_u32 v226, s52, v226")
        a("v_lshlrev_b32 v226, 7, v226")
        a.vm("buffer_load_dword v228, v226, s[44:47], 0 offen", "pre")
    if cfg.upto == 1:
        a("s_branch L_DONE")
    a("v_lshlrev_b32 v9, 4, v0")
    a("v_add_u32 v9, %d, v9" % (32 + HC))
    for c in range(2):
        w0 = 200 + 8 * c; b = 140 + 12 * c
        base = c * HC_CH
        a("ds_write_b128 v9, v[%d:%d] offset:%d" % (b, b + 3, base + 0 * 4160))
        a("ds_write_b128 v9, v[%d:%d] offset:%d" % (b + 4, b + 7, base + 1 * 4160))
        a("ds_write_b128 v9, v[%d:%d] offset:%d" % (b + 8, b + 11, base + 2 * 4160))
        a("ds_write_b128 v9, v[%d:%d] offset:%d" % (w0 + 2, w0 + 5, base + 3 * 4160))
    a("v_and_b32 v10, 15, v2")
    a("v_lshrrev_b32 v11, 4, v2")
    a("v_mul_u32_u24 v9, 4160, v11")
    a("v_lshl_add_u32 v9, v10, 1, v9")
    a("s_and_b32 s52, s49, 1")
    a("s_mul_i32 s52, s52, %d" % HC_CH)
    a("s_add_u32 s52, s52, %d" % HC)
    a("v_add_u32 v9, s52, v9")
    a("ds_write_b16 v9, v224")
    a("v_lshrrev_b32 v13, 5, v2")
    a("v_mul_u32_u24 v13, %d, v13" % UR_CH)
    a("v_and_b32 v12, 31, v2")
    a("v_lshl_add_u32 v13, v12, 4, v13")
    a("v_add_u32 v13, %d, v13" % (UR + 4096))
    for i in range(4): a("v_mov_b32 v%d, 0" % (240 + i))
    a("ds_write_b128 v13, v[240:243]")
    for ks in range(cfg.w1pre, 28): w1dma(ks)
    a("v_bfe_u32 v4, v2, 2, 2")
    a("v_lshrrev_b32 v5, 5, v2")
    a("v_lshl_add_u32 v5, v5, 2, v4")
    a("v_lshlrev_b32 v5, 8, v5")
    a("v_lshl_add_u32 v5, v4, 6, v5")
    a("v_bfe_u32 v4, v2, 4, 1")
    a("v_lshl_add_u32 v5, v4, 5, v5")
    a("v_and_b32 v4, 3, v2")
    a("v_lshl_add_u32 v5, v4, 3, v5")
    a("s_lshl_b32 s52, s49, 6")
    a("v_xor_b32 v6, s52, v5")
    a("v_add_u32 v7, 0x10000, v6")
    S(a, "prepoll")
    a("s_lshr_b32 s52, s58, 5")
    a("s_lshl_b32 s52, s52, 5")
    a("v_and_b32 v12, 31, v2")
    a("v_add_u32 v12, s52, v12")
    a("v_lshlrev_b32 v12, 6, v12")
    a("s_lshr_b32 s52, s49, 1")
    a("s_and_b32 s53, s49, 1")
    a("v_and_b32 v16, 3, v10") if False else None
    A_, B_ = 128, 129
    a("v_and_b32 v%d, 3, v10" % A_)
    a("v_mul_u32_u24 v%d, 4160, v%d" % (A_, A_))
    a("v_lshrrev_b32 v130, 2, v10")
    a("v_lshl_add_u32 v%d, v130, 3, v%d" % (A_, A_))
    a("v_lshl_add_u32 v%d, v11, 4, v%d" % (A_, A_))
    a("s_mul_i32 s36, s52, %d" % HC_CH)
    a("s_lshl_b32 s37, s53, 8")
    a("s_add_u32 s36, s36, s37")
    a("s_add_u32 s36, s36, %d" % HC)
    a("v_add_u32 v%d, s36, v%d" % (A_, A_))
    a("v_lshlrev_b32 v%d, 5, v10" % B_)
    a("v_lshlrev_b32 v130, 4, v11")
    a("v_sub_u32 v%d, v130, v%d" % (B_, B_))
    a("s_mul_i32 s36, s52, %d" % UR_CH)
    a("s_add_u32 s36, s36, s37")
    a("s_add_u32 s36, s36, %d" % (UR + 480))
    a("v_add_u32 v%d, s36, v%d" % (B_, B_))
    AD = 132
    a("s_lshl_b32 s36, s52, 4")
    a("s_lshr_b32 s37, s63, s36")
    a("s_and_b32 s37, s37, 0xffff")
    a("s_cmp_eq_u32 s53, 0")
    a("s_cselect_b32 s37, s37, 0")
    a("v_lshlrev_b32 v130, 3, v11")
    a("v_add_u32 v130, v130, v10")
    a("v_sub_u32 v130, 15, v130")
    a("v_and_b32 v131, 1, v130")
    a("v_lshlrev_b32 v131, 4, v131")
    a("v_mov_b32 v136, s37")
    a("v_lshlrev_b32 v131, v131, v136")
    a("v_ashrrev_i32 v130, 1, v130")
    for dw in range(4):
        a("v_cmp_eq_u32 vcc, %d, v130" % dw)
        a("v_cndmask_b32 v%d, 0, v131, vcc" % (AD + dw))
    ACC = 136
    a("v_lshlrev_b32 v4, 4, v2")
    a("v_and_b32 v14, 127, v0")
    a("v_lshrrev_b32 v15, 7, v0")
    a("v_lshlrev_b32 v13, 4, v14")
    a("v_lshl_add_u32 v13, v15, 12, v13")
    a("v_lshlrev_b32 v9, 5, v14")
    a("s_lshl_b32 s54, s58, 13")
    a("s_lshl_b32 s55, s52, 12")
    a("s_add_u32 s55, s55, s54")
    a("s_lshl_b32 s50, s53, 11")
    a("s_add_u32 s38, s55, s50")
    a("s_mul_i32 s39, s52, %d" % UR_CH)
    a("s_add_u32 s39, s39, s50")
    a("s_add_u32 s39, s39, %d" % UR)
    a("s_mov_b32 s53, 0x%x" % WS_FLAG)
    a.vmwait("w1")
    a("s_waitcnt lgkmcnt(0)")
    poll(a, [12], 53)
    S(a, "B1")
    a("s_mov_b32 m0, s39")
    a("s_add_u32 s37, s38, 1024")
    a.vm("buffer_load_dwordx4 v4, %s, s38 offen lds" % WS, "ur")
    a("s_add_u32 m0, s39, 1024")
    a.vm("buffer_load_dwordx4 v4, %s, s37 offen lds" % WS, "ur")
    a("s_add_u32 s36, s54, 0x%x" % WS_XT)
    XR = 168; SA = 176
    for g in range(2):
        a.vm("buffer_load_dwordx4 v[%d:%d], v13, %s, s36 offen offset:%d" % (XR + 4 * g, XR + 4 * g + 3, WS, 2048 * g), "ep")
    FR = 16
    for ks in range(28):
        b = 6 if ks < 16 else 7
        a("ds_read_b64_tr_b16 v[%d:%d], v%d offset:%d" % (FR + 4 * ks, FR + 4 * ks + 1, b, (ks & 15) * 4096))
        a("ds_read_b64_tr_b16 v[%d:%d], v%d offset:%d" % (FR + 4 * ks + 2, FR + 4 * ks + 3, b, (ks & 15) * 4096 + 2048))
    srd(a, 40, 24, 25, D * F * 2)
    a("v_lshrrev_b32 v6, 3, v2")
    a("v_and_b32 v7, 7, v2")
    a("v_bfe_u32 v8, v2, 4, 1")
    a("v_lshlrev_b32 v8, 2, v8")
    a("v_xor_b32 v7, v7, v8")
    a("v_mul_u32_u24 v6, 896, v6")
    a("v_lshl_add_u32 v6, v7, 4, v6")
    a("s_mul_i32 s44, s49, %d" % (448 * 896))
    a("s_lshl_b32 s45, s62, 7")
    a("s_add_u32 s44, s44, s45")
    a("s_mul_i32 s45, s49, 20480")
    a("s_add_u32 s45, s45, 32768")
    def w2dma(base_sgpr, i, tag):
        def f():
            a("s_add_u32 m0, s%d, %d" % (base_sgpr, i * 1024))
            a.vm("buffer_load_dwordx4 v6, s[40:43], s44 offen lds", tag)
            a("s_add_u32 s44, s44, %d" % (8 * 896))
        return f
    a.vmwait("ur")
    a("s_waitcnt lgkmcnt(0)")
    a("s_barrier")
    S(a, "URin")
    AB = [0, 32]; BB = [64, 96]
    def readA(st, rho, aa):
        r = AB[st] + 4 * aa
        off = 64 * rho + 512 * aa
        return ["ds_read_b64 a[%d:%d], v%d offset:%d" % (r, r + 1, A_, off),
                "ds_read_b64 a[%d:%d], v%d offset:%d" % (r + 2, r + 3, A_, off + 8)]
    def readB(st, rho, b):
        r = BB[st] + 4 * b
        return ["ds_read_b128 a[%d:%d], v%d offset:%d" % (r, r + 3, B_, 64 * rho + 512 * (7 - b))]
    def mfma(t, areg, breg, av=False):
        c = "0" if av else "v[%d:%d]" % (ACC + 4 * t, ACC + 4 * t + 3)
        return "v_mfma_f32_16x16x32_bf16 v[%d:%d], %s[%d:%d], a[%d:%d], %s" % (ACC + 4 * t, ACC + 4 * t + 3, "v" if av else "a", areg, areg + 3, breg, breg + 3, c)
    def fs_issue():
        a("v_and_b32 v12, 31, v2")
        a("v_add_u32 v12, %d, v12" % FS_IDX)
        a("v_lshlrev_b32 v12, 6, v12")
        a("s_mov_b32 s53, 0x%x" % WS_FLAG)
        a.vm("buffer_load_dword v8, v12, %s, s53 offen sc0 sc1" % WS, "fs")
    def st_load(g, hlf, which):
        def f():
            reg = SA + 16 * which + 8 * g + 4 * hlf
            a("s_mov_b32 s36, 0x%x" % ((WS_STA if which == 0 else WS_STB) + 4096 * g))
            a.vm("buffer_load_dwordx4 v[%d:%d], v9, %s, s36 offen offset:%d" % (reg, reg + 3, WS, 16 * hlf), "ep")
        return f
    def cm_load():
        a("s_lshl_b32 s36, s60, 2")
        a("s_add_u32 s36, s36, s49")
        a("s_lshl_b32 s36, s36, 7")
        a("s_add_u32 s36, s36, 0x%x" % WS_CM)
        a("v_and_b32 v12, 31, v2")
        a("v_lshlrev_b32 v12, 2, v12")
        a.vm("buffer_load_dword v3, v12, %s, s36 offen" % WS, "ep")
    sides = {0: [w2dma(45, i, "w2r1") for i in range(0, 8)],
             1: [fs_issue] + [w2dma(45, i, "w2r1") for i in range(8, 16)],
             2: [w2dma(45, i, "w2r1") for i in range(16, 20)],
             3: [st_load(g, h, w) for g in range(2) for h in range(2) for w in range(2)] + [cm_load]}
    for b in range(8):
        for l in readB(0, 0, b): a(l)
    for aa in range(8):
        for l in readA(0, 0, aa): a(l)
    for rho in range(4):
        st = rho & 1
        nxt = []
        if rho < 3:
            for b in range(8): nxt += readB(1 - st, rho + 1, b)
            for aa in range(8): nxt += readA(1 - st, rho + 1, aa)
        ms = []
        if rho == 0:
            for t in range(8): ms.append((mfma(t, AD, BB[st] + 4 * t, True), None))
        for aa in range(8):
            for t in range(aa, 8):
                ms.append((mfma(t, AB[st] + 4 * aa, BB[st] + 4 * (t - aa)), aa))
        a("s_waitcnt lgkmcnt(%d)" % (15 if rho == 0 else 0))
        if rho == 3:
            poll_late(a, 12, 53, 8, "fs")
        side = list(sides[rho]); step = max(1, len(ms) // (len(side) + 1))
        ni = 0; waited = -1
        for i, (m, aa) in enumerate(ms):
            if rho == 0 and aa is not None and aa > waited and aa <= 1:
                a("s_waitcnt lgkmcnt(%d)" % (14 if aa == 0 else 0))
                waited = aa
            a(m)
            if (rho > 0 or waited == 1) and ni < len(nxt):
                a(nxt[ni]); ni += 1
            if (i + 1) % step == 0 and side:
                side.pop(0)()
        while ni < len(nxt):
            a(nxt[ni]); ni += 1
        while side: side.pop(0)()
    S(a, "conv")
    a("v_lshl_add_u32 v130, v10, 2, v11")
    a("v_bfe_u32 v131, v10, 1, 2")
    a("v_xor_b32 v130, v130, v131")
    a("v_lshlrev_b32 v130, 4, v130")
    a("s_lshl_b32 s36, s49, 13")
    a("s_add_u32 s36, s36, %d" % PB)
    a("v_add_u32 v130, s36, v130")
    a("v_and_b32 v131, 31, v14")
    a("v_lshlrev_b32 v132, 1, v131")
    a("v_bfe_u32 v133, v131, 2, 2")
    a("v_xor_b32 v132, v132, v133")
    a("v_lshlrev_b32 v132, 4, v132")
    a("v_lshrrev_b32 v133, 5, v14")
    a("v_lshl_add_u32 v132, v133, 10, v132")
    a("v_lshl_add_u32 v132, v15, 14, v132")
    if PB: a("v_add_u32 v132, %d, v132" % PB)
    a("v_xor_b32 v133, 16, v132")
    for t in range(8):
        a("ds_write_b128 v130, v[%d:%d] offset:%d" % (ACC + 4 * t, ACC + 4 * t + 3, 1024 * t))
    a.vmwait("ep")
    X = 224
    Z = 208
    a("s_add_u32 s36, s54, 0x%x" % WS_HT)
    a("s_waitcnt lgkmcnt(0)")
    a("s_barrier")
    ZR = [136, 152]
    for g in range(2):
        for hf in range(2):
            a("ds_read_b128 v[%d:%d], v132 offset:%d" % (ZR[g] + 8 * hf, ZR[g] + 8 * hf + 3, hf * 8192 + g * 4096))
            a("ds_read_b128 v[%d:%d], v133 offset:%d" % (ZR[g] + 8 * hf + 4, ZR[g] + 8 * hf + 7, hf * 8192 + g * 4096))
    for g in range(2):
        Xg = 208 + 16 * g
        for i in range(4):
            a("v_lshlrev_b32 v%d, 16, v%d" % (Xg + 2 * i, XR + 4 * g + i))
            a("v_and_b32 v%d, 0xffff0000, v%d" % (Xg + 2 * i + 1, XR + 4 * g + i))
        for i in range(4):
            A2 = SA + 8 * g + 2 * i; B2 = SA + 16 + 8 * g + 2 * i
            a("v_pk_fma_f32 v[%d:%d], v[%d:%d], v[%d:%d], v[%d:%d]" % (Xg + 8 + 2 * i, Xg + 9 + 2 * i, Xg + 2 * i, Xg + 2 * i + 1, A2, A2 + 1, B2, B2 + 1))
    for g in range(2):
        Xg = 208 + 16 * g
        a("s_waitcnt lgkmcnt(%d)" % (4 if g == 0 else 0))
        z = ZR[g]
        for i in range(4):
            a("v_pk_add_f32 v[%d:%d], v[%d:%d], v[%d:%d]" % (z + 2 * i, z + 2 * i + 1, z + 2 * i, z + 2 * i + 1, z + 8 + 2 * i, z + 9 + 2 * i))
        for i in range(4):
            a("v_pk_fma_f32 v[%d:%d], v[%d:%d], v[%d:%d], v[%d:%d]" % (z + 2 * i, z + 2 * i + 1, Xg + 8 + 2 * i, Xg + 9 + 2 * i, z + 2 * i, z + 2 * i + 1, Xg + 2 * i, Xg + 2 * i + 1))
        for i in range(4):
            a("v_cvt_pk_bf16_f32 v%d, v%d, v%d" % (z + 8 + i, z + 2 * i, z + 2 * i + 1))
        a.vm("buffer_store_dwordx4 v[%d:%d], v13, %s, s36 offen offset:%d %s" % (z + 8, z + 11, WS, 2048 * g, SC), "p2st")
    S(a, "p2st")
    S(a, "cs")
    a.vmwait("p2st")
    a("s_barrier")
    a("s_add_u32 s52, s3, %d" % F2_IDX)
    publish(a, 52)
    S(a, "F2pub")
    if cfg.upto == 2:
        a("s_branch L_DONE")
    a("v_bfe_u32 v7, v2, 2, 2")
    a("v_lshrrev_b32 v8, 5, v2")
    a("v_lshl_add_u32 v8, v8, 2, v7")
    a("v_lshlrev_b32 v8, 7, v8")
    a("v_bfe_u32 v7, v2, 3, 1")
    a("v_lshl_add_u32 v8, v7, 6, v8")
    a("v_bfe_u32 v7, v2, 4, 1")
    a("v_lshl_add_u32 v8, v7, 5, v8")
    a("v_and_b32 v7, 3, v2")
    a("v_lshl_add_u32 v8, v7, 3, v8")
    def w2tr_lines(abase, nks, b0, b1):
        out = []
        for ks in range(nks):
            for dt in range(2):
                r = abase + (ks * 2 + dt) * 4
                b = b0 if dt == 0 else b1
                out.append("ds_read_b64_tr_b16 a[%d:%d], v%d offset:%d" % (r, r + 1, b, ks * 2048))
                out.append("ds_read_b64_tr_b16 a[%d:%d], v%d offset:%d" % (r + 2, r + 3, b, ks * 2048 + 1024))
        return out
    a("v_add_u32 v9, s45, v8")
    a("v_xor_b32 v7, 64, v9")
    a("s_lshl_b32 s46, s49, 13")
    a("s_mul_i32 s47, s49, %d" % R2W)
    a("s_add_u32 s47, s47, %d" % R1)
    a.vmwait("w2r1")
    r1reads = w2tr_lines(128, 10, 9, 7)
    a("v_mov_b32 v128, 0x00003f80")
    a("v_mov_b32 v129, 0x3f800000")
    cen = []
    for g in range(28):
        for i in range(4):
            r = FR + 4 * g + i; t = 132 + 8 * (g & 1) + 2 * i
            cen.append("v_dot2_f32_bf16 v%d, v%d, v128, v3" % (t, r))
            cen.append("v_dot2_f32_bf16 v%d, v%d, v129, v3" % (t + 1, r))
        if g > 0:
            for i in range(4):
                r = FR + 4 * (g - 1) + i; t = 132 + 8 * ((g - 1) & 1) + 2 * i
                cen.append("v_cvt_pk_bf16_f32 v%d, v%d, v%d" % (r, t, t + 1))
    for i in range(4):
        cen.append("s_nop 0")
    for i in range(4):
        r = FR + 4 * 27 + i; t = 132 + 8 * (27 & 1) + 2 * i
        cen.append("v_cvt_pk_bf16_f32 v%d, v%d, v%d" % (r, t, t + 1))
    side = [w2dma(46, i, "w2r2") for i in range(8)] + [w2dma(47, i, "w2r2") for i in range(12)]
    rd = [(lambda l: (lambda: a(l)))(l) for l in r1reads]
    mixed = []
    while side or rd:
        if side: mixed.append(side.pop(0))
        for _ in range(2):
            if rd: mixed.append(rd.pop(0))
    interleave(a, cen, mixed, 5)
    S(a, "cen")
    a("v_lshrrev_b32 v12, 4, v2")
    a("v_and_b32 v13, 15, v2")
    a("v_lshlrev_b32 v14, 2, v12")
    a("v_xor_b32 v13, v13, v14")
    a("v_lshlrev_b32 v12, 12, v12")
    a("v_lshl_add_u32 v10, v13, 4, v12")
    a("v_lshlrev_b32 v12, 6, v2")
    a("v_add_u32 v13, %d, v12" % (64 * 64))
    a("v_add_u32 v14, %d, v12" % (128 * 64))
    a("v_min_u32 v15, 31, v2")
    a("v_lshlrev_b32 v15, 6, v15")
    a("v_add_u32 v15, %d, v15" % (192 * 64))
    a("v_mov_b32 v128, v5")
    for i in range(1, 4):
        a("v_xor_b32 v%d, %d, v5" % (128 + i, i << 6))
    ACC3 = 136
    HB = [168, 176]
    a("v_add_u32 v9, s46, v8")
    a("v_xor_b32 v7, 64, v9")
    a("v_add_u32 v11, s47, v8")
    a("v_xor_b32 v3, 64, v11")
    a.vmwait("w2r2")
    S(a, "w2a_in")
    for l in w2tr_lines(0, 4, 9, 7): a(l)
    for l in w2tr_lines(32, 6, 11, 3): a(l)
    a("s_lshl_b32 s38, s49, 14")
    a("s_lshl_b32 s39, s59, 8")
    a("s_add_u32 s38, s38, s39")
    a("s_add_u32 s38, s38, 0x%x" % WS_HT)
    a("s_lshl_b32 s39, s49, 10")
    a("s_mov_b32 s53, 0x%x" % (WS_FLAG + F2_IDX * 64))
    a("s_waitcnt lgkmcnt(0)")
    S(a, "w2a_tr")
    poll(a, [12, 13, 14, 15], 53)
    S(a, "B2")
    def hdma(ks):
        a("s_add_u32 m0, s39, %d" % (ks * 4096))
        a.vm("buffer_load_dwordx4 v10, %s, s38 offen lds" % WS, "h%d" % ks)
        if ks != 27: a("s_add_u32 s38, s38, %d" % (16 * 4096))
    for ks in range(cfg.hpre): hdma(ks)
    S(a, "h_iss")
    lab = a.label("EPO")
    a("s_or_b32 s52, s3, s49")
    a("s_cmp_lg_u32 s52, 0")
    a("s_cbranch_scc1 %s" % lab)
    a("s_mov_b32 s52, %d" % E_IDX)
    publish(a, 52)
    a(lab + ":")
    NB = 3
    HBUF = 200
    def hreads(ks, ps):
        out = []
        for i in range(2):
            r = HBUF + (ks % NB) * 8 + 4 * i
            vb = 128 + 2 * ps + i
            tag = "hr%d_%d_%d" % (ps, ks, i)
            out.append(("ds_read_b64_tr_b16 v[%d:%d], v%d offset:%d" % (r, r + 1, vb, (ks & 15) * 4096), tag))
            out.append(("ds_read_b64_tr_b16 v[%d:%d], v%d offset:%d" % (r + 2, r + 3, vb, (ks & 15) * 4096 + 2048), tag))
        return out
    ACCP = [136, 168]
    issued = cfg.hpre
    sync = {0: 1, 2: 4, 5: 8, 9: 13, 14: 19, 20: 27}
    r3reads = w2tr_lines(80, 6, 11, 3)
    for ps in range(2):
        acc = ACCP[ps]
        if ps == 0:
            a.vmwait("h1"); a("s_barrier")
            S(a, "h_in")
        for k0 in range(NB - 1):
            for l, t in hreads(k0, ps): a.lk(l, t)
        for ks in range(28):
            if ps == 0 and ks == 14: S(a, "ps0_14")
            kn = ks + NB - 1
            nxt = []
            if kn < 28:
                if ps == 0 and kn in sync and kn > 0:
                    while issued <= sync[kn]:
                        hdma(issued); issued += 1
                    a.vmwait("h%d" % sync[kn]); a("s_barrier")
                if kn == 16:
                    for i in range(2): a("v_add_u32 v%d, 0x10000, v%d" % (128 + 2 * ps + i, 128 + 2 * ps + i))
                nxt = hreads(kn, ps)
            for i in range(2):
                a.lkwait("hr%d_%d_%d" % (ps, ks, i))
                r = HBUF + (ks % NB) * 8 + 4 * i
                a("v_mfma_f32_32x32x16_bf16 v[%d:%d], v[%d:%d], v[%d:%d], %s" % (acc + 16 * i, acc + 16 * i + 15, FR + 4 * ks, FR + 4 * ks + 3, r, r + 3, "0" if ks == 0 else "v[%d:%d]" % (acc + 16 * i, acc + 16 * i + 15)))
                if nxt:
                    a.lk(*nxt[2 * i]); a.lk(*nxt[2 * i + 1])
            if ps == 0 and issued < 28:
                hdma(issued); issued += 1
            if ps == 1 and ks % 2 == 0 and ks // 2 < 12:
                w2dma(47, ks // 2, "w2r3")()
            if ps == 1 and ks == cfg.pubA:
                a.vmwait("p3a")
                a("s_barrier")
                a("s_lshl_b32 s37, s59, 4")
                a("s_add_u32 s37, s37, s60")
                a("s_add_u32 s37, s37, %d" % F3_IDX)
                publish(a, 37)
            if ps == 1 and ks == 24:
                a("v_min_u32 v15, 13, v2")
                a("v_lshlrev_b32 v15, 6, v15")
                a("s_lshr_b32 s36, s61, 1")
                a("s_lshl_b32 s38, s36, 10")
                a("s_add_u32 s38, s38, 0x%x" % (WS_FLAG + F3_IDX * 64))
                a.vm("buffer_load_dword v14, v15, %s, s38 offen sc0 sc1" % WS, "f3a")
        S(a, "ps%d" % ps)
        if ps == 0:
            a("s_lshl_b32 s53, s60, 2")
            a("s_add_u32 s53, s53, s49")
            a("s_lshl_b32 s53, s53, 11")
            a("s_add_u32 s53, s53, 0x%x" % WS_H1F)
        for i in range(2):
            a("s_lshl_b32 s52, s59, 2")
            a("s_add_u32 s52, s52, %d" % (2 * ps + i))
            a("s_mul_i32 s52, s52, %d" % (112 * 1024))
            a("s_add_u32 s52, s52, s53")
            o = 224 + 8 * i
            for q in range(8):
                a("v_cvt_pk_bf16_f32 v%d, v%d, v%d" % (o + q, acc + 16 * i + 2 * q, acc + 16 * i + 2 * q + 1))
            for q in range(8):
                a("v_pk_max_i16 v%d, v%d, 0" % (o + q, o + q))
            a.vm("buffer_store_dwordx4 v[%d:%d], v4, %s, s52 offen %s" % (o, o + 3, WS, SC), "p3a" if ps == 0 else "p3st")
            a.vm("buffer_store_dwordx4 v[%d:%d], v4, %s, s52 offen offset:1024 %s" % (o + 4, o + 7, WS, SC), "p3a" if ps == 0 else "p3st")
        S(a, "ps%de" % ps)
    S(a, "P3mm")
    a("s_lshl_b32 s52, s49, 6")
    a("v_xor_b32 v12, s52, v5")
    a("s_lshl_b32 s52, s60, 13")
    a("v_add_u32 v12, s52, v12")
    for k in range(2):
        a("ds_read_b64_tr_b16 v[%d:%d], v12 offset:%d" % (200 + 4 * k, 201 + 4 * k, k * 4096))
        a("ds_read_b64_tr_b16 v[%d:%d], v12 offset:%d" % (202 + 4 * k, 203 + 4 * k, k * 4096 + 2048))
    a.vmwait("w2r3") if False else None
    a("s_waitcnt vmcnt(%d)" % (a.vmcount() - 1 - max(i for i, t in enumerate(a.vmlist) if t == "w2r3")))
    for l in r3reads: a(l)
    a.vmwait("p3st")
    a("s_waitcnt lgkmcnt(0)")
    a("s_barrier")
    a("s_lshl_b32 s50, s59, 4")
    a("s_add_u32 s50, s50, s60")
    a("s_add_u32 s37, s50, %d" % F3B_IDX)
    publish(a, 37)
    S(a, "F3pub")
    if cfg.upto == 3:
        a("s_branch L_DONE")
    RING = 30; RB = 80
    a("s_lshr_b32 s36, s61, 1")
    a("s_lshl_b32 s36, s36, 2")
    a("s_and_b32 s39, s61, 1")
    a("s_add_u32 s36, s36, s39")
    a("s_mul_i32 s39, s49, %d" % (28 * 1024))
    a("s_mul_i32 s37, s36, %d" % (112 * 1024))
    a("s_add_u32 s39, s39, s37")
    a("s_add_u32 s39, s39, 0x%x" % WS_H1F)
    def hload(j):
        st, ks = divmod(j, 28)
        r = RB + (j % RING) * 4
        if j == 28: a("s_add_u32 s39, s39, %d" % (2 * 112 * 1024 - 28 * 1024))
        a.vm("buffer_load_dwordx4 v[%d:%d], v4, %s, s39 offen offset:%d" % (r, r + 3, WS, (ks % 4) * 1024), "H%d" % j)
        if ks % 4 == 3: a("s_add_u32 s39, s39, 4096")
    poll_late(a, 15, 38, 14, "f3a")
    S(a, "B3")
    for j in range(cfg.Hpre): hload(j)
    S(a, "H_iss")
    for i in range(4): w2dma(47, i, "w2r4")()
    a("v_mov_b32 v208, 0x3f803f80")
    for i in range(4): a("v_mov_b32 v%d, 0" % (210 + i))
    for i in range(8):
        a("v_dot2_f32_bf16 v%d, v%d, v208, v%d" % (210 + 2 * (i & 1), 200 + i, 210 + 2 * (i & 1)))
        a("v_dot2_f32_bf16 v%d, v%d, v%d, v%d" % (211 + 2 * (i & 1), 200 + i, 200 + i, 211 + 2 * (i & 1)))
    a("v_pk_add_f32 v[210:211], v[210:211], v[212:213]")
    a("v_mov_b32 v212, v210")
    a("v_mov_b32 v213, v211")
    a("v_permlane32_swap_b32 v210, v212")
    a("v_permlane32_swap_b32 v211, v213")
    a("v_pk_add_f32 v[210:211], v[210:211], v[212:213]")
    a("s_lshl_b32 s52, s59, 2")
    a("s_add_u32 s52, s52, s49")
    a("s_lshl_b32 s52, s52, 8")
    a("s_lshl_b32 s50, s60, 14")
    a("s_add_u32 s52, s52, s50")
    a("s_add_u32 s52, s52, 0x%x" % WS_ST2P)
    a("v_and_b32 v12, 31, v2")
    a("v_lshlrev_b32 v12, 3, v12")
    a("s_mov_b32 exec_hi, 0")
    a.vm("buffer_store_dwordx2 v[210:211], v12, %s, s52 offen %s" % (WS, SC), "st2p")
    a("s_mov_b64 exec, -1")
    a("v_lshrrev_b32 v12, 3, v2")
    a("v_and_b32 v13, 7, v2")
    a("v_bfe_u32 v10, v2, 4, 1")
    a("v_lshlrev_b32 v10, 2, v10")
    a("v_xor_b32 v13, v13, v10")
    a("v_lshlrev_b32 v12, 12, v12")
    a("v_lshrrev_b32 v10, 2, v13")
    a("v_lshl_add_u32 v12, v10, 7, v12")
    a("v_and_b32 v13, 3, v13")
    a("v_lshl_add_u32 v12, v13, 4, v12")
    a("s_lshl_b32 s45, s62, 6")
    a("s_lshl_b32 s46, s49, 4")
    a("s_add_u32 s45, s45, s46")
    a("s_lshl_b32 s45, s45, 12")
    a("s_lshl_b32 s46, s36, 6")
    a("s_add_u32 s45, s45, s46")
    a("s_add_u32 s45, s45, 0x%x" % WS_HT)
    a("s_lshl_b32 s46, s49, 11")
    a("s_add_u32 s46, s46, %d" % HRES)
    def hres(i):
        a("s_add_u32 m0, s46, %d" % (i * 1024))
        a.vm("buffer_load_dwordx4 v12, %s, s45 offen lds" % WS, "hres")
        if i == 0: a("s_add_u32 s45, s45, %d" % (8 * 4096))
    ACC4 = 16
    a("s_and_b32 s47, s49, 1")
    a("s_lshr_b32 s63, s49, 1")
    a("s_lshl_b32 s52, s47, 1")
    a("s_add_u32 s36, s36, s52")
    a("v_and_b32 v13, 31, v2")
    a("v_lshlrev_b32 v10, 3, v13")
    a("s_add_u32 s38, s38, %d" % ((F3B_IDX - F3_IDX) * 64))
    SP = 200
    def st2load(f):
        a.vm("buffer_load_dwordx2 v[%d:%d], v10, %s, s37 offen" % (SP + 2 * f, SP + 2 * f + 1, WS), "st2")
        if f != 13: a("s_add_u32 s37, s37, 16384")
    issued = cfg.Hpre
    r4reads = w2tr_lines(208, 2, 11, 3)
    S(a, "w2b_tr")
    for j in range(56):
        st, ks = divmod(j, 28)
        if j == cfg.chkB - 6:
            a.vm("buffer_load_dword v14, v15, %s, s38 offen sc0 sc1" % WS, "f3b")
        if j == cfg.chkB:
            poll_late(a, 15, 38, 14, "f3b")
            S(a, "out_stX")
        a.vmwait("H%d" % j)
        S(a, "H%d" % {0: 0, 14: 7, 28: 14, 42: 21, 55: 27}.get(j, 99))
        r = RB + (j % RING) * 4
        ab = 128 + ks * 8 if ks < 10 else (ks - 10) * 8 if ks < 26 else 208 + (ks - 26) * 8
        for dt in range(2):
            t = dt * 2 + st
            a("v_mfma_f32_32x32x16_bf16 v[%d:%d], a[%d:%d], v[%d:%d], %s" % (ACC4 + 16 * t, ACC4 + 16 * t + 15, ab + 4 * dt, ab + 4 * dt + 3, r, r + 3, "0" if ks == 0 else "v[%d:%d]" % (ACC4 + 16 * t, ACC4 + 16 * t + 15)))
            if issued < (56 if j >= cfg.chkB else 28) and issued < j + RING and (j >= cfg.chkB or dt == 0):
                hload(issued); issued += 1
        if j == 8:
            a.vmwait("st2p")
            a("s_barrier")
            a("s_lshl_b32 s37, s59, 4")
            a("s_add_u32 s37, s37, s60")
            a("s_add_u32 s37, s37, %d" % F3C_IDX)
            publish(a, 37)
        if j == 30:
            a("s_add_u32 s48x, s38, 0" if False else "s_add_u32 s43, s38, %d" % ((F3C_IDX - F3B_IDX) * 64))
            a.vm("buffer_load_dword v14, v15, %s, s43 offen sc0 sc1" % WS, "f3c")
        if j == 33:
            poll_late(a, 15, 43, 14, "f3c")
            a("s_lshl_b32 s37, s36, 8")
            a("s_add_u32 s37, s37, 0x%x" % WS_ST2P)
        if j == 12:
            a.vmwait("w2r4")
            for l in r4reads: a(l)
        if j == 20: a("s_waitcnt lgkmcnt(0)")
        if j in (30, 31): hres(j - 30)
        if 34 <= j < 41:
            st2load(2 * (j - 34)); st2load(2 * (j - 34) + 1)
        if j == 50:
            a.vmwait("st2")
            for f in range(1, 14):
                a("v_pk_add_f32 v[%d:%d], v[%d:%d], v[%d:%d]" % (SP, SP + 1, SP, SP + 1, SP + 2 * f, SP + 2 * f + 1))
            a("v_mul_f32 v%d, 0x3b124925, v%d" % (SP, SP))
            a("v_mul_f32 v%d, 0x3b124925, v%d" % (SP + 1, SP + 1))
            a("v_fma_f32 v%d, -v%d, v%d, v%d" % (SP + 1, SP, SP, SP + 1))
            a("v_max_f32 v%d, 0, v%d" % (SP + 1, SP + 1))
            a("v_add_f32 v%d, 0x3727c5ac, v%d" % (SP + 1, SP + 1))
            a("v_rsq_f32 v248, v%d" % (SP + 1))
    a("s_lshl_b32 s52, s49, 14")
    a("v_add_u32 v14, s52, v4")
    a("s_nop 9")
    lab_t = [a.label("RW") for _ in range(5)]
    for t in range(4):
        a("s_cmp_eq_u32 s49, %d" % t)
        a("s_cbranch_scc1 %s" % lab_t[t])
        for q in range(4):
            a("ds_write_b128 v14, v[%d:%d] offset:%d" % (ACC4 + 16 * t + 4 * q, ACC4 + 16 * t + 4 * q + 3, t * 4096 + q * 1024))
        a(lab_t[t] + ":")
    for t in range(4):
        lab = a.label("OWN")
        a("s_cmp_lg_u32 s49, %d" % t)
        a("s_cbranch_scc1 %s" % lab)
        for i in range(0, 16, 2):
            a("v_pk_add_f32 v[%d:%d], v[%d:%d], 0" % (80 + i, 81 + i, ACC4 + 16 * t + i, ACC4 + 16 * t + i + 1) if False else "v_mov_b32 v%d, v%d\nv_mov_b32 v%d, v%d" % (80 + i, ACC4 + 16 * t + i, 81 + i, ACC4 + 16 * t + i + 1))
        a(lab + ":")
    S(a, "red_w")
    a("s_lshl_b32 s52, s47, 6")
    a("v_xor_b32 v15, s52, v8")
    a("s_lshl_b32 s52, s63, 12")
    a("s_add_u32 s52, s52, %d" % HRES)
    a("v_add_u32 v15, s52, v15")
    a("s_waitcnt lgkmcnt(0)")
    a("s_barrier")
    S(a, "red_b")
    T = 96
    for d in range(1, 4):
        a("s_add_u32 s52, s49, %d" % d)
        a("s_and_b32 s52, s52, 3")
        a("s_lshl_b32 s52, s52, 14")
        a("s_lshl_b32 s53, s49, 12")
        a("s_add_u32 s52, s52, s53")
        a("v_add_u32 v%d, s52, v4" % (9 + d))
    for d in range(1, 4):
        for q in range(4):
            a("ds_read_b128 v[%d:%d], v%d offset:%d" % (T + 16 * (d - 1) + 4 * q, T + 16 * (d - 1) + 4 * q + 3, 9 + d, q * 1024))
    for j4 in range(4):
        a("ds_read_b64_tr_b16 v[%d:%d], v15 offset:%d" % (240 + 2 * j4, 241 + 2 * j4, j4 * 1024))
    srd(a, 40, 26, 27, NB_SD)
    a("v_mul_u32_u24 v7, 896, v13")
    a("v_lshrrev_b32 v9, 5, v2")
    a("v_lshl_add_u32 v7, v9, 4, v7")
    a("s_mul_i32 s52, s36, %d" % (32 * 896))
    a("s_lshl_b32 s53, s62, 1")
    a("s_add_u32 s53, s53, s63")
    a("s_lshl_b32 s53, s53, 6")
    a("s_add_u32 s52, s52, s53")
    a("s_waitcnt lgkmcnt(12)")
    for i in range(0, 16, 2):
        a("v_pk_add_f32 v[%d:%d], v[%d:%d], v[%d:%d]" % (80 + i, 81 + i, 80 + i, 81 + i, T + i, T + i + 1))
    a("s_waitcnt lgkmcnt(4)")
    for i in range(0, 16, 2):
        a("v_pk_add_f32 v[%d:%d], v[%d:%d], v[%d:%d]" % (T + 16 + i, T + 17 + i, T + 16 + i, T + 17 + i, T + 32 + i, T + 33 + i))
    for i in range(0, 16, 2):
        a("v_pk_add_f32 v[%d:%d], v[%d:%d], v[%d:%d]" % (80 + i, 81 + i, 80 + i, 81 + i, T + 16 + i, T + 17 + i))
    a("s_waitcnt lgkmcnt(0)")
    S(a, "red_r")
    for dw in range(8):
        hx = 160 + 2 * dw
        a("v_lshlrev_b32 v%d, 16, v%d" % (hx, 240 + dw))
        a("v_and_b32 v%d, 0xffff0000, v%d" % (hx + 1, 240 + dw))
        a("v_pk_fma_f32 v[%d:%d], v[%d:%d], v[248:249], v[%d:%d] op_sel_hi:[1,0,1]" % (hx, hx + 1, 80 + 2 * dw, 81 + 2 * dw, hx, hx + 1))
        a("v_cvt_pk_bf16_f32 v%d, v%d, v%d" % (180 + dw, hx, hx + 1))
    for jp in range(2):
        A0 = 180 + 4 * jp
        a("v_permlane32_swap_b32 v%d, v%d" % (A0, A0 + 2))
        a("v_permlane32_swap_b32 v%d, v%d" % (A0 + 1, A0 + 3))
    a("buffer_store_dwordx4 v[180:183], v7, s[40:43], s52 offen")
    a("buffer_store_dwordx4 v[184:187], v7, s[40:43], s52 offen offset:32")
    S(a, "out_st")
    a("L_DONE:")
    if common.STAMPS:
        fstamp_flush(a)
    a("L_END:")
    a("s_endpgm")
    gen_stats(a)
    return a.lines, dict(vgpr=256, sgpr=102, lds=LDS_TOTAL, grid=256, agpr=256)

def build(out, cfg=Cfg):
    lines, info = gen(cfg)
    lines = fix_hazards(lines, verbose=True)
    txt = ["; generated by a hand-written generator (gen/fused8.py)",
           "; @launch grid=(%d,1,1) block=(256,1,1) lds=%d" % (info["grid"], info["lds"]),
           '.amdgcn_target "amdgcn-amd-amdhsa--gfx950"', ".text"]
    txt += lines
    txt.append('.section .rodata,"a"')
    txt += kernel_desc(KN, info["vgpr"], info["sgpr"], accum=256, agpr=info["agpr"])
    open(out, "w").write("\n".join(txt) + "\n")

if __name__ == "__main__":
    import sys, os
    common.STAMPS = int(os.environ.get("STAMPS", "0"))
    out = sys.argv[1]
    for kv in sys.argv[2:]:
        k, v = kv.split("=")
        setattr(Cfg, k, int(v))
    build(out)
```

```python
from common import *
F3C_IDX = 1280
import common
from fused import fstamp_flush, publish, poll, token, KN, S_T, S_WAVE, WS
import fused

SC = "sc1"
R0 = 0
R1 = 114688
HC = R1; HC_CH = 4 * 4160; UR = HC + 2 * HC_CH; UR_CH = 4608
LDS_TOTAL = 163840
R2W = 12288
HRES = 65536
PB = R0
WS_CM = 0x1330000
WS_ST2P = 0x1340000

class Cfg:
    cpre = 0
    slp = 0
    pubA = 16
    chkB = 17
    w1pre = 8
    sset = 0
    upto = 4
    wpre = 1
    hpre = 16
    Hpre = 14

SETS = {
 0: ["start","ldiss","k_in","p1st","F1pub","prepoll","B1","URin","conv","p2st","F2pub","B2","h_in","P3mm","F3pub","B3"],
 1: ["start","B3","H_iss","H0","H7","H14","H21","H27","red_w","red_b","red_r","out_st", "F3pub", "w2b_iss", "w2b_in", "w2b_tr"],
 2: ["start","p2st","cs","F2pub","cen","w2a_in","w2a_tr","B2","h_iss","h_in","ps0_14","ps0","ps0e","ps1","ps1e","F3pub"],
}
def S(a, name):
    names = SETS[Cfg.sset]
    if name in names: stamp(a, names.index(name))

def poll_late(a, vaddr, soff_sgpr, reg, tag):
    lp = a.label("POLL"); done = a.label("PDONE")
    a.vmwait(tag)
    a("v_cmp_ne_u32 vcc, s%d, v%d" % (S_T, reg))
    a("s_nop 4")
    a("s_cmp_eq_u64 vcc, 0")
    a("s_cbranch_scc1 %s" % done)
    a("s_mov_b32 s51, 0")
    a(lp + ":")
    if Cfg.slp: a("s_sleep %d" % Cfg.slp)
    a("buffer_load_dword v%d, v%d, %s, s%d offen sc0 sc1" % (reg, vaddr, WS, soff_sgpr))
    a("s_waitcnt vmcnt(0)")
    a("v_cmp_ne_u32 vcc, s%d, v%d" % (S_T, reg))
    a("s_nop 4")
    a("s_cmp_eq_u64 vcc, 0")
    a("s_cbranch_scc1 %s" % done)
    a("s_add_u32 s51, s51, 1")
    a("s_cmp_lt_u32 s51, 0x40000")
    a("s_cbranch_scc1 %s" % lp)
    a(done + ":")

def interleave(a, main, side, every):
    si = 0
    for i, l in enumerate(main):
        a(l)
        if (i + 1) % every == 0 and si < len(side):
            side[si](); si += 1
    while si < len(side):
        side[si](); si += 1

def gen_stats(a):
    a("L_STATS:")
    a("v_and_b32 v1, 7, v0")
    a("v_lshrrev_b32 v2, 3, v0")
    a("s_mul_i32 s52, s2, %d" % (64 * 896))
    a("v_lshrrev_b32 v3, 3, v2")
    a("v_and_b32 v4, 7, v2")
    a("v_lshl_add_u32 v5, v3, 4, v4")
    a("v_mul_u32_u24 v6, 896, v5")
    a("v_lshl_add_u32 v6, v1, 4, v6")
    a("v_add_u32 v6, s52, v6")
    a("v_add_u32 v7, %d, v6" % (8 * 896))
    srd(a, 36, 8, 9, NB_SD)
    for p in range(2):
        for i in range(7):
            r = 16 + (p * 7 + i) * 4
            a("buffer_load_dwordx4 v[%d:%d], v%d, s[36:39], 0 offen offset:%d" % (r, r + 3, 6 + p, i * 128))
    srd(a, 40, 22, 23, D * F * 2)
    a("v_mul_u32_u24 v10, 3584, v2")
    a("v_lshl_add_u32 v10, v1, 4, v10")
    a("s_lshl_b32 s52, s2, 7")
    a("s_cmp_lt_u32 s2, 28")
    a("s_cselect_b32 s52, s52, 0x40000000")
    for i in range(14):
        a("buffer_load_dwordx4 v[%d:%d], v10, s[40:43], s52 offen" % (100 + 4 * i, 103 + 4 * i))
        if i != 13: a("s_add_u32 s52, s52, %d" % (32 * 3584))
    a("v_mov_b32 v8, 0x3f803f80")
    for r in range(80, 88): a("v_mov_b32 v%d, 0" % r)
    for p in range(2):
        for i in range(7):
            a("s_waitcnt vmcnt(%d)" % (27 - (p * 7 + i)))
            for c in range(4):
                r = 16 + (p * 7 + i) * 4 + c
                o = 80 + 4 * p + 2 * (c & 1)
                a("v_dot2_f32_bf16 v%d, v%d, v8, v%d" % (o, r, o))
                a("v_dot2_f32_bf16 v%d, v%d, v%d, v%d" % (o + 1, r, r, o + 1))
    for p in range(2):
        a("v_add_f32 v%d, v%d, v%d" % (80 + 4 * p, 80 + 4 * p, 82 + 4 * p))
        a("v_add_f32 v%d, v%d, v%d" % (81 + 4 * p, 81 + 4 * p, 83 + 4 * p))
    for mod in ("quad_perm:[1,0,3,2]", "quad_perm:[2,3,0,1]", "row_half_mirror"):
        for r in (80, 81, 84, 85):
            a("v_add_f32_dpp v%d, v%d, v%d %s row_mask:0xf bank_mask:0xf" % (r, r, r, mod))
    for p in range(2):
        s_, q_ = 80 + 4 * p, 81 + 4 * p
        a("v_mul_f32 v%d, 0x3b124925, v%d" % (s_, s_))
        a("v_mul_f32 v%d, 0x3b124925, v%d" % (q_, q_))
        a("v_fma_f32 v%d, -v%d, v%d, v%d" % (q_, s_, s_, q_))
        a("v_max_f32 v%d, 0, v%d" % (q_, q_))
        a("v_add_f32 v%d, 0x3727c5ac, v%d" % (q_, q_))
        a("v_rsq_f32 v%d, v%d" % (88 + 2 * p, q_))
        a("v_mul_f32 v%d, v%d, v%d" % (89 + 2 * p, s_, 88 + 2 * p))
        a("v_sub_f32 v%d, 0, v%d" % (89 + 2 * p, 89 + 2 * p))
    a("s_lshl_b32 s52, s2, 8")
    a("s_add_u32 s52, s52, 0x%x" % WS_STA)
    a("s_add_u32 s53, s52, 8192")
    a("v_lshlrev_b32 v9, 2, v5")
    a("v_cmp_eq_u32 vcc, 0, v1")
    a("s_and_saveexec_b64 s[54:55], vcc")
    a("buffer_store_dword v88, v9, %s, s52 offen %s" % (WS, SC))
    a("buffer_store_dword v89, v9, %s, s53 offen %s" % (WS, SC))
    a("buffer_store_dword v90, v9, %s, s52 offen offset:32 %s" % (WS, SC))
    a("buffer_store_dword v91, v9, %s, s53 offen offset:32 %s" % (WS, SC))
    a("s_mov_b64 exec, s[54:55]")
    a("v_mov_b32 v8, 0x00003f80")
    a("v_mov_b32 v9, 0x3f800000")
    for r in range(16, 24): a("v_mov_b32 v%d, 0" % r)
    for i in range(14):
        a("s_waitcnt vmcnt(%d)" % (13 - i + 4))
        for c in range(4):
            a("v_dot2_f32_bf16 v%d, v%d, v8, v%d" % (16 + 2 * c, 100 + 4 * i + c, 16 + 2 * c))
            a("v_dot2_f32_bf16 v%d, v%d, v9, v%d" % (17 + 2 * c, 100 + 4 * i + c, 17 + 2 * c))
    a("v_lshlrev_b32 v24, 8, v2")
    a("v_lshl_add_u32 v24, v1, 5, v24")
    a("ds_write_b128 v24, v[16:19]")
    a("ds_write_b128 v24, v[20:23] offset:16")
    a("v_and_b32 v25, 63, v0")
    a("v_lshrrev_b32 v26, 6, v0")
    a("v_lshlrev_b32 v27, 11, v26")
    a("v_lshl_add_u32 v27, v25, 2, v27")
    a("s_waitcnt lgkmcnt(0)")
    a("s_barrier")
    for i in range(8):
        a("ds_read_b32 v%d, v27 offset:%d" % (28 + i, i * 256))
    a("s_waitcnt lgkmcnt(0)")
    for i in range(1, 8):
        a("v_add_f32 v28, v28, v%d" % (28 + i))
    a("v_lshlrev_b32 v27, 8, v26")
    a("v_lshl_add_u32 v27, v25, 2, v27")
    a("ds_write_b32 v27, v28 offset:8192")
    a("v_lshlrev_b32 v27, 2, v25")
    a("s_waitcnt lgkmcnt(0)")
    a("s_barrier")
    for i in range(4):
        a("ds_read_b32 v%d, v27 offset:%d" % (28 + i, 8192 + i * 256))
    a("s_waitcnt lgkmcnt(0)")
    a("v_add_f32 v28, v28, v29")
    a("v_add_f32 v30, v30, v31")
    a("v_add_f32 v28, v28, v30")
    a("v_mul_f32 v28, 0xbb124925, v28")
    lab = a.label("NOCM")
    a("s_cmp_ge_u32 s2, 28")
    a("s_cbranch_scc1 %s" % lab)
    a("s_cmp_lg_u32 s49, 0")
    a("s_cbranch_scc1 %s" % lab)
    a("s_lshl_b32 s52, s2, 8")
    a("s_add_u32 s52, s52, 0x%x" % WS_CM)
    a("buffer_store_dword v28, v27, %s, s52 offen %s" % (WS, SC))
    a(lab + ":")
    a("s_waitcnt vmcnt(0) lgkmcnt(0)")
    token(a)
    a("s_barrier")
    a("s_add_u32 s52, s2, %d" % FS_IDX)
    publish(a, 52)
    S(a, "B3")
    fstamp_flush(a)
    a("s_endpgm")

def gen(cfg=Cfg):
    a = Asm()
    for l in kernel_header(KN): a(l)
    a("s_load_dwordx16 s[8:23], s[0:1], 0")
    a("s_load_dwordx8 s[24:31], s[0:1], 64")
    S(a, "start")
    a("s_cmp_ge_u32 s2, 256")
    a("s_cbranch_scc1 L_END")
    a("v_lshrrev_b32 v1, 6, v0")
    a("v_and_b32 v2, 63, v0")
    a("v_readfirstlane_b32 s49, v1")
    a("s_mov_b32 s50, 0x%x" % (WS_FLAG + E_IDX * 64))
    a("s_sub_u32 s3, s2, 32")
    a("s_mul_i32 s56, s3, 9363")
    a("s_lshr_b32 s56, s56, 16")
    a("s_mul_i32 s57, s56, 7")
    a("s_sub_u32 s57, s3, s57")
    a("s_and_b32 s52, s3, 7")
    a("s_lshr_b32 s53, s3, 3")
    a("s_mul_i32 s58, s52, 28")
    a("s_add_u32 s58, s58, s53")
    a("s_lshr_b32 s59, s52, 1")
    a("s_lshl_b32 s59, s59, 2")
    a("s_and_b32 s54, s53, 3")
    a("s_add_u32 s59, s59, s54")
    a("s_and_b32 s60, s52, 1")
    a("s_mul_i32 s60, s60, 7")
    a("s_lshr_b32 s55, s53, 2")
    a("s_add_u32 s60, s60, s55")
    a("s_lshl_b32 s61, s52, 2")
    a("s_add_u32 s61, s61, s54")
    a("s_mov_b32 s62, s55")
    a("v_and_b32 v1, 7, v0")
    a("v_lshrrev_b32 v14, 3, v0")
    a("s_mul_i32 s52, s56, %d" % (64 * 896))
    a("s_lshl_b32 s53, s57, 7")
    a("s_add_u32 s52, s52, s53")
    a("v_mul_u32_u24 v8, %d, v14" % (2 * 896))
    a("v_lshl_add_u32 v8, v1, 4, v8")
    a("v_add_u32 v8, s52, v8")
    for j in range(5):
        d = (j - 3) * 896
        if d < 0: a("v_subrev_u32 v%d, %d, v8" % (3 + j, -d))
        else: a("v_add_u32 v%d, %d, v8" % (3 + j, d))
    a("s_lshl_b32 s53, s57, 9")
    a("v_lshl_add_u32 v9, v1, 6, s53")
    a("s_waitcnt lgkmcnt(0)")
    a("s_load_dword s48, s[30:31], s50")
    srd(a, 32, 30, 31, WS_STAMP)
    a("s_cmp_lt_u32 s2, 32")
    a("s_cbranch_scc1 L_STATS")
    srd(a, 36, 10, 11, NB_SD)
    srd(a, 44, 12, 13, NB_SD)
    srd(a, 40, 14, 15, 448 * 4 * 2)
    srd(a, 4, 8, 9, NB_SD)
    for j in range(5):
        a.vm("buffer_load_dwordx4 v[%d:%d], v%d, s[36:39], 0 offen" % (16 + 4 * j, 19 + 4 * j, 3 + j), "k")
    for j in range(4):
        a.vm("buffer_load_dwordx4 v[%d:%d], v9, s[40:43], 0 offen offset:%d" % (52 + 4 * j, 55 + 4 * j, 16 * j), "k")
    a.vm("buffer_load_dwordx4 v[36:39], v8, s[44:47], 0 offen", "v")
    a.vm("buffer_load_dwordx4 v[40:43], v8, s[44:47], 0 offen offset:896", "v")
    a.vm("buffer_load_dwordx4 v[44:47], v8, s[4:7], 0 offen", "q")
    a.vm("buffer_load_dwordx4 v[48:51], v8, s[4:7], 0 offen offset:896", "q")
    srd(a, 36, 16, 17, NB_SD)
    a("v_lshlrev_b32 v10, 4, v0")
    a("s_lshl_b32 s52, s58, 13")
    a("s_add_u32 s53, s52, 4096")
    for c in range(2):
        r = 200 + 8 * c
        a.vm("buffer_load_dwordx4 v[%d:%d], v10, s[36:39], s%d offen" % (r, r + 3, 52 + c), "ssm")
        a.vm("buffer_load_dwordx2 v[%d:%d], v10, s[36:39], s%d offen offset:16" % (r + 4, r + 5, 52 + c), "ssm")
    a("v_and_b32 v11, 15, v2")
    a("v_lshrrev_b32 v12, 4, v2")
    a("v_add_u32 v13, v11, v12")
    a("v_subrev_u32 v13, 15, v13")
    a("v_lshlrev_b32 v15, 1, v13")
    a("v_mov_b32 v225, 0x40000000")
    a("v_cmp_gt_i32 vcc, 0, v13")
    a("v_cndmask_b32 v15, v15, v225, vcc")
    a("s_and_b32 s54, s49, 1")
    a("s_lshl_b32 s54, s54, 12")
    a("s_add_u32 s54, s54, s52")
    a.vm("buffer_load_ushort v224, v15, s[36:39], s54 offen", "ssm")
    a("s_lshl_b32 s54, s58, 2")
    a("s_load_dword s63, s[18:19], s54")
    if cfg.cpre:
        a("s_getpc_b64 s[6:7]")
        a("L_PC:")
        a("s_lshl_b32 s52, s49, 13")
        a("v_lshlrev_b32 v226, 7, v2")
        a("v_add_u32 v226, s52, v226")
        a("v_min_u32 v226, L_CODE_END-L_PC-4, v226")
        a.vm("global_load_dword v227, v226, s[6:7]", "pre")
    S(a, "ldiss")
    a("v_sub_u32 v10, 31, v14")
    a("v_lshrrev_b32 v11, 2, v10")
    a("v_xor_b32 v11, v11, v1")
    a("v_lshlrev_b32 v11, 4, v11")
    a("v_and_b32 v10, 3, v10")
    a("v_lshl_add_u32 v11, v10, 2, v11")
    a("v_lshl_add_u32 v11, v1, 10, v11")
    a("v_add_u32 v11, %d, v11" % R1)
    a("v_lshrrev_b32 v12, 2, v14")
    a("v_xor_b32 v12, v12, v1")
    a("v_lshlrev_b32 v12, 4, v12")
    a("v_and_b32 v10, 3, v14")
    a("v_lshl_add_u32 v12, v10, 2, v12")
    a("v_lshl_add_u32 v12, v1, 10, v12")
    a("v_add_u32 v12, %d, v12" % (R1 + 8192))
    a("v_lshrrev_b32 v10, 3, v14")
    a("v_xor_b32 v15, v1, v10")
    a("v_lshlrev_b32 v15, 4, v15")
    a("v_lshl_add_u32 v15, v14, 7, v15")
    a("v_add_u32 v15, %d, v15" % R1)
    a("v_xor_b32 v3, 64, v15") if False else None
    a("v_lshlrev_b32 v13, 12, v14")
    a("v_lshl_add_u32 v13, v1, 4, v13")
    a("s_lshl_b32 s52, s57, 18")
    a("s_lshl_b32 s53, s56, 7")
    a("s_sub_u32 s50, 3968, s53")
    a("s_add_u32 s50, s50, s52")
    a("s_add_u32 s51, s52, s53")
    a("s_add_u32 s51, s51, 0x%x" % WS_XT)
    a.vmwait("k")
    S(a, "k_in")
    W = lambda c, t: 68 + (c * 4 + t) * 2
    for c in range(4):
        r = 52 + 4 * c
        a("v_lshlrev_b32 v%d, 16, v%d" % (W(c, 0), r))
        a("v_lshlrev_b32 v%d, 16, v%d" % (W(c, 0) + 1, r + 2))
        a("v_and_b32 v%d, 0xffff0000, v%d" % (W(c, 1), r))
        a("v_and_b32 v%d, 0xffff0000, v%d" % (W(c, 1) + 1, r + 2))
        a("v_lshlrev_b32 v%d, 16, v%d" % (W(c, 2), r + 1))
        a("v_lshlrev_b32 v%d, 16, v%d" % (W(c, 2) + 1, r + 3))
        a("v_and_b32 v%d, 0xffff0000, v%d" % (W(c, 3), r + 1))
        a("v_and_b32 v%d, 0xffff0000, v%d" % (W(c, 3) + 1, r + 3))
    K = lambda j, c: 100 + (j * 4 + c) * 2
    for j in range(5):
        for c in range(4):
            r = 16 + 4 * j + c
            a("v_lshlrev_b32 v%d, 16, v%d" % (K(j, c), r))
            a("v_and_b32 v%d, 0xffff0000, v%d" % (K(j, c) + 1, r))
    U = lambda e, c: 140 + e * 8 + 2 * c
    P = lambda r: "v[%d:%d]" % (r, r + 1)
    for e in range(2):
        for c in range(4):
            a("v_pk_mul_f32 %s, %s, %s" % (P(U(e, c)), P(K(3 + e, c)), P(W(c, 0))))
        for t in range(1, 4):
            for c in range(4):
                a("v_pk_fma_f32 %s, %s, %s, %s" % (P(U(e, c)), P(K(3 + e - t, c)), P(W(c, t)), P(U(e, c))))
    a("v_xor_b32 v3, 64, v15")
    a.vmwait("v")
    for e in range(2):
        for c in range(4):
            r = 36 + 4 * e + c
            t = 156 + (e * 4 + c) * 2
            a("v_lshlrev_b32 v%d, 16, v%d" % (t, r))
            a("v_and_b32 v%d, 0xffff0000, v%d" % (t + 1, r))
    for e in range(2):
        for c in range(4):
            t = 156 + (e * 4 + c) * 2
            a("v_pk_mul_f32 %s, %s, %s" % (P(U(e, c)), P(U(e, c)), P(t)))
    for i in range(8):
        a("v_cvt_pk_bf16_f32 v%d, v%d, v%d" % (172 + i, 148 + i, 140 + i))
    for i in range(8):
        a("ds_write_b32 v11, v%d offset:%d" % (172 + i, i * 128))
    a.vmwait("q")
    a("s_mov_b32 s52, 0x05040100")
    a("s_mov_b32 s53, 0x07060302")
    for i in range(4):
        a("v_perm_b32 v%d, v%d, v%d, s52" % (180 + 2 * i, 48 + i, 44 + i))
        a("v_perm_b32 v%d, v%d, v%d, s53" % (181 + 2 * i, 48 + i, 44 + i))
    for i in range(8):
        a("ds_write_b32 v12, v%d offset:%d" % (180 + i, i * 128))
    a("s_waitcnt lgkmcnt(0)")
    a("s_barrier")
    a("ds_read_b128 v[16:19], v15")
    a("ds_read_b128 v[20:23], v3 offset:4096")
    a("ds_read_b128 v[24:27], v15 offset:8192")
    a("ds_read_b128 v[28:31], v3 offset:12288")
    a("s_add_u32 s52, s50, %d" % (32 * 4096))
    a("s_add_u32 s53, s51, %d" % (32 * 4096))
    a("s_waitcnt lgkmcnt(3)")
    a.vm("buffer_store_dwordx4 v[16:19], v13, %s, s50 offen %s" % (WS, SC), "p1st")
    a("s_waitcnt lgkmcnt(2)")
    a.vm("buffer_store_dwordx4 v[20:23], v13, %s, s52 offen %s" % (WS, SC), "p1st")
    a("s_waitcnt lgkmcnt(1)")
    a.vm("buffer_store_dwordx4 v[24:27], v13, %s, s51 offen %s" % (WS, SC), "p1st")
    a("s_waitcnt lgkmcnt(0)")
    a.vm("buffer_store_dwordx4 v[28:31], v13, %s, s53 offen %s" % (WS, SC), "p1st")
    S(a, "p1st")
    token(a)
    for c in range(2):
        w0 = 200 + 8 * c
        o = 232 + 0
        b = 140 + 12 * c
        for i in range(4): a("v_alignbit_b32 v%d, v%d, v%d, 16" % (b + i, w0 + i + 1, w0 + i))
        for i in range(4): a("v_mov_b32 v%d, v%d" % (b + 4 + i, w0 + i + 1))
        for i in range(4): a("v_alignbit_b32 v%d, v%d, v%d, 16" % (b + 8 + i, w0 + i + 2, w0 + i + 1))
    a.lines.insert(len(a.lines) - 24, "    s_waitcnt vmcnt(%d)" % (a.vmcount() - 1 - max(i for i, t in enumerate(a.vmlist) if t == "ssm")))
    srd(a, 40, 22, 23, D * F * 2)
    a("v_lshrrev_b32 v6, 4, v2")
    a("v_and_b32 v7, 15, v2")
    a("v_lshlrev_b32 v8, 2, v6")
    a("v_xor_b32 v7, v7, v8")
    a("v_mul_u32_u24 v6, 3584, v6")
    a("v_lshl_add_u32 v6, v7, 4, v6")
    a("s_mul_i32 s54, s49, %d" % (4 * 3584))
    a("s_lshl_b32 s55, s60, 8")
    a("s_add_u32 s54, s54, s55")
    a("s_lshl_b32 s55, s49, 10")
    def w1dma(ks):
        a("s_add_u32 m0, s55, %d" % (ks * 4096))
        a.vm("buffer_load_dwordx4 v6, s[40:43], s54 offen lds", "w1")
        if ks != 27: a("s_add_u32 s54, s54, %d" % (16 * 3584))
    for ks in range(cfg.w1pre): w1dma(ks)
    a.vmwait("p1st")
    a("s_barrier")
    a("s_lshl_b32 s52, s57, 5")
    a("s_add_u32 s52, s52, s56")
    publish(a, 52)
    S(a, "F1pub")
    if cfg.wpre:
        srd(a, 44, 24, 25, D * F * 2)
        a("s_mul_i32 s52, s3, 56")
        a("s_mul_i32 s53, s49, 14")
        a("s_add_u32 s52, s52, s53")
        a("v_min_u32 v226, 13, v2")
        a("v_add_u32 v226, s52, v226")
        a("v_lshlrev_b32 v226, 7, v226")
        a.vm("buffer_load_dword v228, v226, s[44:47], 0 offen", "pre")
    if cfg.upto == 1:
        a("s_branch L_DONE")
    a("v_lshlrev_b32 v9, 4, v0")
    a("v_add_u32 v9, %d, v9" % (32 + HC))
    for c in range(2):
        w0 = 200 + 8 * c; b = 140 + 12 * c
        base = c * HC_CH
        a("ds_write_b128 v9, v[%d:%d] offset:%d" % (b, b + 3, base + 0 * 4160))
        a("ds_write_b128 v9, v[%d:%d] offset:%d" % (b + 4, b + 7, base + 1 * 4160))
        a("ds_write_b128 v9, v[%d:%d] offset:%d" % (b + 8, b + 11, base + 2 * 4160))
        a("ds_write_b128 v9, v[%d:%d] offset:%d" % (w0 + 2, w0 + 5, base + 3 * 4160))
    a("v_and_b32 v10, 15, v2")
    a("v_lshrrev_b32 v11, 4, v2")
    a("v_mul_u32_u24 v9, 4160, v11")
    a("v_lshl_add_u32 v9, v10, 1, v9")
    a("s_and_b32 s52, s49, 1")
    a("s_mul_i32 s52, s52, %d" % HC_CH)
    a("s_add_u32 s52, s52, %d" % HC)
    a("v_add_u32 v9, s52, v9")
    a("ds_write_b16 v9, v224")
    a("v_lshrrev_b32 v13, 5, v2")
    a("v_mul_u32_u24 v13, %d, v13" % UR_CH)
    a("v_and_b32 v12, 31, v2")
    a("v_lshl_add_u32 v13, v12, 4, v13")
    a("v_add_u32 v13, %d, v13" % (UR + 4096))
    for i in range(4): a("v_mov_b32 v%d, 0" % (240 + i))
    a("ds_write_b128 v13, v[240:243]")
    for ks in range(cfg.w1pre, 28): w1dma(ks)
    a("v_bfe_u32 v4, v2, 2, 2")
    a("v_lshrrev_b32 v5, 5, v2")
    a("v_lshl_add_u32 v5, v5, 2, v4")
    a("v_lshlrev_b32 v5, 8, v5")
    a("v_lshl_add_u32 v5, v4, 6, v5")
    a("v_bfe_u32 v4, v2, 4, 1")
    a("v_lshl_add_u32 v5, v4, 5, v5")
    a("v_and_b32 v4, 3, v2")
    a("v_lshl_add_u32 v5, v4, 3, v5")
    a("s_lshl_b32 s52, s49, 6")
    a("v_xor_b32 v6, s52, v5")
    a("v_add_u32 v7, 0x10000, v6")
    S(a, "prepoll")
    a("s_lshr_b32 s52, s58, 5")
    a("s_lshl_b32 s52, s52, 5")
    a("v_and_b32 v12, 31, v2")
    a("v_add_u32 v12, s52, v12")
    a("v_lshlrev_b32 v12, 6, v12")
    a("s_lshr_b32 s52, s49, 1")
    a("s_and_b32 s53, s49, 1")
    a("v_and_b32 v16, 3, v10") if False else None
    A_, B_ = 128, 129
    a("v_and_b32 v%d, 3, v10" % A_)
    a("v_mul_u32_u24 v%d, 4160, v%d" % (A_, A_))
    a("v_lshrrev_b32 v130, 2, v10")
    a("v_lshl_add_u32 v%d, v130, 3, v%d" % (A_, A_))
    a("v_lshl_add_u32 v%d, v11, 4, v%d" % (A_, A_))
    a("s_mul_i32 s36, s52, %d" % HC_CH)
    a("s_lshl_b32 s37, s53, 8")
    a("s_add_u32 s36, s36, s37")
    a("s_add_u32 s36, s36, %d" % HC)
    a("v_add_u32 v%d, s36, v%d" % (A_, A_))
    a("v_lshlrev_b32 v%d, 5, v10" % B_)
    a("v_lshlrev_b32 v130, 4, v11")
    a("v_sub_u32 v%d, v130, v%d" % (B_, B_))
    a("s_mul_i32 s36, s52, %d" % UR_CH)
    a("s_add_u32 s36, s36, s37")
    a("s_add_u32 s36, s36, %d" % (UR + 480))
    a("v_add_u32 v%d, s36, v%d" % (B_, B_))
    AD = 132
    a("s_lshl_b32 s36, s52, 4")
    a("s_lshr_b32 s37, s63, s36")
    a("s_and_b32 s37, s37, 0xffff")
    a("s_cmp_eq_u32 s53, 0")
    a("s_cselect_b32 s37, s37, 0")
    a("v_lshlrev_b32 v130, 3, v11")
    a("v_add_u32 v130, v130, v10")
    a("v_sub_u32 v130, 15, v130")
    a("v_and_b32 v131, 1, v130")
    a("v_lshlrev_b32 v131, 4, v131")
    a("v_mov_b32 v136, s37")
    a("v_lshlrev_b32 v131, v131, v136")
    a("v_ashrrev_i32 v130, 1, v130")
    for dw in range(4):
        a("v_cmp_eq_u32 vcc, %d, v130" % dw)
        a("v_cndmask_b32 v%d, 0, v131, vcc" % (AD + dw))
    ACC = 136
    a("v_lshlrev_b32 v4, 4, v2")
    a("v_and_b32 v14, 127, v0")
    a("v_lshrrev_b32 v15, 7, v0")
    a("v_lshlrev_b32 v13, 4, v14")
    a("v_lshl_add_u32 v13, v15, 12, v13")
    a("v_lshlrev_b32 v9, 5, v14")
    a("s_lshl_b32 s54, s58, 13")
    a("s_lshl_b32 s55, s52, 12")
    a("s_add_u32 s55, s55, s54")
    a("s_lshl_b32 s50, s53, 11")
    a("s_add_u32 s38, s55, s50")
    a("s_mul_i32 s39, s52, %d" % UR_CH)
    a("s_add_u32 s39, s39, s50")
    a("s_add_u32 s39, s39, %d" % UR)
    a("s_mov_b32 s53, 0x%x" % WS_FLAG)
    a.vmwait("w1")
    a("s_waitcnt lgkmcnt(0)")
    poll(a, [12], 53)
    S(a, "B1")
    a("s_mov_b32 m0, s39")
    a("s_add_u32 s37, s38, 1024")
    a.vm("buffer_load_dwordx4 v4, %s, s38 offen lds" % WS, "ur")
    a("s_add_u32 m0, s39, 1024")
    a.vm("buffer_load_dwordx4 v4, %s, s37 offen lds" % WS, "ur")
    a("s_add_u32 s36, s54, 0x%x" % WS_XT)
    XR = 168; SA = 176
    for g in range(2):
        a.vm("buffer_load_dwordx4 v[%d:%d], v13, %s, s36 offen offset:%d" % (XR + 4 * g, XR + 4 * g + 3, WS, 2048 * g), "ep")
    FR = 16
    for ks in range(28):
        b = 6 if ks < 16 else 7
        a("ds_read_b64_tr_b16 v[%d:%d], v%d offset:%d" % (FR + 4 * ks, FR + 4 * ks + 1, b, (ks & 15) * 4096))
        a("ds_read_b64_tr_b16 v[%d:%d], v%d offset:%d" % (FR + 4 * ks + 2, FR + 4 * ks + 3, b, (ks & 15) * 4096 + 2048))
    srd(a, 40, 24, 25, D * F * 2)
    a("v_lshrrev_b32 v6, 3, v2")
    a("v_and_b32 v7, 7, v2")
    a("v_bfe_u32 v8, v2, 4, 1")
    a("v_lshlrev_b32 v8, 2, v8")
    a("v_xor_b32 v7, v7, v8")
    a("v_mul_u32_u24 v6, 896, v6")
    a("v_lshl_add_u32 v6, v7, 4, v6")
    a("s_mul_i32 s44, s49, %d" % (448 * 896))
    a("s_lshl_b32 s45, s62, 7")
    a("s_add_u32 s44, s44, s45")
    a("s_mul_i32 s45, s49, 20480")
    a("s_add_u32 s45, s45, 32768")
    def w2dma(base_sgpr, i, tag):
        def f():
            a("s_add_u32 m0, s%d, %d" % (base_sgpr, i * 1024))
            a.vm("buffer_load_dwordx4 v6, s[40:43], s44 offen lds", tag)
            a("s_add_u32 s44, s44, %d" % (8 * 896))
        return f
    a.vmwait("ur")
    a("s_waitcnt lgkmcnt(0)")
    a("s_barrier")
    S(a, "URin")
    AB = [0, 32]; BB = [64, 96]
    def readA(st, rho, aa):
        r = AB[st] + 4 * aa
        off = 64 * rho + 512 * aa
        return ["ds_read_b64 a[%d:%d], v%d offset:%d" % (r, r + 1, A_, off),
                "ds_read_b64 a[%d:%d], v%d offset:%d" % (r + 2, r + 3, A_, off + 8)]
    def readB(st, rho, b):
        r = BB[st] + 4 * b
        return ["ds_read_b128 a[%d:%d], v%d offset:%d" % (r, r + 3, B_, 64 * rho + 512 * (7 - b))]
    def mfma(t, areg, breg, av=False):
        c = "0" if av else "v[%d:%d]" % (ACC + 4 * t, ACC + 4 * t + 3)
        return "v_mfma_f32_16x16x32_bf16 v[%d:%d], %s[%d:%d], a[%d:%d], %s" % (ACC + 4 * t, ACC + 4 * t + 3, "v" if av else "a", areg, areg + 3, breg, breg + 3, c)
    def fs_issue():
        a("v_and_b32 v12, 31, v2")
        a("v_add_u32 v12, %d, v12" % FS_IDX)
        a("v_lshlrev_b32 v12, 6, v12")
        a("s_mov_b32 s53, 0x%x" % WS_FLAG)
        a.vm("buffer_load_dword v8, v12, %s, s53 offen sc0 sc1" % WS, "fs")
    def st_load(g, hlf, which):
        def f():
            reg = SA + 16 * which + 8 * g + 4 * hlf
            a("s_mov_b32 s36, 0x%x" % ((WS_STA if which == 0 else WS_STB) + 4096 * g))
            a.vm("buffer_load_dwordx4 v[%d:%d], v9, %s, s36 offen offset:%d" % (reg, reg + 3, WS, 16 * hlf), "ep")
        return f
    def cm_load():
        a("s_lshl_b32 s36, s60, 2")
        a("s_add_u32 s36, s36, s49")
        a("s_lshl_b32 s36, s36, 7")
        a("s_add_u32 s36, s36, 0x%x" % WS_CM)
        a("v_and_b32 v12, 31, v2")
        a("v_lshlrev_b32 v12, 2, v12")
        a.vm("buffer_load_dword v3, v12, %s, s36 offen" % WS, "ep")
    sides = {0: [w2dma(45, i, "w2r1") for i in range(0, 8)],
             1: [fs_issue] + [w2dma(45, i, "w2r1") for i in range(8, 16)],
             2: [w2dma(45, i, "w2r1") for i in range(16, 20)],
             3: [st_load(g, h, w) for g in range(2) for h in range(2) for w in range(2)] + [cm_load]}
    for b in range(8):
        for l in readB(0, 0, b): a(l)
    for aa in range(8):
        for l in readA(0, 0, aa): a(l)
    for rho in range(4):
        st = rho & 1
        nxt = []
        if rho < 3:
            for b in range(8): nxt += readB(1 - st, rho + 1, b)
            for aa in range(8): nxt += readA(1 - st, rho + 1, aa)
        ms = []
        if rho == 0:
            for t in range(8): ms.append((mfma(t, AD, BB[st] + 4 * t, True), None))
        for aa in range(8):
            for t in range(aa, 8):
                ms.append((mfma(t, AB[st] + 4 * aa, BB[st] + 4 * (t - aa)), aa))
        a("s_waitcnt lgkmcnt(%d)" % (15 if rho == 0 else 0))
        if rho == 3:
            poll_late(a, 12, 53, 8, "fs")
        side = list(sides[rho]); step = max(1, len(ms) // (len(side) + 1))
        ni = 0; waited = -1
        for i, (m, aa) in enumerate(ms):
            if rho == 0 and aa is not None and aa > waited and aa <= 1:
                a("s_waitcnt lgkmcnt(%d)" % (14 if aa == 0 else 0))
                waited = aa
            a(m)
            if (rho > 0 or waited == 1) and ni < len(nxt):
                a(nxt[ni]); ni += 1
            if (i + 1) % step == 0 and side:
                side.pop(0)()
        while ni < len(nxt):
            a(nxt[ni]); ni += 1
        while side: side.pop(0)()
    S(a, "conv")
    a("v_lshl_add_u32 v130, v10, 2, v11")
    a("v_bfe_u32 v131, v10, 1, 2")
    a("v_xor_b32 v130, v130, v131")
    a("v_lshlrev_b32 v130, 4, v130")
    a("s_lshl_b32 s36, s49, 13")
    a("s_add_u32 s36, s36, %d" % PB)
    a("v_add_u32 v130, s36, v130")
    a("v_and_b32 v131, 31, v14")
    a("v_lshlrev_b32 v132, 1, v131")
    a("v_bfe_u32 v133, v131, 2, 2")
    a("v_xor_b32 v132, v132, v133")
    a("v_lshlrev_b32 v132, 4, v132")
    a("v_lshrrev_b32 v133, 5, v14")
    a("v_lshl_add_u32 v132, v133, 10, v132")
    a("v_lshl_add_u32 v132, v15, 14, v132")
    if PB: a("v_add_u32 v132, %d, v132" % PB)
    a("v_xor_b32 v133, 16, v132")
    for t in range(8):
        a("ds_write_b128 v130, v[%d:%d] offset:%d" % (ACC + 4 * t, ACC + 4 * t + 3, 1024 * t))
    a.vmwait("ep")
    X = 224
    Z = 208
    a("s_add_u32 s36, s54, 0x%x" % WS_HT)
    a("s_waitcnt lgkmcnt(0)")
    a("s_barrier")
    ZR = [136, 152]
    for g in range(2):
        for hf in range(2):
            a("ds_read_b128 v[%d:%d], v132 offset:%d" % (ZR[g] + 8 * hf, ZR[g] + 8 * hf + 3, hf * 8192 + g * 4096))
            a("ds_read_b128 v[%d:%d], v133 offset:%d" % (ZR[g] + 8 * hf + 4, ZR[g] + 8 * hf + 7, hf * 8192 + g * 4096))
    for g in range(2):
        Xg = 208 + 16 * g
        for i in range(4):
            a("v_lshlrev_b32 v%d, 16, v%d" % (Xg + 2 * i, XR + 4 * g + i))
            a("v_and_b32 v%d, 0xffff0000, v%d" % (Xg + 2 * i + 1, XR + 4 * g + i))
        for i in range(4):
            A2 = SA + 8 * g + 2 * i; B2 = SA + 16 + 8 * g + 2 * i
            a("v_pk_fma_f32 v[%d:%d], v[%d:%d], v[%d:%d], v[%d:%d]" % (Xg + 8 + 2 * i, Xg + 9 + 2 * i, Xg + 2 * i, Xg + 2 * i + 1, A2, A2 + 1, B2, B2 + 1))
    for g in range(2):
        Xg = 208 + 16 * g
        a("s_waitcnt lgkmcnt(%d)" % (4 if g == 0 else 0))
        z = ZR[g]
        for i in range(4):
            a("v_pk_add_f32 v[%d:%d], v[%d:%d], v[%d:%d]" % (z + 2 * i, z + 2 * i + 1, z + 2 * i, z + 2 * i + 1, z + 8 + 2 * i, z + 9 + 2 * i))
        for i in range(4):
            a("v_pk_fma_f32 v[%d:%d], v[%d:%d], v[%d:%d], v[%d:%d]" % (z + 2 * i, z + 2 * i + 1, Xg + 8 + 2 * i, Xg + 9 + 2 * i, z + 2 * i, z + 2 * i + 1, Xg + 2 * i, Xg + 2 * i + 1))
        for i in range(4):
            a("v_cvt_pk_bf16_f32 v%d, v%d, v%d" % (z + 8 + i, z + 2 * i, z + 2 * i + 1))
        a.vm("buffer_store_dwordx4 v[%d:%d], v13, %s, s36 offen offset:%d %s" % (z + 8, z + 11, WS, 2048 * g, SC), "p2st")
    S(a, "p2st")
    S(a, "cs")
    a.vmwait("p2st")
    a("s_barrier")
    a("s_add_u32 s52, s3, %d" % F2_IDX)
    publish(a, 52)
    S(a, "F2pub")
    if cfg.upto == 2:
        a("s_branch L_DONE")
    a("v_bfe_u32 v7, v2, 2, 2")
    a("v_lshrrev_b32 v8, 5, v2")
    a("v_lshl_add_u32 v8, v8, 2, v7")
    a("v_lshlrev_b32 v8, 7, v8")
    a("v_bfe_u32 v7, v2, 3, 1")
    a("v_lshl_add_u32 v8, v7, 6, v8")
    a("v_bfe_u32 v7, v2, 4, 1")
    a("v_lshl_add_u32 v8, v7, 5, v8")
    a("v_and_b32 v7, 3, v2")
    a("v_lshl_add_u32 v8, v7, 3, v8")
    def w2tr_lines(abase, nks, b0, b1):
        out = []
        for ks in range(nks):
            for dt in range(2):
                r = abase + (ks * 2 + dt) * 4
                b = b0 if dt == 0 else b1
                out.append("ds_read_b64_tr_b16 a[%d:%d], v%d offset:%d" % (r, r + 1, b, ks * 2048))
                out.append("ds_read_b64_tr_b16 a[%d:%d], v%d offset:%d" % (r + 2, r + 3, b, ks * 2048 + 1024))
        return out
    a("v_add_u32 v9, s45, v8")
    a("v_xor_b32 v7, 64, v9")
    a("s_lshl_b32 s46, s49, 13")
    a("s_mul_i32 s47, s49, %d" % R2W)
    a("s_add_u32 s47, s47, %d" % R1)
    a.vmwait("w2r1")
    r1reads = w2tr_lines(128, 10, 9, 7)
    a("v_mov_b32 v128, 0x00003f80")
    a("v_mov_b32 v129, 0x3f800000")
    cen = []
    for g in range(28):
        for i in range(4):
            r = FR + 4 * g + i; t = 132 + 8 * (g & 1) + 2 * i
            cen.append("v_dot2_f32_bf16 v%d, v%d, v128, v3" % (t, r))
            cen.append("v_dot2_f32_bf16 v%d, v%d, v129, v3" % (t + 1, r))
        if g > 0:
            for i in range(4):
                r = FR + 4 * (g - 1) + i; t = 132 + 8 * ((g - 1) & 1) + 2 * i
                cen.append("v_cvt_pk_bf16_f32 v%d, v%d, v%d" % (r, t, t + 1))
    for i in range(4):
        cen.append("s_nop 0")
    for i in range(4):
        r = FR + 4 * 27 + i; t = 132 + 8 * (27 & 1) + 2 * i
        cen.append("v_cvt_pk_bf16_f32 v%d, v%d, v%d" % (r, t, t + 1))
    side = [w2dma(46, i, "w2r2") for i in range(8)] + [w2dma(47, i, "w2r2") for i in range(12)]
    rd = [(lambda l: (lambda: a(l)))(l) for l in r1reads]
    mixed = []
    while side or rd:
        if side: mixed.append(side.pop(0))
        for _ in range(2):
            if rd: mixed.append(rd.pop(0))
    interleave(a, cen, mixed, 5)
    S(a, "cen")
    a("v_lshrrev_b32 v12, 4, v2")
    a("v_and_b32 v13, 15, v2")
    a("v_lshlrev_b32 v14, 2, v12")
    a("v_xor_b32 v13, v13, v14")
    a("v_lshlrev_b32 v12, 12, v12")
    a("v_lshl_add_u32 v10, v13, 4, v12")
    a("v_lshlrev_b32 v12, 6, v2")
    a("v_add_u32 v13, %d, v12" % (64 * 64))
    a("v_add_u32 v14, %d, v12" % (128 * 64))
    a("v_min_u32 v15, 31, v2")
    a("v_lshlrev_b32 v15, 6, v15")
    a("v_add_u32 v15, %d, v15" % (192 * 64))
    a("v_mov_b32 v128, v5")
    for i in range(1, 4):
        a("v_xor_b32 v%d, %d, v5" % (128 + i, i << 6))
    ACC3 = 136
    HB = [168, 176]
    a("v_add_u32 v9, s46, v8")
    a("v_xor_b32 v7, 64, v9")
    a("v_add_u32 v11, s47, v8")
    a("v_xor_b32 v3, 64, v11")
    a.vmwait("w2r2")
    S(a, "w2a_in")
    for l in w2tr_lines(0, 4, 9, 7): a(l)
    for l in w2tr_lines(32, 6, 11, 3): a(l)
    a("s_lshl_b32 s38, s49, 14")
    a("s_lshl_b32 s39, s59, 8")
    a("s_add_u32 s38, s38, s39")
    a("s_add_u32 s38, s38, 0x%x" % WS_HT)
    a("s_lshl_b32 s39, s49, 10")
    a("s_mov_b32 s53, 0x%x" % (WS_FLAG + F2_IDX * 64))
    a("s_waitcnt lgkmcnt(0)")
    S(a, "w2a_tr")
    poll(a, [12, 13, 14, 15], 53)
    S(a, "B2")
    def hdma(ks):
        a("s_add_u32 m0, s39, %d" % (ks * 4096))
        a.vm("buffer_load_dwordx4 v10, %s, s38 offen lds" % WS, "h%d" % ks)
        if ks != 27: a("s_add_u32 s38, s38, %d" % (16 * 4096))
    for ks in range(cfg.hpre): hdma(ks)
    S(a, "h_iss")
    lab = a.label("EPO")
    a("s_or_b32 s52, s3, s49")
    a("s_cmp_lg_u32 s52, 0")
    a("s_cbranch_scc1 %s" % lab)
    a("s_mov_b32 s52, %d" % E_IDX)
    publish(a, 52)
    a(lab + ":")
    NB = 3
    HBUF = 200
    def hreads(ks, ps):
        out = []
        for i in range(2):
            r = HBUF + (ks % NB) * 8 + 4 * i
            vb = 128 + 2 * ps + i
            tag = "hr%d_%d_%d" % (ps, ks, i)
            out.append(("ds_read_b64_tr_b16 v[%d:%d], v%d offset:%d" % (r, r + 1, vb, (ks & 15) * 4096), tag))
            out.append(("ds_read_b64_tr_b16 v[%d:%d], v%d offset:%d" % (r + 2, r + 3, vb, (ks & 15) * 4096 + 2048), tag))
        return out
    ACCP = [136, 168]
    issued = cfg.hpre
    sync = {0: 1, 2: 4, 5: 8, 9: 13, 14: 19, 20: 27}
    r3reads = w2tr_lines(80, 6, 11, 3)
    for ps in range(2):
        acc = ACCP[ps]
        if ps == 0:
            a.vmwait("h1"); a("s_barrier")
            S(a, "h_in")
        for k0 in range(NB - 1):
            for l, t in hreads(k0, ps): a.lk(l, t)
        for ks in range(28):
            if ps == 0 and ks == 14: S(a, "ps0_14")
            kn = ks + NB - 1
            nxt = []
            if kn < 28:
                if ps == 0 and kn in sync and kn > 0:
                    while issued <= sync[kn]:
                        hdma(issued); issued += 1
                    a.vmwait("h%d" % sync[kn]); a("s_barrier")
                if kn == 16:
                    for i in range(2): a("v_add_u32 v%d, 0x10000, v%d" % (128 + 2 * ps + i, 128 + 2 * ps + i))
                nxt = hreads(kn, ps)
            for i in range(2):
                a.lkwait("hr%d_%d_%d" % (ps, ks, i))
                r = HBUF + (ks % NB) * 8 + 4 * i
                a("v_mfma_f32_32x32x16_bf16 v[%d:%d], v[%d:%d], v[%d:%d], %s" % (acc + 16 * i, acc + 16 * i + 15, FR + 4 * ks, FR + 4 * ks + 3, r, r + 3, "0" if ks == 0 else "v[%d:%d]" % (acc + 16 * i, acc + 16 * i + 15)))
                if nxt:
                    a.lk(*nxt[2 * i]); a.lk(*nxt[2 * i + 1])
            if ps == 0 and issued < 28:
                hdma(issued); issued += 1
            if ps == 1 and ks % 2 == 0 and ks // 2 < 12:
                w2dma(47, ks // 2, "w2r3")()
            if ps == 1 and ks == cfg.pubA:
                a.vmwait("p3a")
                a("s_barrier")
                a("s_lshl_b32 s37, s59, 4")
                a("s_add_u32 s37, s37, s60")
                a("s_add_u32 s37, s37, %d" % F3_IDX)
                publish(a, 37)
            if ps == 1 and ks == 24:
                a("v_min_u32 v15, 13, v2")
                a("v_lshlrev_b32 v15, 6, v15")
                a("s_lshr_b32 s36, s61, 1")
                a("s_lshl_b32 s38, s36, 10")
                a("s_add_u32 s38, s38, 0x%x" % (WS_FLAG + F3_IDX * 64))
                a.vm("buffer_load_dword v14, v15, %s, s38 offen sc0 sc1" % WS, "f3a")
        S(a, "ps%d" % ps)
        if ps == 0:
            a("s_lshl_b32 s53, s60, 2")
            a("s_add_u32 s53, s53, s49")
            a("s_lshl_b32 s53, s53, 11")
            a("s_add_u32 s53, s53, 0x%x" % WS_H1F)
        for i in range(2):
            a("s_lshl_b32 s52, s59, 2")
            a("s_add_u32 s52, s52, %d" % (2 * ps + i))
            a("s_mul_i32 s52, s52, %d" % (112 * 1024))
            a("s_add_u32 s52, s52, s53")
            o = 224 + 8 * i
            for q in range(8):
                a("v_cvt_pk_bf16_f32 v%d, v%d, v%d" % (o + q, acc + 16 * i + 2 * q, acc + 16 * i + 2 * q + 1))
            for q in range(8):
                a("v_pk_max_i16 v%d, v%d, 0" % (o + q, o + q))
            a.vm("buffer_store_dwordx4 v[%d:%d], v4, %s, s52 offen %s" % (o, o + 3, WS, SC), "p3a" if ps == 0 else "p3st")
            a.vm("buffer_store_dwordx4 v[%d:%d], v4, %s, s52 offen offset:1024 %s" % (o + 4, o + 7, WS, SC), "p3a" if ps == 0 else "p3st")
        S(a, "ps%de" % ps)
    S(a, "P3mm")
    a("s_lshl_b32 s52, s49, 6")
    a("v_xor_b32 v12, s52, v5")
    a("s_lshl_b32 s52, s60, 13")
    a("v_add_u32 v12, s52, v12")
    for k in range(2):
        a("ds_read_b64_tr_b16 v[%d:%d], v12 offset:%d" % (200 + 4 * k, 201 + 4 * k, k * 4096))
        a("ds_read_b64_tr_b16 v[%d:%d], v12 offset:%d" % (202 + 4 * k, 203 + 4 * k, k * 4096 + 2048))
    a.vmwait("w2r3") if False else None
    a("s_waitcnt vmcnt(%d)" % (a.vmcount() - 1 - max(i for i, t in enumerate(a.vmlist) if t == "w2r3")))
    for l in r3reads: a(l)
    a.vmwait("p3st")
    a("s_waitcnt lgkmcnt(0)")
    a("s_barrier")
    a("s_lshl_b32 s50, s59, 4")
    a("s_add_u32 s50, s50, s60")
    a("s_add_u32 s37, s50, %d" % F3B_IDX)
    publish(a, 37)
    S(a, "F3pub")
    if cfg.upto == 3:
        a("s_branch L_DONE")
    RING = 30; RB = 80
    a("s_lshr_b32 s36, s61, 1")
    a("s_lshl_b32 s36, s36, 2")
    a("s_and_b32 s39, s61, 1")
    a("s_add_u32 s36, s36, s39")
    a("s_mul_i32 s39, s49, %d" % (28 * 1024))
    a("s_mul_i32 s37, s36, %d" % (112 * 1024))
    a("s_add_u32 s39, s39, s37")
    a("s_add_u32 s39, s39, 0x%x" % WS_H1F)
    def hload(j):
        st, ks = divmod(j, 28)
        r = RB + (j % RING) * 4
        if j == 28: a("s_add_u32 s39, s39, %d" % (2 * 112 * 1024 - 28 * 1024))
        a.vm("buffer_load_dwordx4 v[%d:%d], v4, %s, s39 offen offset:%d" % (r, r + 3, WS, (ks % 4) * 1024), "H%d" % j)
        if ks % 4 == 3: a("s_add_u32 s39, s39, 4096")
    poll_late(a, 15, 38, 14, "f3a")
    S(a, "B3")
    for j in range(cfg.Hpre): hload(j)
    S(a, "H_iss")
    for i in range(4): w2dma(47, i, "w2r4")()
    a("v_mov_b32 v208, 0x3f803f80")
    for i in range(4): a("v_mov_b32 v%d, 0" % (210 + i))
    for i in range(8):
        a("v_dot2_f32_bf16 v%d, v%d, v208, v%d" % (210 + 2 * (i & 1), 200 + i, 210 + 2 * (i & 1)))
        a("v_dot2_f32_bf16 v%d, v%d, v%d, v%d" % (211 + 2 * (i & 1), 200 + i, 200 + i, 211 + 2 * (i & 1)))
    a("v_pk_add_f32 v[210:211], v[210:211], v[212:213]")
    a("v_mov_b32 v212, v210")
    a("v_mov_b32 v213, v211")
    a("v_permlane32_swap_b32 v210, v212")
    a("v_permlane32_swap_b32 v211, v213")
    a("v_pk_add_f32 v[210:211], v[210:211], v[212:213]")
    a("s_lshl_b32 s52, s59, 2")
    a("s_add_u32 s52, s52, s49")
    a("s_lshl_b32 s52, s52, 8")
    a("s_lshl_b32 s50, s60, 14")
    a("s_add_u32 s52, s52, s50")
    a("s_add_u32 s52, s52, 0x%x" % WS_ST2P)
    a("v_and_b32 v12, 31, v2")
    a("v_lshlrev_b32 v12, 3, v12")
    a("s_mov_b32 exec_hi, 0")
    a.vm("buffer_store_dwordx2 v[210:211], v12, %s, s52 offen %s" % (WS, SC), "st2p")
    a("s_mov_b64 exec, -1")
    a("v_lshrrev_b32 v12, 3, v2")
    a("v_and_b32 v13, 7, v2")
    a("v_bfe_u32 v10, v2, 4, 1")
    a("v_lshlrev_b32 v10, 2, v10")
    a("v_xor_b32 v13, v13, v10")
    a("v_lshlrev_b32 v12, 12, v12")
    a("v_lshrrev_b32 v10, 2, v13")
    a("v_lshl_add_u32 v12, v10, 7, v12")
    a("v_and_b32 v13, 3, v13")
    a("v_lshl_add_u32 v12, v13, 4, v12")
    a("s_lshl_b32 s45, s62, 6")
    a("s_lshl_b32 s46, s49, 4")
    a("s_add_u32 s45, s45, s46")
    a("s_lshl_b32 s45, s45, 12")
    a("s_lshl_b32 s46, s36, 6")
    a("s_add_u32 s45, s45, s46")
    a("s_add_u32 s45, s45, 0x%x" % WS_HT)
    a("s_lshl_b32 s46, s49, 11")
    a("s_add_u32 s46, s46, %d" % HRES)
    def hres(i):
        a("s_add_u32 m0, s46, %d" % (i * 1024))
        a.vm("buffer_load_dwordx4 v12, %s, s45 offen lds" % WS, "hres")
        if i == 0: a("s_add_u32 s45, s45, %d" % (8 * 4096))
    ACC4 = 16
    a("s_and_b32 s47, s49, 1")
    a("s_lshr_b32 s63, s49, 1")
    a("s_lshl_b32 s52, s47, 1")
    a("s_add_u32 s36, s36, s52")
    a("v_and_b32 v13, 31, v2")
    a("v_lshlrev_b32 v10, 3, v13")
    a("s_add_u32 s38, s38, %d" % ((F3B_IDX - F3_IDX) * 64))
    SP = 200
    def st2load(f):
        a.vm("buffer_load_dwordx2 v[%d:%d], v10, %s, s37 offen" % (SP + 2 * f, SP + 2 * f + 1, WS), "st2")
        if f != 13: a("s_add_u32 s37, s37, 16384")
    issued = cfg.Hpre
    r4reads = w2tr_lines(208, 2, 11, 3)
    S(a, "w2b_tr")
    for j in range(56):
        st, ks = divmod(j, 28)
        if j == cfg.chkB - 6:
            a.vm("buffer_load_dword v14, v15, %s, s38 offen sc0 sc1" % WS, "f3b")
        if j == cfg.chkB:
            poll_late(a, 15, 38, 14, "f3b")
            S(a, "out_stX")
        a.vmwait("H%d" % j)
        S(a, "H%d" % {0: 0, 14: 7, 28: 14, 42: 21, 55: 27}.get(j, 99))
        r = RB + (j % RING) * 4
        ab = 128 + ks * 8 if ks < 10 else (ks - 10) * 8 if ks < 26 else 208 + (ks - 26) * 8
        for dt in range(2):
            t = dt * 2 + st
            a("v_mfma_f32_32x32x16_bf16 v[%d:%d], a[%d:%d], v[%d:%d], %s" % (ACC4 + 16 * t, ACC4 + 16 * t + 15, ab + 4 * dt, ab + 4 * dt + 3, r, r + 3, "0" if ks == 0 else "v[%d:%d]" % (ACC4 + 16 * t, ACC4 + 16 * t + 15)))
            if issued < (56 if j >= cfg.chkB else 28) and issued < j + RING and (j >= cfg.chkB or dt == 0):
                hload(issued); issued += 1
        if j == 8:
            a.vmwait("st2p")
            a("s_barrier")
            a("s_lshl_b32 s37, s59, 4")
            a("s_add_u32 s37, s37, s60")
            a("s_add_u32 s37, s37, %d" % F3C_IDX)
            publish(a, 37)
        if j == 30:
            a("s_add_u32 s48x, s38, 0" if False else "s_add_u32 s43, s38, %d" % ((F3C_IDX - F3B_IDX) * 64))
            a.vm("buffer_load_dword v14, v15, %s, s43 offen sc0 sc1" % WS, "f3c")
        if j == 33:
            poll_late(a, 15, 43, 14, "f3c")
            a("s_lshl_b32 s37, s36, 8")
            a("s_add_u32 s37, s37, 0x%x" % WS_ST2P)
        if j == 12:
            a.vmwait("w2r4")
            for l in r4reads: a(l)
        if j == 20: a("s_waitcnt lgkmcnt(0)")
        if j in (30, 31): hres(j - 30)
        if 34 <= j < 41:
            st2load(2 * (j - 34)); st2load(2 * (j - 34) + 1)
        if j == 50:
            a.vmwait("st2")
            for f in range(1, 14):
                a("v_pk_add_f32 v[%d:%d], v[%d:%d], v[%d:%d]" % (SP, SP + 1, SP, SP + 1, SP + 2 * f, SP + 2 * f + 1))
            a("v_mul_f32 v%d, 0x3b124925, v%d" % (SP, SP))
            a("v_mul_f32 v%d, 0x3b124925, v%d" % (SP + 1, SP + 1))
            a("v_fma_f32 v%d, -v%d, v%d, v%d" % (SP + 1, SP, SP, SP + 1))
            a("v_max_f32 v%d, 0, v%d" % (SP + 1, SP + 1))
            a("v_add_f32 v%d, 0x3727c5ac, v%d" % (SP + 1, SP + 1))
            a("v_rsq_f32 v248, v%d" % (SP + 1))
    a("s_lshl_b32 s52, s49, 14")
    a("v_add_u32 v14, s52, v4")
    a("s_nop 9")
    lab_t = [a.label("RW") for _ in range(5)]
    for t in range(4):
        a("s_cmp_eq_u32 s49, %d" % t)
        a("s_cbranch_scc1 %s" % lab_t[t])
        for q in range(4):
            a("ds_write_b128 v14, v[%d:%d] offset:%d" % (ACC4 + 16 * t + 4 * q, ACC4 + 16 * t + 4 * q + 3, t * 4096 + q * 1024))
        a(lab_t[t] + ":")
    for t in range(4):
        lab = a.label("OWN")
        a("s_cmp_lg_u32 s49, %d" % t)
        a("s_cbranch_scc1 %s" % lab)
        for i in range(0, 16, 2):
            a("v_pk_add_f32 v[%d:%d], v[%d:%d], 0" % (80 + i, 81 + i, ACC4 + 16 * t + i, ACC4 + 16 * t + i + 1) if False else "v_mov_b32 v%d, v%d\nv_mov_b32 v%d, v%d" % (80 + i, ACC4 + 16 * t + i, 81 + i, ACC4 + 16 * t + i + 1))
        a(lab + ":")
    S(a, "red_w")
    a("s_lshl_b32 s52, s47, 6")
    a("v_xor_b32 v15, s52, v8")
    a("s_lshl_b32 s52, s63, 12")
    a("s_add_u32 s52, s52, %d" % HRES)
    a("v_add_u32 v15, s52, v15")
    a("s_waitcnt lgkmcnt(0)")
    a("s_barrier")
    S(a, "red_b")
    T = 96
    for d in range(1, 4):
        a("s_add_u32 s52, s49, %d" % d)
        a("s_and_b32 s52, s52, 3")
        a("s_lshl_b32 s52, s52, 14")
        a("s_lshl_b32 s53, s49, 12")
        a("s_add_u32 s52, s52, s53")
        a("v_add_u32 v%d, s52, v4" % (9 + d))
    for d in range(1, 4):
        for q in range(4):
            a("ds_read_b128 v[%d:%d], v%d offset:%d" % (T + 16 * (d - 1) + 4 * q, T + 16 * (d - 1) + 4 * q + 3, 9 + d, q * 1024))
    for j4 in range(4):
        a("ds_read_b64_tr_b16 v[%d:%d], v15 offset:%d" % (240 + 2 * j4, 241 + 2 * j4, j4 * 1024))
    srd(a, 40, 26, 27, NB_SD)
    a("v_mul_u32_u24 v7, 896, v13")
    a("v_lshrrev_b32 v9, 5, v2")
    a("v_lshl_add_u32 v7, v9, 4, v7")
    a("s_mul_i32 s52, s36, %d" % (32 * 896))
    a("s_lshl_b32 s53, s62, 1")
    a("s_add_u32 s53, s53, s63")
    a("s_lshl_b32 s53, s53, 6")
    a("s_add_u32 s52, s52, s53")
    a("s_waitcnt lgkmcnt(12)")
    for i in range(0, 16, 2):
        a("v_pk_add_f32 v[%d:%d], v[%d:%d], v[%d:%d]" % (80 + i, 81 + i, 80 + i, 81 + i, T + i, T + i + 1))
    a("s_waitcnt lgkmcnt(4)")
    for i in range(0, 16, 2):
        a("v_pk_add_f32 v[%d:%d], v[%d:%d], v[%d:%d]" % (T + 16 + i, T + 17 + i, T + 16 + i, T + 17 + i, T + 32 + i, T + 33 + i))
    for i in range(0, 16, 2):
        a("v_pk_add_f32 v[%d:%d], v[%d:%d], v[%d:%d]" % (80 + i, 81 + i, 80 + i, 81 + i, T + 16 + i, T + 17 + i))
    a("s_waitcnt lgkmcnt(0)")
    S(a, "red_r")
    for dw in range(8):
        hx = 160 + 2 * dw
        a("v_lshlrev_b32 v%d, 16, v%d" % (hx, 240 + dw))
        a("v_and_b32 v%d, 0xffff0000, v%d" % (hx + 1, 240 + dw))
        a("v_pk_fma_f32 v[%d:%d], v[%d:%d], v[248:249], v[%d:%d] op_sel_hi:[1,0,1]" % (hx, hx + 1, 80 + 2 * dw, 81 + 2 * dw, hx, hx + 1))
        a("v_cvt_pk_bf16_f32 v%d, v%d, v%d" % (180 + dw, hx, hx + 1))
    for jp in range(2):
        A0 = 180 + 4 * jp
        a("v_permlane32_swap_b32 v%d, v%d" % (A0, A0 + 2))
        a("v_permlane32_swap_b32 v%d, v%d" % (A0 + 1, A0 + 3))
    a("buffer_store_dwordx4 v[180:183], v7, s[40:43], s52 offen")
    a("buffer_store_dwordx4 v[184:187], v7, s[40:43], s52 offen offset:32")
    S(a, "out_st")
    a("L_DONE:")
    if common.STAMPS:
        fstamp_flush(a)
    a("L_END:")
    a("s_endpgm")
    gen_stats(a)
    a("L_CODE_END:")
    a("s_endpgm")
    return a.lines, dict(vgpr=256, sgpr=102, lds=LDS_TOTAL, grid=256, agpr=256)

def build(out, cfg=Cfg):
    lines, info = gen(cfg)
    lines = fix_hazards(lines, verbose=True)
    txt = ["; generated by a hand-written generator (gen/fused8.py)",
           "; @launch grid=(%d,1,1) block=(256,1,1) lds=%d" % (info["grid"], info["lds"]),
           '.amdgcn_target "amdgcn-amd-amdhsa--gfx950"', ".text"]
    txt += lines
    txt.append('.section .rodata,"a"')
    txt += kernel_desc(KN, info["vgpr"], info["sgpr"], accum=256, agpr=info["agpr"])
    open(out, "w").write("\n".join(txt) + "\n")

if __name__ == "__main__":
    import sys, os
    common.STAMPS = int(os.environ.get("STAMPS", "0"))
    out = sys.argv[1]
    for kv in sys.argv[2:]:
        k, v = kv.split("=")
        setattr(Cfg, k, int(v))
    build(out)
```

```python
import re

TRANS = ("v_exp_", "v_log_", "v_rcp_", "v_rsq_", "v_sqrt_", "v_sin_", "v_cos_")

def parse_regs(tok):
    tok = tok.strip()
    if tok.startswith("-"): tok = tok[1:]
    if tok.startswith("abs(") and tok.endswith(")"): tok = tok[4:-1]
    if tok.startswith("|") and tok.endswith("|"): tok = tok[1:-1]
    m = re.fullmatch(r"([vas])(\d+)", tok)
    if m: return [(m.group(1), int(m.group(2)))]
    m = re.fullmatch(r"([vas])\[(\d+):(\d+)\]", tok)
    if m: return [(m.group(1), i) for i in range(int(m.group(2)), int(m.group(3)) + 1)]
    if tok == "vcc": return [("s", "vcc")]
    if tok in ("vcc_lo", "vcc_hi"): return [("s", "vcc")]
    if tok == "exec": return [("s", "exec")]
    if tok == "m0": return [("s", "m0")]
    return []

class Ins:
    __slots__ = ("text", "op", "ops", "mods", "kind", "wr", "rd", "passes", "srcc", "srcab", "is_label", "note")
    def __init__(self, text):
        self.text = text
        t = text.split(";")[0].strip()
        self.is_label = t.endswith(":")
        self.kind = None; self.wr = set(); self.rd = set(); self.passes = 0; self.srcc = set(); self.srcab = set()
        self.op = ""; self.ops = []; self.mods = ""
        if not t or self.is_label or t.startswith("."):
            return
        parts = t.split(None, 1)
        self.op = parts[0]
        rest = parts[1] if len(parts) > 1 else ""
        ops = []; cur = ""; depth = 0
        for ch in rest:
            if ch in "[(": depth += 1
            if ch in "])": depth -= 1
            if ch == "," and depth == 0:
                ops.append(cur.strip()); cur = ""
            else: cur += ch
        if cur.strip(): ops.append(cur.strip())
        if ops:
            last = ops[-1].split(None, 1)
            ops[-1] = last[0]
            self.mods = last[1] if len(last) > 1 else ""
        self.ops = ops
        self.classify()
    def R(self, i):
        return set(parse_regs(self.ops[i])) if i < len(self.ops) else set()
    def allR(self, start):
        s = set()
        for i in range(start, len(self.ops)): s |= self.R(i)
        return s
    def classify(self):
        op = self.op
        if op.startswith("v_mfma"):
            self.kind = "mfma"
            self.passes = 8 if "32x32x16" in op or "32x32x8" in op else 4
            if "32x32x2_f32" in op: self.passes = 16
            if "16x16x4_f32" in op: self.passes = 8
            self.wr = self.R(0); self.srcab = self.R(1) | self.R(2); self.srcc = self.R(3)
            self.rd = self.srcab | self.srcc
        elif op.startswith("v_"):
            self.kind = "valu"
            if op.startswith("v_cmp"):
                self.wr = self.R(0); self.rd = self.allR(1)
                if op.startswith("v_cmpx"): self.wr |= {("s", "exec")}
            elif op.startswith("v_readfirstlane") or op.startswith("v_readlane"):
                self.wr = self.R(0); self.rd = self.allR(1)
            elif op.startswith("v_permlane") and "swap" in op:
                self.wr = self.R(0) | self.R(1); self.rd = self.R(0) | self.R(1)
            elif op.startswith(("v_add_co", "v_sub_co", "v_subrev_co", "v_addc_co", "v_subb_co", "v_mad_u64", "v_div_scale")):
                self.wr = self.R(0) | self.R(1); self.rd = self.allR(2)
            else:
                self.wr = self.R(0); self.rd = self.allR(1)
                if op.startswith(("v_fmac", "v_mac", "v_dot2c", "v_pk_fmac", "v_writelane")) : self.rd |= self.R(0)
                if op.startswith("v_cndmask") and len(self.ops) == 3: self.rd |= {("s", "vcc")}
                if "_dpp" in op or "_sdwa" in op or "row_" in self.mods or "quad_perm" in self.mods or "wave_" in self.mods:
                    self.rd |= self.R(0)
        elif op.startswith(("buffer_load", "global_load", "flat_load", "scratch_load")):
            self.kind = "vmem"
            if "lds" in self.mods.split() or "_lds_" in op:
                self.rd = self.allR(0) | {("s", "m0")}
                self.kind = "vmem_lds"
            else:
                self.wr = self.R(0); self.rd = self.allR(1)
        elif op.startswith(("buffer_store", "global_store", "flat_store", "buffer_atomic", "global_atomic")):
            self.kind = "vmem_st"
            self.rd = self.allR(0)
            if "atomic" in op and "sc0" in self.mods.split():
                self.wr = self.R(0)
        elif op.startswith("ds_"):
            self.kind = "ds"
            if op.startswith(("ds_read", "ds_bpermute", "ds_permute", "ds_swizzle")):
                self.wr = self.R(0); self.rd = self.allR(1)
            else:
                self.rd = self.allR(0)
        elif op.startswith("s_"):
            self.kind = "salu"
            if op in ("s_waitcnt", "s_barrier", "s_nop", "s_endpgm", "s_sleep", "s_setprio", "s_branch") or op.startswith("s_cbranch"):
                pass
            elif op.startswith("s_cmp") or op.startswith("s_bitcmp"):
                self.rd = self.allR(0)
            elif op.startswith(("s_load", "s_buffer_load", "s_memtime", "s_memrealtime", "s_getreg")):
                self.wr = self.R(0); self.rd = self.allR(1)
            else:
                self.wr = self.R(0); self.rd = self.allR(1)
                if "saveexec" in op: self.wr |= {("s", "exec")}; self.rd |= {("s", "exec")}
        else:
            self.kind = "other"
    def nstates(self):
        if self.op == "s_nop":
            return int(self.ops[0], 0) + 1
        if self.kind is None: return 0
        return 1
    def is_wide_store(self):
        return self.kind == "vmem_st" and ("x3" in self.op or "x4" in self.op)
    def store_data(self):
        if self.op.startswith("buffer_store"): return self.R(0)
        if self.op.startswith("global_store"): return self.R(1)
        return set()

def need(prod, cons):
    n = 0
    pv = {r for r in prod.wr if r[0] in "va"}
    ps = {r for r in prod.wr if r[0] == "s"}
    if prod.kind == "valu":
        if cons.kind == "mfma" and pv & cons.rd: n = max(n, 2)
        if cons.kind == "valu":
            if ps & cons.rd:
                n = max(n, 2)
                if cons.op.startswith(("v_readlane", "v_writelane")) : n = max(n, 4)
            if pv & cons.rd:
                if cons.op.startswith(("v_readfirstlane", "v_readlane")): n = max(n, 1)
                if "_dpp" in cons.op or "row_" in cons.mods or "quad_perm" in cons.mods or "wave_" in cons.mods: n = max(n, 2)
                if cons.op.startswith("v_permlane"): n = max(n, 2)
                if prod.op.startswith(TRANS) and not cons.op.startswith(TRANS): n = max(n, 1)
                if prod.op.startswith(TRANS): n = max(n, 1)
                if ("sdwa" in prod.op and "dst_sel:DWORD" not in prod.mods) or ("op_sel:" in prod.mods and not prod.op.startswith("v_pk")): n = max(n, 1)
            if prod.op.startswith("v_dot"):
                if pv & (cons.rd | cons.wr):
                    if cons.op == prod.op:
                        ab = cons.R(1) | cons.R(2)
                        if pv & ab: n = max(n, 3)
                    else: n = max(n, 3)
            if ("s", "exec") in ps and cons.op.startswith("v_permlane"): n = max(n, 4)
        if cons.kind in ("vmem", "vmem_st", "vmem_lds") and ps & cons.rd: n = max(n, 5)
        if prod.op.startswith("v_dot") and cons.kind != "valu" and pv & (cons.rd | cons.wr): n = max(n, 3)
        if cons.kind == "mfma" and ("s", "exec") in ps: n = max(n, 4)
    if prod.kind == "mfma":
        P = prod.passes
        tab_c = {2: 4, 4: 6, 8: 10, 16: 18}[P]
        tab_ab = {2: 5, 4: 8, 8: 12, 16: 20}[P]
        if cons.kind == "mfma":
            if pv & cons.srcab: n = max(n, tab_ab)
            if pv & cons.srcc:
                if cons.srcc == prod.wr and cons.passes == prod.passes: pass
                else: n = max(n, tab_c)
            if (pv & cons.wr) and not (pv & cons.srcc): n = max(n, tab_c)
        elif cons.kind in ("valu", "vmem", "vmem_st", "vmem_lds", "ds"):
            if pv & (cons.rd | cons.wr): n = max(n, tab_ab)
        if cons.kind == "valu" and prod.srcc & cons.wr:
            n = max(n, {2: 1, 4: 3, 8: 7, 16: 15}[P])
    if prod.is_wide_store():
        d = prod.store_data()
        if d & cons.wr:
            n = max(n, 2 if cons.kind == "valu" else 1)
    if prod.kind == "salu" and ("s", "m0") in ps and cons.kind == "vmem_lds": n = max(n, 1)
    return n

WINDOW = 24
def fix_hazards(lines, verbose=False):
    ins = []
    for l in lines:
        for sub in l.split("\n"):
            ins.append(Ins(sub))
    out = []
    added = 0
    for cur in ins:
        if cur.kind is not None and cur.op != "s_nop":
            dist = 0; req = 0
            for prev in reversed(out):
                if prev.kind is None: continue
                k = need(prev, cur)
                if k - dist > req: req = k - dist
                dist += prev.nstates()
                if dist >= WINDOW: break
            if req > 0:
                added += req
                while req > 0:
                    k = min(req, 16)
                    out.append(Ins("    s_nop %d" % (k - 1)))
                    req -= k
        out.append(cur)
    labels = {}
    for i, x in enumerate(out):
        if x.is_label: labels[x.text.split(";")[0].strip()[:-1]] = i
    problems = []
    for i, x in enumerate(out):
        if x.kind == "salu" and (x.op == "s_branch" or x.op.startswith("s_cbranch")):
            tgt = x.ops[0]
            if tgt not in labels: continue
            j = labels[tgt]
            tail = [p for p in out[max(0, i - 60):i + 1] if p.kind is not None]
            head = [p for p in out[j:j + 60] if p.kind is not None]
            d0 = 0
            for hi, c in enumerate(head):
                dist = d0
                for p in reversed(tail):
                    k = need(p, c)
                    if k > dist:
                        problems.append("branch %s -> %s: '%s' needs %d states before '%s' (has %d)" % (x.text.strip(), tgt, p.text.strip(), k, c.text.strip(), dist))
                    dist += p.nstates()
                    if dist >= WINDOW: break
                d0 += c.nstates()
                if d0 >= WINDOW: break
                if c.op == "s_branch" or c.op == "s_endpgm": break
    if problems:
        raise RuntimeError("hazards across branches:\n" + "\n".join(problems))
    if verbose: print("hazard pass: added %d wait states" % added)
    return [x.text for x in out]

class Asm:
    def __init__(self):
        self.lines = []
        self.uid = 0
    def __call__(self, s, *a):
        if a: s = s % a
        for l in s.split("\n"):
            l = l.rstrip()
            if not l.strip(): continue
            st = l.strip()
            if st.endswith(":") or st.startswith(".") or st.startswith(";"):
                self.lines.append(st)
            else:
                self.lines.append("    " + st)
    GUID = [0]
    def label(self, base="L"):
        Asm.GUID[0] += 1
        return "%s_%d" % (base, Asm.GUID[0])
    def vm(self, line, tag=None):
        self(line)
        if not hasattr(self, "vmlist"): self.vmlist = []
        self.vmlist.append(tag)
    def vmwait(self, tag):
        idx = max(i for i, t in enumerate(self.vmlist) if t == tag)
        n = len(self.vmlist) - 1 - idx
        self("s_waitcnt vmcnt(%d)" % min(n, 63))
        assert n <= 63, "vmcnt overflow %d" % n
    def lk(self, line, tag=None):
        self(line)
        if not hasattr(self, "lklist"): self.lklist = []
        self.lklist.append(tag)
    def lkwait(self, tag):
        idx = max(i for i, t in enumerate(self.lklist) if t == tag)
        n = len(self.lklist) - 1 - idx
        self("s_waitcnt lgkmcnt(%d)" % min(n, 15))
    def lkneed(self, tag):
        idx = max(i for i, t in enumerate(self.lklist) if t == tag)
        done = getattr(self, "lkdone", -1)
        if idx <= done: return
        n = len(self.lklist) - 1 - idx
        self("s_waitcnt lgkmcnt(%d)" % min(n, 15))
        self.lkdone = len(self.lklist) - 1 - min(n, 15)
    def lkall(self):
        self("s_waitcnt lgkmcnt(0)")
        self.lkdone = len(getattr(self, "lklist", [])) - 1
    def vmdrain(self):
        self("s_waitcnt vmcnt(0)")
    def vmcount(self):
        return len(getattr(self, "vmlist", []))
    def comment(self, s):
        self.lines.append("    ; " + s)

def vr(b, n=1):
    return "v%d" % b if n == 1 else "v[%d:%d]" % (b, b + n - 1)
def ar(b, n=1):
    return "a%d" % b if n == 1 else "a[%d:%d]" % (b, b + n - 1)
def sr(b, n=1):
    return "s%d" % b if n == 1 else "s[%d:%d]" % (b, b + n - 1)

def kernel_header(name):
    return [".globl %s" % name, ".p2align 8", ".type %s,@function" % name, "%s:" % name]

def kernel_desc(name, vgpr, sgpr, accum=None, agpr=0):
    if accum is None: accum = (vgpr + 3) // 4 * 4
    nfv = accum + agpr if agpr else vgpr
    return [".p2align 6", ".amdhsa_kernel %s" % name,
            "  .amdhsa_next_free_vgpr %d" % nfv,
            "  .amdhsa_next_free_sgpr %d" % sgpr,
            "  .amdhsa_accum_offset %d" % accum,
            "  .amdhsa_group_segment_fixed_size 0",
            "  .amdhsa_kernarg_size 96",
            "  .amdhsa_user_sgpr_count 2",
            "  .amdhsa_user_sgpr_kernarg_segment_ptr 1",
            "  .amdhsa_system_sgpr_workgroup_id_x 1",
            ".end_amdhsa_kernel"]
```

```python
from common import *
F3C_IDX = 1280
RS = 4224
F2B_IDX = 1536
FC_IDX = 288
import common
from fused import fstamp_flush, publish, poll, token, KN, S_T, S_WAVE, WS
import fused

SC = "sc1"
R0 = 0
R1 = 114688
HC = R1; HC_CH = 4 * 4160; UR = HC + 2 * HC_CH; UR_CH = 4608
LDS_TOTAL = 163840
R2W = 12288
HA = 32768; HB_ = 90112; YB = 147456
HRES = 65536
PB = R0
WS_CM = 0x1330000
WS_ST2P = 0x1340000

class Cfg:
    hpreB = 2
    chk2 = 14
    hw2 = 0
    tlb = 0
    cpre = 1
    slp = 0
    pubA = 16
    chkB = 17
    w1pre = 8
    sset = 0
    upto = 4
    wpre = 1
    hpre = 16
    Hpre = 14

SETS = {
 0: ["start","ldiss","k_in","p1st","F1pub","prepoll","B1","URin","conv","p2st","F2pub","B2","h_in","P3mm","F3pub","B3"],
 1: ["start","B3","H_iss","H0","H7","H14","H21","H27","red_w","red_b","red_r","out_st", "F3pub", "w2b_iss", "w2b_in", "w2b_tr"],
 3: ["start"],
 2: ["start","URin","conv","p2st","F2pub","cen","w2a_tr","B2","h_in","ps0","ps0e","ps1s","ps1","ps1e","F3pub","B3"],
}
def S(a, name):
    names = SETS[Cfg.sset]
    if name in names: stamp(a, names.index(name))

def poll_late(a, vaddr, soff_sgpr, reg, tag):
    lp = a.label("POLL"); done = a.label("PDONE")
    a.vmwait(tag)
    a("v_cmp_ne_u32 vcc, s%d, v%d" % (S_T, reg))
    a("s_nop 4")
    a("s_cmp_eq_u64 vcc, 0")
    a("s_cbranch_scc1 %s" % done)
    a("s_mov_b32 s51, 0")
    a(lp + ":")
    if Cfg.slp: a("s_sleep %d" % Cfg.slp)
    a("buffer_load_dword v%d, v%d, %s, s%d offen sc0 sc1" % (reg, vaddr, WS, soff_sgpr))
    a("s_waitcnt vmcnt(0)")
    a("v_cmp_ne_u32 vcc, s%d, v%d" % (S_T, reg))
    a("s_nop 4")
    a("s_cmp_eq_u64 vcc, 0")
    a("s_cbranch_scc1 %s" % done)
    a("s_add_u32 s51, s51, 1")
    a("s_cmp_lt_u32 s51, 0x40000")
    a("s_cbranch_scc1 %s" % lp)
    a(done + ":")

def interleave(a, main, side, every):
    si = 0
    for i, l in enumerate(main):
        a(l)
        if (i + 1) % every == 0 and si < len(side):
            side[si](); si += 1
    while si < len(side):
        side[si](); si += 1

def gen_stats(a):
    a("L_STATS:")
    a("v_and_b32 v1, 7, v0")
    a("v_lshrrev_b32 v2, 3, v0")
    a("s_mul_i32 s52, s2, %d" % (64 * 896))
    a("v_lshrrev_b32 v3, 3, v2")
    a("v_and_b32 v4, 7, v2")
    a("v_lshl_add_u32 v5, v3, 4, v4")
    a("v_mul_u32_u24 v6, 896, v5")
    a("v_lshl_add_u32 v6, v1, 4, v6")
    a("v_add_u32 v6, s52, v6")
    a("v_add_u32 v7, %d, v6" % (8 * 896))
    srd(a, 36, 8, 9, NB_SD)
    for p in range(2):
        for i in range(7):
            r = 16 + (p * 7 + i) * 4
            a("buffer_load_dwordx4 v[%d:%d], v%d, s[36:39], 0 offen offset:%d" % (r, r + 3, 6 + p, i * 128))
    if Cfg.hw2:
        srd(a, 44, 24, 25, D * F * 2)
        a("s_mul_i32 s52, s2, 392")
        a("v_add_u32 v11, s52, v0")
        a("v_lshlrev_b32 v11, 7, v11")
        a("buffer_load_dword v12, v11, s[44:47], 0 offen")
        a("v_min_u32 v13, 135, v0")
        a("v_add_u32 v13, s52, v13")
        a("v_lshlrev_b32 v13, 7, v13")
        a("buffer_load_dword v14, v13, s[44:47], 0 offen offset:0" if False else "v_add_u32 v13, %d, v13" % (256 * 128))
        a("buffer_load_dword v14, v13, s[44:47], 0 offen")
    NX = 2 if Cfg.hw2 else 0
    a("v_mov_b32 v8, 0x3f803f80")
    for r in range(80, 88): a("v_mov_b32 v%d, 0" % r)
    for p in range(2):
        for i in range(7):
            a("s_waitcnt vmcnt(%d)" % (13 - (p * 7 + i)))
            for c in range(4):
                r = 16 + (p * 7 + i) * 4 + c
                o = 80 + 4 * p + 2 * (c & 1)
                a("v_dot2_f32_bf16 v%d, v%d, v8, v%d" % (o, r, o))
                a("v_dot2_f32_bf16 v%d, v%d, v%d, v%d" % (o + 1, r, r, o + 1))
    for p in range(2):
        a("v_add_f32 v%d, v%d, v%d" % (80 + 4 * p, 80 + 4 * p, 82 + 4 * p))
        a("v_add_f32 v%d, v%d, v%d" % (81 + 4 * p, 81 + 4 * p, 83 + 4 * p))
    for mod in ("quad_perm:[1,0,3,2]", "quad_perm:[2,3,0,1]", "row_half_mirror"):
        for r in (80, 81, 84, 85):
            a("v_add_f32_dpp v%d, v%d, v%d %s row_mask:0xf bank_mask:0xf" % (r, r, r, mod))
    for p in range(2):
        s_, q_ = 80 + 4 * p, 81 + 4 * p
        a("v_mul_f32 v%d, 0x3b124925, v%d" % (s_, s_))
        a("v_mul_f32 v%d, 0x3b124925, v%d" % (q_, q_))
        a("v_fma_f32 v%d, -v%d, v%d, v%d" % (q_, s_, s_, q_))
        a("v_max_f32 v%d, 0, v%d" % (q_, q_))
        a("v_add_f32 v%d, 0x3727c5ac, v%d" % (q_, q_))
        a("v_rsq_f32 v%d, v%d" % (88 + 2 * p, q_))
        a("v_mul_f32 v%d, v%d, v%d" % (89 + 2 * p, s_, 88 + 2 * p))
        a("v_sub_f32 v%d, 0, v%d" % (89 + 2 * p, 89 + 2 * p))
    a("s_lshl_b32 s52, s2, 8")
    a("s_add_u32 s52, s52, 0x%x" % WS_STA)
    a("s_add_u32 s53, s52, 8192")
    a("v_lshlrev_b32 v9, 2, v5")
    a("v_cmp_eq_u32 vcc, 0, v1")
    a("s_and_saveexec_b64 s[54:55], vcc")
    a("buffer_store_dword v88, v9, %s, s52 offen %s" % (WS, SC))
    a("buffer_store_dword v89, v9, %s, s53 offen %s" % (WS, SC))
    a("buffer_store_dword v90, v9, %s, s52 offen offset:32 %s" % (WS, SC))
    a("buffer_store_dword v91, v9, %s, s53 offen offset:32 %s" % (WS, SC))
    a("s_mov_b64 exec, s[54:55]")
    srd(a, 40, 22, 23, D * F * 2)
    a("v_mul_u32_u24 v10, 3584, v2")
    a("v_lshl_add_u32 v10, v1, 4, v10")
    a("s_lshl_b32 s52, s2, 7")
    a("s_cmp_lt_u32 s2, 28")
    a("s_cselect_b32 s52, s52, 0x40000000")
    for i in range(14):
        a("buffer_load_dwordx4 v[%d:%d], v10, s[40:43], s52 offen" % (100 + 4 * i, 103 + 4 * i))
        if i != 13: a("s_add_u32 s52, s52, %d" % (32 * 3584))
    a("s_waitcnt vmcnt(14) lgkmcnt(0)")
    token(a)
    a("s_barrier")
    a("s_add_u32 s52, s2, %d" % FS_IDX)
    publish(a, 52)
    a("s_waitcnt vmcnt(0)")
    a("v_mov_b32 v8, 0x00003f80")
    a("v_mov_b32 v9, 0x3f800000")
    for r in range(16, 24): a("v_mov_b32 v%d, 0" % r)
    for i in range(14):
        for c in range(4):
            a("v_dot2_f32_bf16 v%d, v%d, v8, v%d" % (16 + 2 * c, 100 + 4 * i + c, 16 + 2 * c))
            a("v_dot2_f32_bf16 v%d, v%d, v9, v%d" % (17 + 2 * c, 100 + 4 * i + c, 17 + 2 * c))
    a("v_lshlrev_b32 v24, 8, v2")
    a("v_lshl_add_u32 v24, v1, 5, v24")
    a("ds_write_b128 v24, v[16:19]")
    a("ds_write_b128 v24, v[20:23] offset:16")
    a("v_and_b32 v25, 63, v0")
    a("v_lshrrev_b32 v26, 6, v0")
    a("v_lshlrev_b32 v27, 11, v26")
    a("v_lshl_add_u32 v27, v25, 2, v27")
    a("s_waitcnt lgkmcnt(0)")
    a("s_barrier")
    for i in range(8):
        a("ds_read_b32 v%d, v27 offset:%d" % (28 + i, i * 256))
    a("s_waitcnt lgkmcnt(0)")
    for i in range(1, 8):
        a("v_add_f32 v28, v28, v%d" % (28 + i))
    a("v_lshlrev_b32 v27, 8, v26")
    a("v_lshl_add_u32 v27, v25, 2, v27")
    a("ds_write_b32 v27, v28 offset:8192")
    a("v_lshlrev_b32 v27, 2, v25")
    a("s_waitcnt lgkmcnt(0)")
    a("s_barrier")
    for i in range(4):
        a("ds_read_b32 v%d, v27 offset:%d" % (28 + i, 8192 + i * 256))
    a("s_waitcnt lgkmcnt(0)")
    a("v_add_f32 v28, v28, v29")
    a("v_add_f32 v30, v30, v31")
    a("v_add_f32 v28, v28, v30")
    a("v_mul_f32 v28, 0xbb124925, v28")
    lab = a.label("NOCM")
    a("s_cmp_ge_u32 s2, 28")
    a("s_cbranch_scc1 %s" % lab)
    a("s_cmp_lg_u32 s49, 0")
    a("s_cbranch_scc1 %s" % lab)
    a("s_lshl_b32 s52, s2, 8")
    a("s_add_u32 s52, s52, 0x%x" % WS_CM)
    a("buffer_store_dword v28, v27, %s, s52 offen %s" % (WS, SC))
    a(lab + ":")
    a("s_waitcnt vmcnt(0) lgkmcnt(0)")
    a("s_barrier")
    a("s_add_u32 s52, s2, %d" % FC_IDX)
    publish(a, 52)
    S(a, "B3")
    fstamp_flush(a)
    a("s_endpgm")

def gen(cfg=Cfg):
    a = Asm()
    for l in kernel_header(KN): a(l)
    a("s_load_dwordx16 s[8:23], s[0:1], 0")
    a("s_load_dwordx8 s[24:31], s[0:1], 64")
    S(a, "start")
    a("s_cmp_ge_u32 s2, 256")
    a("s_cbranch_scc1 L_END")
    a("v_lshrrev_b32 v1, 6, v0")
    a("v_and_b32 v2, 63, v0")
    a("v_readfirstlane_b32 s49, v1")
    a("s_mov_b32 s50, 0x%x" % (WS_FLAG + E_IDX * 64))
    a("s_sub_u32 s3, s2, 32")
    a("s_mul_i32 s56, s3, 9363")
    a("s_lshr_b32 s56, s56, 16")
    a("s_mul_i32 s57, s56, 7")
    a("s_sub_u32 s57, s3, s57")
    a("s_and_b32 s52, s3, 7")
    a("s_lshr_b32 s53, s3, 3")
    a("s_mul_i32 s58, s52, 28")
    a("s_add_u32 s58, s58, s53")
    a("s_lshr_b32 s59, s52, 1")
    a("s_lshl_b32 s59, s59, 2")
    a("s_and_b32 s54, s53, 3")
    a("s_add_u32 s59, s59, s54")
    a("s_and_b32 s60, s52, 1")
    a("s_mul_i32 s60, s60, 7")
    a("s_lshr_b32 s55, s53, 2")
    a("s_add_u32 s60, s60, s55")
    a("s_lshl_b32 s61, s52, 2")
    a("s_add_u32 s61, s61, s54")
    a("s_mov_b32 s62, s55")
    a("v_and_b32 v1, 7, v0")
    a("v_lshrrev_b32 v14, 3, v0")
    a("s_mul_i32 s52, s56, %d" % (64 * 896))
    a("s_lshl_b32 s53, s57, 7")
    a("s_add_u32 s52, s52, s53")
    a("v_mul_u32_u24 v8, %d, v14" % (2 * 896))
    a("v_lshl_add_u32 v8, v1, 4, v8")
    a("v_add_u32 v8, s52, v8")
    for j in range(5):
        d = (j - 3) * 896
        if d < 0: a("v_subrev_u32 v%d, %d, v8" % (3 + j, -d))
        else: a("v_add_u32 v%d, %d, v8" % (3 + j, d))
    a("s_lshl_b32 s53, s57, 9")
    a("v_lshl_add_u32 v9, v1, 6, s53")
    a("s_waitcnt lgkmcnt(0)")
    a("s_load_dword s48, s[30:31], s50")
    srd(a, 32, 30, 31, WS_STAMP)
    a("s_cmp_lt_u32 s2, 32")
    a("s_cbranch_scc1 L_STATS")
    srd(a, 36, 10, 11, NB_SD)
    srd(a, 44, 12, 13, NB_SD)
    srd(a, 40, 14, 15, 448 * 4 * 2)
    srd(a, 4, 8, 9, NB_SD)
    for j in range(5):
        a.vm("buffer_load_dwordx4 v[%d:%d], v%d, s[36:39], 0 offen" % (16 + 4 * j, 19 + 4 * j, 3 + j), "k")
    for j in range(4):
        a.vm("buffer_load_dwordx4 v[%d:%d], v9, s[40:43], 0 offen offset:%d" % (52 + 4 * j, 55 + 4 * j, 16 * j), "k")
    a.vm("buffer_load_dwordx4 v[36:39], v8, s[44:47], 0 offen", "v")
    a.vm("buffer_load_dwordx4 v[40:43], v8, s[44:47], 0 offen offset:896", "v")
    a.vm("buffer_load_dwordx4 v[44:47], v8, s[4:7], 0 offen", "q")
    a.vm("buffer_load_dwordx4 v[48:51], v8, s[4:7], 0 offen offset:896", "q")
    srd(a, 36, 16, 17, NB_SD)
    a("v_lshlrev_b32 v10, 4, v0")
    a("s_lshl_b32 s52, s58, 13")
    a("s_add_u32 s53, s52, 4096")
    for c in range(2):
        r = 200 + 8 * c
        a.vm("buffer_load_dwordx4 v[%d:%d], v10, s[36:39], s%d offen" % (r, r + 3, 52 + c), "ssm")
        a.vm("buffer_load_dwordx2 v[%d:%d], v10, s[36:39], s%d offen offset:16" % (r + 4, r + 5, 52 + c), "ssm")
    a("v_and_b32 v11, 15, v2")
    a("v_lshrrev_b32 v12, 4, v2")
    a("v_add_u32 v13, v11, v12")
    a("v_subrev_u32 v13, 15, v13")
    a("v_lshlrev_b32 v15, 1, v13")
    a("v_mov_b32 v225, 0x40000000")
    a("v_cmp_gt_i32 vcc, 0, v13")
    a("v_cndmask_b32 v15, v15, v225, vcc")
    a("s_and_b32 s54, s49, 1")
    a("s_lshl_b32 s54, s54, 12")
    a("s_add_u32 s54, s54, s52")
    a.vm("buffer_load_ushort v224, v15, s[36:39], s54 offen", "ssm")
    a("s_lshl_b32 s54, s58, 2")
    a("s_load_dword s63, s[18:19], s54")
    if cfg.cpre:
        a("s_getpc_b64 s[6:7]")
        a("L_PC:")
        a("s_lshl_b32 s52, s49, 13")
        a("v_lshlrev_b32 v226, 7, v2")
        a("v_add_u32 v226, s52, v226")
        a("v_min_u32 v226, L_CODE_END-L_PC-4, v226")
        a.vm("global_load_dword v227, v226, s[6:7]", "pre")
    if cfg.tlb:
        a("v_min_u32 v226, 5, v2")
        a("v_lshlrev_b32 v228, 21, v226")
        a("v_add_u32 v228, 0xf0000, v228")
        a("v_mov_b32 v229, 0x1f0000")
        a("v_cmp_eq_u32 vcc, 1, v226")
        a("v_mov_b32 v230, 0x3f0000")
        a("v_cndmask_b32 v229, v229, v230, vcc")
        a("v_cmp_eq_u32 vcc, 2, v226")
        a("v_mov_b32 v230, 0x4f0000")
        a("v_cndmask_b32 v229, v229, v230, vcc")
        a("v_cmp_eq_u32 vcc, 3, v226")
        a("v_mov_b32 v230, 0x7f0000")
        a("v_cndmask_b32 v229, v229, v230, vcc")
        a("v_cmp_eq_u32 vcc, 4, v226")
        a("v_mov_b32 v230, 0xa80000")
        a("v_cndmask_b32 v229, v229, v230, vcc")
        a("v_cmp_eq_u32 vcc, 5, v226")
        a("v_mov_b32 v230, 0x12f0000")
        a("v_cndmask_b32 v229, v229, v230, vcc")
        a.vm("buffer_load_dword v230, v229, %s, 0 offen" % WS, "pre")
    S(a, "ldiss")
    a("v_sub_u32 v10, 31, v14")
    a("v_lshrrev_b32 v11, 2, v10")
    a("v_xor_b32 v11, v11, v1")
    a("v_lshlrev_b32 v11, 4, v11")
    a("v_and_b32 v10, 3, v10")
    a("v_lshl_add_u32 v11, v10, 2, v11")
    a("v_lshl_add_u32 v11, v1, 10, v11")
    a("v_add_u32 v11, %d, v11" % R1)
    a("v_lshrrev_b32 v12, 2, v14")
    a("v_xor_b32 v12, v12, v1")
    a("v_lshlrev_b32 v12, 4, v12")
    a("v_and_b32 v10, 3, v14")
    a("v_lshl_add_u32 v12, v10, 2, v12")
    a("v_lshl_add_u32 v12, v1, 10, v12")
    a("v_add_u32 v12, %d, v12" % (R1 + 8192))
    a("v_lshrrev_b32 v10, 3, v14")
    a("v_xor_b32 v15, v1, v10")
    a("v_lshlrev_b32 v15, 4, v15")
    a("v_lshl_add_u32 v15, v14, 7, v15")
    a("v_add_u32 v15, %d, v15" % R1)
    a("v_xor_b32 v3, 64, v15") if False else None
    a("v_mul_u32_u24 v13, %d, v14" % RS)
    a("v_lshl_add_u32 v13, v1, 4, v13")
    a("s_mul_i32 s52, s57, %d" % (64 * RS))
    a("s_lshl_b32 s53, s56, 7")
    a("s_sub_u32 s50, 3968, s53")
    a("s_add_u32 s50, s50, s52")
    a("s_add_u32 s51, s52, s53")
    a("s_add_u32 s51, s51, 0x%x" % WS_XT)
    a.vmwait("k")
    S(a, "k_in")
    W = lambda c, t: 68 + (c * 4 + t) * 2
    for c in range(4):
        r = 52 + 4 * c
        a("v_lshlrev_b32 v%d, 16, v%d" % (W(c, 0), r))
        a("v_lshlrev_b32 v%d, 16, v%d" % (W(c, 0) + 1, r + 2))
        a("v_and_b32 v%d, 0xffff0000, v%d" % (W(c, 1), r))
        a("v_and_b32 v%d, 0xffff0000, v%d" % (W(c, 1) + 1, r + 2))
        a("v_lshlrev_b32 v%d, 16, v%d" % (W(c, 2), r + 1))
        a("v_lshlrev_b32 v%d, 16, v%d" % (W(c, 2) + 1, r + 3))
        a("v_and_b32 v%d, 0xffff0000, v%d" % (W(c, 3), r + 1))
        a("v_and_b32 v%d, 0xffff0000, v%d" % (W(c, 3) + 1, r + 3))
    K = lambda j, c: 100 + (j * 4 + c) * 2
    for j in range(5):
        for c in range(4):
            r = 16 + 4 * j + c
            a("v_lshlrev_b32 v%d, 16, v%d" % (K(j, c), r))
            a("v_and_b32 v%d, 0xffff0000, v%d" % (K(j, c) + 1, r))
    U = lambda e, c: 140 + e * 8 + 2 * c
    P = lambda r: "v[%d:%d]" % (r, r + 1)
    for e in range(2):
        for c in range(4):
            a("v_pk_mul_f32 %s, %s, %s" % (P(U(e, c)), P(K(3 + e, c)), P(W(c, 0))))
        for t in range(1, 4):
            for c in range(4):
                a("v_pk_fma_f32 %s, %s, %s, %s" % (P(U(e, c)), P(K(3 + e - t, c)), P(W(c, t)), P(U(e, c))))
    a("v_xor_b32 v3, 64, v15")
    a.vmwait("v")
    for e in range(2):
        for c in range(4):
            r = 36 + 4 * e + c
            t = 156 + (e * 4 + c) * 2
            a("v_lshlrev_b32 v%d, 16, v%d" % (t, r))
            a("v_and_b32 v%d, 0xffff0000, v%d" % (t + 1, r))
    for e in range(2):
        for c in range(4):
            t = 156 + (e * 4 + c) * 2
            a("v_pk_mul_f32 %s, %s, %s" % (P(U(e, c)), P(U(e, c)), P(t)))
    for i in range(8):
        a("v_cvt_pk_bf16_f32 v%d, v%d, v%d" % (172 + i, 148 + i, 140 + i))
    for i in range(8):
        a("ds_write_b32 v11, v%d offset:%d" % (172 + i, i * 128))
    a.vmwait("q")
    a("s_mov_b32 s52, 0x05040100")
    a("s_mov_b32 s53, 0x07060302")
    for i in range(4):
        a("v_perm_b32 v%d, v%d, v%d, s52" % (180 + 2 * i, 48 + i, 44 + i))
        a("v_perm_b32 v%d, v%d, v%d, s53" % (181 + 2 * i, 48 + i, 44 + i))
    for i in range(8):
        a("ds_write_b32 v12, v%d offset:%d" % (180 + i, i * 128))
    a("s_waitcnt lgkmcnt(0)")
    a("s_barrier")
    a("ds_read_b128 v[16:19], v15")
    a("ds_read_b128 v[20:23], v3 offset:4096")
    a("ds_read_b128 v[24:27], v15 offset:8192")
    a("ds_read_b128 v[28:31], v3 offset:12288")
    a("s_add_u32 s52, s50, %d" % (32 * RS))
    a("s_add_u32 s53, s51, %d" % (32 * RS))
    a("s_waitcnt lgkmcnt(3)")
    a.vm("buffer_store_dwordx4 v[16:19], v13, %s, s50 offen %s" % (WS, SC), "p1st")
    a("s_waitcnt lgkmcnt(2)")
    a.vm("buffer_store_dwordx4 v[20:23], v13, %s, s52 offen %s" % (WS, SC), "p1st")
    a("s_waitcnt lgkmcnt(1)")
    a.vm("buffer_store_dwordx4 v[24:27], v13, %s, s51 offen %s" % (WS, SC), "p1st")
    a("s_waitcnt lgkmcnt(0)")
    a.vm("buffer_store_dwordx4 v[28:31], v13, %s, s53 offen %s" % (WS, SC), "p1st")
    S(a, "p1st")
    token(a)
    for c in range(2):
        w0 = 200 + 8 * c
        o = 232 + 0
        b = 140 + 12 * c
        for i in range(4): a("v_alignbit_b32 v%d, v%d, v%d, 16" % (b + i, w0 + i + 1, w0 + i))
        for i in range(4): a("v_mov_b32 v%d, v%d" % (b + 4 + i, w0 + i + 1))
        for i in range(4): a("v_alignbit_b32 v%d, v%d, v%d, 16" % (b + 8 + i, w0 + i + 2, w0 + i + 1))
    a.lines.insert(len(a.lines) - 24, "    s_waitcnt vmcnt(%d)" % (a.vmcount() - 1 - max(i for i, t in enumerate(a.vmlist) if t == "ssm")))
    srd(a, 40, 22, 23, D * F * 2)
    a("v_lshrrev_b32 v6, 4, v2")
    a("v_and_b32 v7, 15, v2")
    a("v_lshlrev_b32 v8, 2, v6")
    a("v_xor_b32 v7, v7, v8")
    a("v_mul_u32_u24 v6, 3584, v6")
    a("v_lshl_add_u32 v6, v7, 4, v6")
    a("s_mul_i32 s54, s49, %d" % (4 * 3584))
    a("s_lshl_b32 s55, s60, 8")
    a("s_add_u32 s54, s54, s55")
    a("s_lshl_b32 s55, s49, 10")
    def w1dma(ks):
        a("s_add_u32 m0, s55, %d" % (ks * 4096))
        a.vm("buffer_load_dwordx4 v6, s[40:43], s54 offen lds", "w1")
        if ks != 27: a("s_add_u32 s54, s54, %d" % (16 * 3584))
    for ks in range(cfg.w1pre): w1dma(ks)
    a.vmwait("p1st")
    a("s_barrier")
    a("s_lshl_b32 s52, s57, 5")
    a("s_add_u32 s52, s52, s56")
    publish(a, 52)
    S(a, "F1pub")
    if cfg.wpre:
        srd(a, 44, 24, 25, D * F * 2)
        a("s_mul_i32 s52, s3, 56")
        a("s_mul_i32 s53, s49, 14")
        a("s_add_u32 s52, s52, s53")
        a("v_min_u32 v226, 13, v2")
        a("v_add_u32 v226, s52, v226")
        a("v_lshlrev_b32 v226, 7, v226")
        a.vm("buffer_load_dword v228, v226, s[44:47], 0 offen", "pre")
    if cfg.upto == 1:
        a("s_branch L_DONE")
    a("v_lshlrev_b32 v9, 4, v0")
    a("v_add_u32 v9, %d, v9" % (32 + HC))
    for c in range(2):
        w0 = 200 + 8 * c; b = 140 + 12 * c
        base = c * HC_CH
        a("ds_write_b128 v9, v[%d:%d] offset:%d" % (b, b + 3, base + 0 * 4160))
        a("ds_write_b128 v9, v[%d:%d] offset:%d" % (b + 4, b + 7, base + 1 * 4160))
        a("ds_write_b128 v9, v[%d:%d] offset:%d" % (b + 8, b + 11, base + 2 * 4160))
        a("ds_write_b128 v9, v[%d:%d] offset:%d" % (w0 + 2, w0 + 5, base + 3 * 4160))
    a("v_and_b32 v10, 15, v2")
    a("v_lshrrev_b32 v11, 4, v2")
    a("v_mul_u32_u24 v9, 4160, v11")
    a("v_lshl_add_u32 v9, v10, 1, v9")
    a("s_and_b32 s52, s49, 1")
    a("s_mul_i32 s52, s52, %d" % HC_CH)
    a("s_add_u32 s52, s52, %d" % HC)
    a("v_add_u32 v9, s52, v9")
    a("ds_write_b16 v9, v224")
    a("v_lshrrev_b32 v13, 5, v2")
    a("v_mul_u32_u24 v13, %d, v13" % UR_CH)
    a("v_and_b32 v12, 31, v2")
    a("v_lshl_add_u32 v13, v12, 4, v13")
    a("v_add_u32 v13, %d, v13" % (UR + 4096))
    for i in range(4): a("v_mov_b32 v%d, 0" % (240 + i))
    a("ds_write_b128 v13, v[240:243]")
    for ks in range(cfg.w1pre, 28): w1dma(ks)
    a("v_bfe_u32 v4, v2, 2, 2")
    a("v_lshrrev_b32 v5, 5, v2")
    a("v_lshl_add_u32 v5, v5, 2, v4")
    a("v_lshlrev_b32 v5, 8, v5")
    a("v_lshl_add_u32 v5, v4, 6, v5")
    a("v_bfe_u32 v4, v2, 4, 1")
    a("v_lshl_add_u32 v5, v4, 5, v5")
    a("v_and_b32 v4, 3, v2")
    a("v_lshl_add_u32 v5, v4, 3, v5")
    a("s_lshl_b32 s52, s49, 6")
    a("v_xor_b32 v6, s52, v5")
    a("v_add_u32 v7, 0x10000, v6")
    S(a, "prepoll")
    a("s_lshr_b32 s52, s58, 5")
    a("s_lshl_b32 s52, s52, 5")
    a("v_and_b32 v12, 31, v2")
    a("v_add_u32 v12, s52, v12")
    a("v_lshlrev_b32 v12, 6, v12")
    a("s_lshr_b32 s52, s49, 1")
    a("s_and_b32 s53, s49, 1")
    a("v_and_b32 v16, 3, v10") if False else None
    A_, B_ = 128, 129
    a("v_and_b32 v%d, 3, v10" % A_)
    a("v_mul_u32_u24 v%d, 4160, v%d" % (A_, A_))
    a("v_lshrrev_b32 v130, 2, v10")
    a("v_lshl_add_u32 v%d, v130, 3, v%d" % (A_, A_))
    a("v_lshl_add_u32 v%d, v11, 4, v%d" % (A_, A_))
    a("s_mul_i32 s36, s52, %d" % HC_CH)
    a("s_lshl_b32 s37, s53, 8")
    a("s_add_u32 s36, s36, s37")
    a("s_add_u32 s36, s36, %d" % HC)
    a("v_add_u32 v%d, s36, v%d" % (A_, A_))
    a("v_lshlrev_b32 v%d, 5, v10" % B_)
    a("v_lshlrev_b32 v130, 4, v11")
    a("v_sub_u32 v%d, v130, v%d" % (B_, B_))
    a("s_mul_i32 s36, s52, %d" % UR_CH)
    a("s_add_u32 s36, s36, s37")
    a("s_add_u32 s36, s36, %d" % (UR + 480))
    a("v_add_u32 v%d, s36, v%d" % (B_, B_))
    AD = 132
    a("s_lshl_b32 s36, s52, 4")
    a("s_lshr_b32 s37, s63, s36")
    a("s_and_b32 s37, s37, 0xffff")
    a("s_cmp_eq_u32 s53, 0")
    a("s_cselect_b32 s37, s37, 0")
    a("v_lshlrev_b32 v130, 3, v11")
    a("v_add_u32 v130, v130, v10")
    a("v_sub_u32 v130, 15, v130")
    a("v_and_b32 v131, 1, v130")
    a("v_lshlrev_b32 v131, 4, v131")
    a("v_mov_b32 v136, s37")
    a("v_lshlrev_b32 v131, v131, v136")
    a("v_ashrrev_i32 v130, 1, v130")
    for dw in range(4):
        a("v_cmp_eq_u32 vcc, %d, v130" % dw)
        a("v_cndmask_b32 v%d, 0, v131, vcc" % (AD + dw))
    ACC = 136
    a("v_lshlrev_b32 v4, 4, v2")
    a("v_and_b32 v14, 127, v0")
    a("v_lshrrev_b32 v15, 7, v0")
    a("v_lshlrev_b32 v13, 4, v14")
    a("v_mul_u32_u24 v241, %d, v15" % RS)
    a("v_add_u32 v13, v241, v13")
    a("v_lshlrev_b32 v9, 5, v14")
    a("s_mul_i32 s54, s58, %d" % (2 * RS))
    a("s_mul_i32 s55, s52, %d" % RS)
    a("s_add_u32 s55, s55, s54")
    a("s_lshl_b32 s50, s53, 11")
    a("s_add_u32 s38, s55, s50")
    a("s_mul_i32 s39, s52, %d" % UR_CH)
    a("s_add_u32 s39, s39, s50")
    a("s_add_u32 s39, s39, %d" % UR)
    a("s_mov_b32 s53, 0x%x" % WS_FLAG)
    a.vmwait("w1")
    a("s_waitcnt lgkmcnt(0)")
    poll(a, [12], 53)
    S(a, "B1")
    a("s_mov_b32 m0, s39")
    a("s_add_u32 s37, s38, 1024")
    a.vm("buffer_load_dwordx4 v4, %s, s38 offen lds" % WS, "ur")
    a("s_add_u32 m0, s39, 1024")
    a.vm("buffer_load_dwordx4 v4, %s, s37 offen lds" % WS, "ur")
    a("s_add_u32 s36, s54, 0x%x" % WS_XT)
    XR = 168; SA = 176
    for g in range(2):
        a.vm("buffer_load_dwordx4 v[%d:%d], v13, %s, s36 offen offset:%d" % (XR + 4 * g, XR + 4 * g + 3, WS, 2048 * g), "ep")
    FR = 16
    for ks in range(28):
        b = 6 if ks < 16 else 7
        a("ds_read_b64_tr_b16 v[%d:%d], v%d offset:%d" % (FR + 4 * ks, FR + 4 * ks + 1, b, (ks & 15) * 4096))
        a("ds_read_b64_tr_b16 v[%d:%d], v%d offset:%d" % (FR + 4 * ks + 2, FR + 4 * ks + 3, b, (ks & 15) * 4096 + 2048))
    srd(a, 40, 24, 25, D * F * 2)
    a("v_lshrrev_b32 v6, 3, v2")
    a("v_and_b32 v7, 7, v2")
    a("v_bfe_u32 v8, v2, 4, 1")
    a("v_lshlrev_b32 v8, 2, v8")
    a("v_xor_b32 v7, v7, v8")
    a("v_mul_u32_u24 v6, 896, v6")
    a("v_lshl_add_u32 v6, v7, 4, v6")
    a("s_mul_i32 s44, s49, %d" % (448 * 896))
    a("s_lshl_b32 s45, s62, 7")
    a("s_add_u32 s44, s44, s45")
    a("s_mul_i32 s45, s49, 20480")
    a("s_add_u32 s45, s45, 32768")
    def w2dma(base_sgpr, i, tag):
        def f():
            a("s_add_u32 m0, s%d, %d" % (base_sgpr, i * 1024))
            a.vm("buffer_load_dwordx4 v6, s[40:43], s44 offen lds", tag)
            a("s_add_u32 s44, s44, %d" % (8 * 896))
        return f
    a.vmwait("ur")
    a("s_waitcnt lgkmcnt(0)")
    a("s_barrier")
    S(a, "URin")
    AB = [0, 32]; BB = [64, 96]
    def readA(st, rho, aa):
        r = AB[st] + 4 * aa
        off = 64 * rho + 512 * aa
        return ["ds_read_b64 a[%d:%d], v%d offset:%d" % (r, r + 1, A_, off),
                "ds_read_b64 a[%d:%d], v%d offset:%d" % (r + 2, r + 3, A_, off + 8)]
    def readB(st, rho, b):
        r = BB[st] + 4 * b
        return ["ds_read_b128 a[%d:%d], v%d offset:%d" % (r, r + 3, B_, 64 * rho + 512 * (7 - b))]
    def mfma(t, areg, breg, av=False):
        c = "0" if av else "v[%d:%d]" % (ACC + 4 * t, ACC + 4 * t + 3)
        return "v_mfma_f32_16x16x32_bf16 v[%d:%d], %s[%d:%d], a[%d:%d], %s" % (ACC + 4 * t, ACC + 4 * t + 3, "v" if av else "a", areg, areg + 3, breg, breg + 3, c)
    def fs_issue():
        a("v_and_b32 v12, 31, v2")
        a("v_add_u32 v12, %d, v12" % FS_IDX)
        a("v_lshlrev_b32 v12, 6, v12")
        a("s_mov_b32 s53, 0x%x" % WS_FLAG)
        a.vm("buffer_load_dword v8, v12, %s, s53 offen sc0 sc1" % WS, "fs")
    def st_load(g, hlf, which):
        def f():
            reg = SA + 16 * which + 8 * g + 4 * hlf
            a("s_mov_b32 s36, 0x%x" % ((WS_STA if which == 0 else WS_STB) + 4096 * g))
            a.vm("buffer_load_dwordx4 v[%d:%d], v9, %s, s36 offen offset:%d" % (reg, reg + 3, WS, 16 * hlf), "ep")
        return f
    def cm_load():
        a("s_lshl_b32 s36, s60, 2")
        a("s_add_u32 s36, s36, s49")
        a("s_lshl_b32 s36, s36, 7")
        a("s_add_u32 s36, s36, 0x%x" % WS_CM)
        a("v_and_b32 v12, 31, v2")
        a("v_lshlrev_b32 v12, 2, v12")
        a.vm("buffer_load_dword v3, v12, %s, s36 offen" % WS, "cm")
    def fc_issue():
        a("v_add_u32 v12, %d, v12" % ((FC_IDX - FS_IDX) * 64))
        a.vm("buffer_load_dword v8, v12, %s, s53 offen sc0 sc1" % WS, "fc")
    sides = {0: [w2dma(45, i, "w2r1") for i in range(0, 8)],
             1: [fs_issue] + [w2dma(45, i, "w2r1") for i in range(8, 16)],
             2: [w2dma(45, i, "w2r1") for i in range(16, 20)],
             3: [st_load(g, h, w) for g in range(2) for h in range(2) for w in range(2)] + [fc_issue]}
    for b in range(8):
        for l in readB(0, 0, b): a(l)
    for aa in range(8):
        for l in readA(0, 0, aa): a(l)
    for rho in range(4):
        st = rho & 1
        nxt = []
        if rho < 3:
            for b in range(8): nxt += readB(1 - st, rho + 1, b)
            for aa in range(8): nxt += readA(1 - st, rho + 1, aa)
        ms = []
        if rho == 0:
            for t in range(8): ms.append((mfma(t, AD, BB[st] + 4 * t, True), None))
        for aa in range(8):
            for t in range(aa, 8):
                ms.append((mfma(t, AB[st] + 4 * aa, BB[st] + 4 * (t - aa)), aa))
        a("s_waitcnt lgkmcnt(%d)" % (15 if rho == 0 else 0))
        if rho == 3:
            poll_late(a, 12, 53, 8, "fs")
        side = list(sides[rho]); step = max(1, len(ms) // (len(side) + 1))
        ni = 0; waited = -1
        for i, (m, aa) in enumerate(ms):
            if rho == 0 and aa is not None and aa > waited and aa <= 1:
                a("s_waitcnt lgkmcnt(%d)" % (14 if aa == 0 else 0))
                waited = aa
            a(m)
            if (rho > 0 or waited == 1) and ni < len(nxt):
                a(nxt[ni]); ni += 1
            if (i + 1) % step == 0 and side:
                side.pop(0)()
        while ni < len(nxt):
            a(nxt[ni]); ni += 1
        while side: side.pop(0)()
    S(a, "conv")
    a("v_lshl_add_u32 v130, v10, 2, v11")
    a("v_bfe_u32 v131, v10, 1, 2")
    a("v_xor_b32 v130, v130, v131")
    a("v_lshlrev_b32 v130, 4, v130")
    a("s_lshl_b32 s36, s49, 13")
    a("s_add_u32 s36, s36, %d" % PB)
    a("v_add_u32 v130, s36, v130")
    a("v_and_b32 v131, 31, v14")
    a("v_lshlrev_b32 v132, 1, v131")
    a("v_bfe_u32 v133, v131, 2, 2")
    a("v_xor_b32 v132, v132, v133")
    a("v_lshlrev_b32 v132, 4, v132")
    a("v_lshrrev_b32 v133, 5, v14")
    a("v_lshl_add_u32 v132, v133, 10, v132")
    a("v_lshl_add_u32 v132, v15, 14, v132")
    if PB: a("v_add_u32 v132, %d, v132" % PB)
    a("v_xor_b32 v133, 16, v132")
    for t in range(8):
        a("ds_write_b128 v130, v[%d:%d] offset:%d" % (ACC + 4 * t, ACC + 4 * t + 3, 1024 * t))
    a.vmwait("ep")
    X = 224
    Z = 208
    a("s_add_u32 s36, s54, 0x%x" % WS_HT)
    a("s_waitcnt lgkmcnt(0)")
    a("s_barrier")
    ZR = [136, 152]
    for g in range(2):
        for hf in range(2):
            a("ds_read_b128 v[%d:%d], v132 offset:%d" % (ZR[g] + 8 * hf, ZR[g] + 8 * hf + 3, hf * 8192 + g * 4096))
            a("ds_read_b128 v[%d:%d], v133 offset:%d" % (ZR[g] + 8 * hf + 4, ZR[g] + 8 * hf + 7, hf * 8192 + g * 4096))
    for g in range(2):
        Xg = 208 + 16 * g
        for i in range(4):
            a("v_lshlrev_b32 v%d, 16, v%d" % (Xg + 2 * i, XR + 4 * g + i))
            a("v_and_b32 v%d, 0xffff0000, v%d" % (Xg + 2 * i + 1, XR + 4 * g + i))
        for i in range(4):
            A2 = SA + 8 * g + 2 * i; B2 = SA + 16 + 8 * g + 2 * i
            a("v_pk_fma_f32 v[%d:%d], v[%d:%d], v[%d:%d], v[%d:%d]" % (Xg + 8 + 2 * i, Xg + 9 + 2 * i, Xg + 2 * i, Xg + 2 * i + 1, A2, A2 + 1, B2, B2 + 1))
    for g in range(2):
        Xg = 208 + 16 * g
        a("s_waitcnt lgkmcnt(%d)" % (4 if g == 0 else 0))
        z = ZR[g]
        for i in range(4):
            a("v_pk_add_f32 v[%d:%d], v[%d:%d], v[%d:%d]" % (z + 2 * i, z + 2 * i + 1, z + 2 * i, z + 2 * i + 1, z + 8 + 2 * i, z + 9 + 2 * i))
        for i in range(4):
            a("v_pk_fma_f32 v[%d:%d], v[%d:%d], v[%d:%d], v[%d:%d]" % (z + 2 * i, z + 2 * i + 1, Xg + 8 + 2 * i, Xg + 9 + 2 * i, z + 2 * i, z + 2 * i + 1, Xg + 2 * i, Xg + 2 * i + 1))
        for i in range(4):
            a("v_cvt_pk_bf16_f32 v%d, v%d, v%d" % (z + 8 + i, z + 2 * i, z + 2 * i + 1))
        a.vm("buffer_store_dwordx4 v[%d:%d], v13, %s, s36 offen offset:%d %s" % (z + 8, z + 11, WS, 2048 * g, SC), "p2st")
    S(a, "p2st")
    poll_late(a, 12, 53, 8, "fc")
    cm_load()
    a("v_bfe_u32 v7, v2, 2, 2")
    a("v_lshrrev_b32 v8, 5, v2")
    a("v_lshl_add_u32 v8, v8, 2, v7")
    a("v_lshlrev_b32 v8, 7, v8")
    a("v_bfe_u32 v7, v2, 3, 1")
    a("v_lshl_add_u32 v8, v7, 6, v8")
    a("v_bfe_u32 v7, v2, 4, 1")
    a("v_lshl_add_u32 v8, v7, 5, v8")
    a("v_and_b32 v7, 3, v2")
    a("v_lshl_add_u32 v8, v7, 3, v8")
    a("s_lshr_b32 s52, s49, 1")
    a("s_lshl_b32 s52, s52, 6")
    a("v_xor_b32 v245, s52, v8")
    def w2tr_lines(abase, nks, b0, b1):
        out = []
        for ks in range(nks):
            for dt in range(2):
                r = abase + (ks * 2 + dt) * 4
                b = b0 if dt == 0 else b1
                out.append("ds_read_b64_tr_b16 a[%d:%d], v%d offset:%d" % (r, r + 1, b, ks * 2048))
                out.append("ds_read_b64_tr_b16 a[%d:%d], v%d offset:%d" % (r + 2, r + 3, b, ks * 2048 + 1024))
        return out
    def f2_addr():
        a("v_lshlrev_b32 v12, 6, v2")
        a("v_add_u32 v13, %d, v12" % (64 * 64))
        a("v_add_u32 v14, %d, v12" % (128 * 64))
        a("v_min_u32 v15, 31, v2")
        a("v_lshlrev_b32 v15, 6, v15")
        a("v_add_u32 v15, %d, v15" % (192 * 64))
    def f2_issue(soff):
        lab = a.label("FI")
        a("s_cmp_lg_u32 s49, 0")
        a("s_cbranch_scc1 %s" % lab)
        for i, v in enumerate((12, 13, 14, 15)):
            a("buffer_load_dword v%d, v%d, %s, s%d offen sc0 sc1" % (246 + i, v, WS, soff))
        a(lab + ":")
    def f2_check(soff):
        lp = a.label("POLL"); done = a.label("PDONE"); chk = a.label("PCHK")
        a("s_cmp_lg_u32 s49, 0")
        a("s_cbranch_scc1 %s" % done)
        a("s_mov_b32 s51, 0")
        a("s_branch %s" % chk)
        a(lp + ":")
        for i, v in enumerate((12, 13, 14, 15)):
            a("buffer_load_dword v%d, v%d, %s, s%d offen sc0 sc1" % (246 + i, v, WS, soff))
        a(chk + ":")
        a("s_waitcnt vmcnt(0)")
        for i in range(4): a("v_xor_b32 v%d, s%d, v%d" % (246 + i, S_T, 246 + i))
        for i in range(1, 4): a("v_or_b32 v246, v246, v%d" % (246 + i))
        a("v_cmp_ne_u32 vcc, 0, v246")
        a("s_nop 4")
        a("s_cmp_eq_u64 vcc, 0")
        a("s_cbranch_scc1 %s" % done)
        a("s_add_u32 s51, s51, 1")
        a("s_cmp_lt_u32 s51, 0x40000")
        a("s_cbranch_scc1 %s" % lp)
        a(done + ":")
    a("v_add_u32 v9, s45, v245")
    a("v_xor_b32 v7, 64, v9")
    a.vmwait("w2r1")
    for l in w2tr_lines(128, 10, 9, 7): a(l)
    a("s_lshl_b32 s46, s49, 13")
    a("s_lshl_b32 s47, s49, 12")
    a("s_add_u32 s47, s47, %d" % YB)
    a("v_lshrrev_b32 v10, 3, v2")
    a("v_and_b32 v241, 7, v2")
    a("v_bfe_u32 v242, v2, 4, 1")
    a("v_lshlrev_b32 v242, 2, v242")
    a("v_xor_b32 v241, v241, v242")
    a("v_mul_u32_u24 v10, %d, v10" % RS)
    a("v_lshl_add_u32 v10, v241, 4, v10")
    a("s_mul_i32 s38, s49, %d" % (8 * RS))
    a("s_lshl_b32 s39, s59, 7")
    a("s_add_u32 s38, s38, s39")
    a("s_add_u32 s38, s38, 0x%x" % WS_HT)
    a("s_lshl_b32 s39, s49, 10")
    a.vmwait("p2st")
    a("s_waitcnt lgkmcnt(0)")
    a("s_barrier")
    a("s_add_u32 s52, s3, %d" % F2_IDX)
    publish(a, 52)
    S(a, "F2pub")
    if cfg.upto == 2:
        a("s_branch L_DONE")
    def hdma(half, i):
        def f():
            a("s_add_u32 m0, s39, %d" % ((HA, HB_)[half] + i * 4096))
            a.vm("buffer_load_dwordx4 v10, %s, s38 offen lds" % WS, "h%d_%d" % (half, i))
            if i != 13: a("s_add_u32 s38, s38, %d" % (32 * RS))
            elif half == 0: a("s_sub_u32 s38, s38, %d" % (13 * 32 * RS - 2048))
        return f
    def w2round(tag):
        return [w2dma(46, i, tag) for i in range(8)] + [w2dma(47, i, tag) for i in range(4)]
    def w2round_reads(abaseX, abaseY):
        return w2tr_lines(abaseX, 4, 9, 7) + w2tr_lines(abaseY, 2, 11, 3)
    a("v_mov_b32 v128, 0x00003f80")
    a("v_mov_b32 v129, 0x3f800000")
    cen = []
    for g in range(28):
        for i in range(4):
            r = FR + 4 * g + i; t = 132 + 8 * (g & 1) + 2 * i
            cen.append("v_dot2_f32_bf16 v%d, v%d, v128, v3" % (t, r))
            cen.append("v_dot2_f32_bf16 v%d, v%d, v129, v3" % (t + 1, r))
        if g > 0:
            for i in range(4):
                r = FR + 4 * (g - 1) + i; t = 132 + 8 * ((g - 1) & 1) + 2 * i
                cen.append("v_cvt_pk_bf16_f32 v%d, v%d, v%d" % (r, t, t + 1))
    for i in range(4):
        cen.append("s_nop 0")
    for i in range(4):
        r = FR + 4 * 27 + i; t = 132 + 8 * (27 & 1) + 2 * i
        cen.append("v_cvt_pk_bf16_f32 v%d, v%d, v%d" % (r, t, t + 1))
    a.vmwait("cm")
    interleave(a, cen, w2round("w2r2"), 20)
    S(a, "cen")
    a("v_add_u32 v9, s46, v245")
    a("v_xor_b32 v7, 64, v9")
    a("v_add_u32 v11, s47, v245")
    a("v_xor_b32 v3, 64, v11")
    a("v_add_u32 v128, %d, v8" % HA)
    a("v_xor_b32 v129, 64, v128")
    a("v_add_u32 v130, %d, v8" % HB_)
    a("v_xor_b32 v131, 64, v130")
    a.vmwait("w2r2")
    S(a, "w2a_in")
    for l in w2round_reads(0, 32): a(l)
    f2_addr()
    a("s_mov_b32 s53, 0x%x" % (WS_FLAG + F2_IDX * 64))
    a.lkall()
    S(a, "w2a_tr")
    poll(a, [12, 13, 14, 15], 53)
    S(a, "B2")
    for i in range(14): hdma(0, i)()
    hB = [hdma(1, i) for i in range(14)]
    for i in range(cfg.hpreB): hB.pop(0)()
    lab = a.label("EPO")
    a("s_or_b32 s52, s3, s49")
    a("s_cmp_lg_u32 s52, 0")
    a("s_cbranch_scc1 %s" % lab)
    a("s_mov_b32 s52, %d" % E_IDX)
    publish(a, 52)
    a(lab + ":")
    NB = 3
    HBUF = 200
    def hreads(ks, ps):
        out = []
        for i in range(2):
            r = HBUF + (ks % NB) * 8 + 4 * i
            vb = 128 + 2 * ps + i
            tag = "hr%d_%d_%d" % (ps, ks, i)
            out.append(("ds_read_b64_tr_b16 v[%d:%d], v%d offset:%d" % (r, r + 1, vb, ks * 2048), tag))
            out.append(("ds_read_b64_tr_b16 v[%d:%d], v%d offset:%d" % (r + 2, r + 3, vb, ks * 2048 + 1024), tag))
        return out
    ACCP = [136, 168]
    r3 = w2round("w2r3"); r4 = w2round("w2r4")
    sync1 = {0: 1, 4: 5, 12: 13}
    sync0 = {0: 0, 2: 2, 6: 6, 14: 13}
    for ps in range(2):
        acc = ACCP[ps]
        if ps == 0:
            a.vmwait("h0_%d" % sync0[0]); a("s_barrier")
            S(a, "h_in")
        if ps == 1:
            a.vmwait("w2r3")
            for l in w2round_reads(48, 80): a.lk(l, "r3")
            a.vmwait("h1_%d" % sync1[0]); a("s_barrier")
            S(a, "ps1s")
        for k0 in range(NB - 1):
            for l, t in hreads(k0, ps): a.lk(l, t)
        for ks in range(28):
            kn = ks + NB - 1
            nxt = []
            if kn < 28:
                if ps == 0 and kn in sync0 and kn > 0:
                    a.vmwait("h0_%d" % sync0[kn]); a("s_barrier")
                if ps == 1 and kn in sync1 and kn > 0:
                    a.vmwait("h1_%d" % sync1[kn]); a("s_barrier")
                nxt = hreads(kn, ps)
            if ps == 1 and ks == 2: a.lkneed("r3")
            for i in range(2):
                a.lkneed("hr%d_%d_%d" % (ps, ks, i))
                r = HBUF + (ks % NB) * 8 + 4 * i
                a("v_mfma_f32_32x32x16_bf16 v[%d:%d], v[%d:%d], v[%d:%d], %s" % (acc + 16 * i, acc + 16 * i + 15, FR + 4 * ks, FR + 4 * ks + 3, r, r + 3, "0" if ks == 0 else "v[%d:%d]" % (acc + 16 * i, acc + 16 * i + 15)))
                if nxt:
                    a.lk(*nxt[2 * i]); a.lk(*nxt[2 * i + 1])
            if ps == 0:
                if hB: hB.pop(0)()
                elif r3: r3.pop(0)()
            if ps == 1 and 2 <= ks < 26 and ks % 2 == 0: r4[(ks - 2) // 2]()
            if ps == 1 and ks == cfg.pubA:
                a.vmwait("p3a")
                a("s_barrier")
                a("s_lshl_b32 s37, s59, 4")
                a("s_add_u32 s37, s37, s60")
                a("s_add_u32 s37, s37, %d" % F3_IDX)
                publish(a, 37)
        S(a, "ps%d" % ps)
        if ps == 0:
            while hB: hB.pop(0)()
            while r3: r3.pop(0)()
            a("s_lshl_b32 s43x, s60, 2" if False else "s_lshl_b32 s55, s60, 2")
            a("s_add_u32 s55, s55, s49")
            a("s_lshl_b32 s55, s55, 11")
            a("s_add_u32 s55, s55, 0x%x" % WS_H1F)
        for i in range(2):
            a("s_lshl_b32 s52, s59, 1")
            a("s_add_u32 s52, s52, %d" % (32 * ps + i))
            a("s_mul_i32 s52, s52, %d" % (112 * 1024))
            a("s_add_u32 s52, s52, s55")
            o = 224 + 8 * i
            for q in range(8):
                a("v_cvt_pk_bf16_f32 v%d, v%d, v%d" % (o + q, acc + 16 * i + 2 * q, acc + 16 * i + 2 * q + 1))
            for q in range(8):
                a("v_pk_max_i16 v%d, v%d, 0" % (o + q, o + q))
            a.vm("buffer_store_dwordx4 v[%d:%d], v4, %s, s52 offen %s" % (o, o + 3, WS, SC), "p3a" if ps == 0 else "p3st")
            a.vm("buffer_store_dwordx4 v[%d:%d], v4, %s, s52 offen offset:1024 %s" % (o + 4, o + 7, WS, SC), "p3a" if ps == 0 else "p3st")
        S(a, "ps%de" % ps)
    S(a, "P3mm")
    a("v_min_u32 v15, 13, v2")
    a("v_lshlrev_b32 v15, 6, v15")
    a("s_lshr_b32 s36, s61, 1")
    a("s_lshl_b32 s38, s36, 10")
    a("s_add_u32 s38, s38, 0x%x" % (WS_FLAG + F3_IDX * 64))
    a.vm("buffer_load_dword v14, v15, %s, s38 offen sc0 sc1" % WS, "f3a")
    a("s_and_b32 s52, s49, 1")
    a("s_lshl_b32 s52, s52, 6")
    a("v_xor_b32 v12, s52, v8")
    a("s_lshr_b32 s52, s49, 1")
    a("s_mul_i32 s52, s52, %d" % (HB_ - HA))
    a("s_lshl_b32 s53, s60, 12")
    a("s_add_u32 s52, s52, s53")
    a("s_add_u32 s52, s52, %d" % HA)
    a("v_add_u32 v12, s52, v12")
    for k in range(2):
        a("ds_read_b64_tr_b16 v[%d:%d], v12 offset:%d" % (200 + 4 * k, 201 + 4 * k, k * 2048))
        a("ds_read_b64_tr_b16 v[%d:%d], v12 offset:%d" % (202 + 4 * k, 203 + 4 * k, k * 2048 + 1024))
    a.vmwait("w2r4")
    for l in w2round_reads(96, 208): a(l)
    a.vmwait("p3st")
    a("s_waitcnt lgkmcnt(0)")
    a("s_barrier")
    a("s_lshl_b32 s50, s59, 4")
    a("s_add_u32 s50, s50, s60")
    a("s_add_u32 s37, s50, %d" % F3B_IDX)
    publish(a, 37)
    S(a, "F3pub")
    if cfg.upto == 3:
        a("s_branch L_DONE")
    RING = 30; RB = 80
    a("s_lshr_b32 s36, s61, 1")
    a("s_lshl_b32 s36, s36, 1")
    a("s_and_b32 s39, s61, 1")
    a("s_add_u32 s36, s36, s39")
    a("s_mul_i32 s39, s49, %d" % (28 * 1024))
    a("s_mul_i32 s37, s36, %d" % (112 * 1024))
    a("s_add_u32 s39, s39, s37")
    a("s_add_u32 s39, s39, 0x%x" % WS_H1F)
    def hload(j):
        st, ks = divmod(j, 28)
        r = RB + (j % RING) * 4
        if j == 28: a("s_add_u32 s39, s39, %d" % (32 * 112 * 1024 - 28 * 1024))
        a.vm("buffer_load_dwordx4 v[%d:%d], v4, %s, s39 offen offset:%d" % (r, r + 3, WS, (ks % 4) * 1024), "H%d" % j)
        if ks % 4 == 3: a("s_add_u32 s39, s39, 4096")
    poll_late(a, 15, 38, 14, "f3a")
    S(a, "B3")
    for j in range(cfg.Hpre): hload(j)
    S(a, "H_iss")
    a("v_mov_b32 v208, 0x3f803f80")
    for i in range(4): a("v_mov_b32 v%d, 0" % (210 + i))
    for i in range(8):
        a("v_dot2_f32_bf16 v%d, v%d, v208, v%d" % (210 + 2 * (i & 1), 200 + i, 210 + 2 * (i & 1)))
        a("v_dot2_f32_bf16 v%d, v%d, v%d, v%d" % (211 + 2 * (i & 1), 200 + i, 200 + i, 211 + 2 * (i & 1)))
    a("v_pk_add_f32 v[210:211], v[210:211], v[212:213]")
    a("v_mov_b32 v212, v210")
    a("v_mov_b32 v213, v211")
    a("v_permlane32_swap_b32 v210, v212")
    a("v_permlane32_swap_b32 v211, v213")
    a("v_pk_add_f32 v[210:211], v[210:211], v[212:213]")
    a("s_lshr_b32 s52, s49, 1")
    a("s_lshl_b32 s52, s52, 5")
    a("s_and_b32 s50, s49, 1")
    a("s_add_u32 s52, s52, s50")
    a("s_lshl_b32 s50, s59, 1")
    a("s_add_u32 s52, s52, s50")
    a("s_lshl_b32 s52, s52, 8")
    a("s_lshl_b32 s50, s60, 14")
    a("s_add_u32 s52, s52, s50")
    a("s_add_u32 s52, s52, 0x%x" % WS_ST2P)
    a("v_and_b32 v12, 31, v2")
    a("v_lshlrev_b32 v12, 3, v12")
    a("s_mov_b32 exec_hi, 0")
    a.vm("buffer_store_dwordx2 v[210:211], v12, %s, s52 offen %s" % (WS, SC), "st2p")
    a("s_mov_b64 exec, -1")
    a("v_lshrrev_b32 v12, 3, v2")
    a("v_and_b32 v13, 7, v2")
    a("v_bfe_u32 v10, v2, 4, 1")
    a("v_lshlrev_b32 v10, 2, v10")
    a("v_xor_b32 v13, v13, v10")
    a("v_mul_u32_u24 v12, %d, v12" % RS)
    a("v_lshrrev_b32 v10, 2, v13")
    a("v_lshl_add_u32 v12, v10, 11, v12")
    a("v_and_b32 v13, 3, v13")
    a("v_lshl_add_u32 v12, v13, 4, v12")
    a("s_lshl_b32 s45, s62, 6")
    a("s_lshl_b32 s46, s49, 4")
    a("s_add_u32 s45, s45, s46")
    a("s_mul_i32 s45, s45, %d" % RS)
    a("s_lshl_b32 s46, s36, 6")
    a("s_add_u32 s45, s45, s46")
    a("s_add_u32 s45, s45, 0x%x" % WS_HT)
    a("s_lshl_b32 s46, s49, 11")
    a("s_add_u32 s46, s46, %d" % HRES)
    def hres(i):
        a("s_add_u32 m0, s46, %d" % (i * 1024))
        a.vm("buffer_load_dwordx4 v12, %s, s45 offen lds" % WS, "hres")
        if i == 0: a("s_add_u32 s45, s45, %d" % (8 * RS))
    ACC4 = 16
    a("s_and_b32 s47, s49, 1")
    a("s_lshr_b32 s63, s49, 1")
    a("s_lshl_b32 s52, s47, 5")
    a("s_add_u32 s36, s36, s52")
    a("v_and_b32 v13, 31, v2")
    a("v_lshlrev_b32 v10, 3, v13")
    a("s_add_u32 s38, s38, %d" % ((F3B_IDX - F3_IDX) * 64))
    SP = 200
    def st2load(f):
        a.vm("buffer_load_dwordx2 v[%d:%d], v10, %s, s37 offen" % (SP + 2 * f, SP + 2 * f + 1, WS), "st2")
        if f != 13: a("s_add_u32 s37, s37, 16384")
    def red_write(dtp, st):
        lab = a.label("RW")
        t = 2 * dtp + st
        if dtp == 0:
            a("s_cmp_eq_u32 s47, %d" % st)
            a("s_cbranch_scc1 %s" % lab)
        a("s_lshr_b32 s52, s49, 1")
        a("s_xor_b32 s52, s52, %d" % dtp)
        a("s_lshl_b32 s52, s52, 1")
        a("s_add_u32 s52, s52, %d" % st)
        a("s_sub_u32 s53, s49, s52")
        a("s_and_b32 s53, s53, 3")
        a("s_mul_i32 s52, s52, 3")
        a("s_add_u32 s52, s52, s53")
        a("s_lshl_b32 s52, s52, 12")
        a("s_sub_u32 s52, s52, 4096")
        a("v_add_u32 v14, s52, v4")
        for q in range(4):
            a("ds_write_b128 v14, v[%d:%d] offset:%d" % (ACC4 + 16 * t + 4 * q, ACC4 + 16 * t + 4 * q + 3, q * 1024))
        a(lab + ":")
    RED = red_write
    issued = cfg.Hpre
    S(a, "w2b_tr")
    for j in range(56):
        st, ks = divmod(j, 28)
        if j == cfg.chkB - 6:
            a.vm("buffer_load_dword v14, v15, %s, s38 offen sc0 sc1" % WS, "f3b")
        if j == cfg.chkB:
            poll_late(a, 15, 38, 14, "f3b")
            S(a, "out_stX")
        a.vmwait("H%d" % j)
        S(a, "H%d" % {0: 0, 14: 7, 28: 14, 42: 21, 55: 27}.get(j, 99))
        r = RB + (j % RING) * 4
        ab = 128 + ks * 8 if ks < 10 else (ks - 10) * 8 if ks < 26 else 208 + (ks - 26) * 8
        for dt in range(2):
            t = dt * 2 + st
            a("v_mfma_f32_32x32x16_bf16 v[%d:%d], a[%d:%d], v[%d:%d], %s" % (ACC4 + 16 * t, ACC4 + 16 * t + 15, ab + 4 * dt, ab + 4 * dt + 3, r, r + 3, "0" if ks == 0 else "v[%d:%d]" % (ACC4 + 16 * t, ACC4 + 16 * t + 15)))
            if issued < (56 if j >= cfg.chkB else 28) and issued < j + RING and (j >= cfg.chkB or dt == 0):
                hload(issued); issued += 1
        if j == 8:
            a.vmwait("st2p")
            a("s_barrier")
            a("s_lshl_b32 s37, s59, 4")
            a("s_add_u32 s37, s37, s60")
            a("s_add_u32 s37, s37, %d" % F3C_IDX)
            publish(a, 37)
        if j == 30:
            a("s_add_u32 s48x, s38, 0" if False else "s_add_u32 s43, s38, %d" % ((F3C_IDX - F3B_IDX) * 64))
            a.vm("buffer_load_dword v14, v15, %s, s43 offen sc0 sc1" % WS, "f3c")
        if j == 33:
            poll_late(a, 15, 43, 14, "f3c")
            a("s_lshl_b32 s37, s36, 8")
            a("s_add_u32 s37, s37, 0x%x" % WS_ST2P)
        if j in (30, 31): hres(j - 30)
        if j == 44: red_write(1, 0)
        if j == 47: red_write(0, 0)
        if 34 <= j < 41:
            st2load(2 * (j - 34)); st2load(2 * (j - 34) + 1)
        if j == 50:
            a.vmwait("st2")
            for f in range(1, 14):
                a("v_pk_add_f32 v[%d:%d], v[%d:%d], v[%d:%d]" % (SP, SP + 1, SP, SP + 1, SP + 2 * f, SP + 2 * f + 1))
            a("v_mul_f32 v%d, 0x3b124925, v%d" % (SP, SP))
            a("v_mul_f32 v%d, 0x3b124925, v%d" % (SP + 1, SP + 1))
            a("v_fma_f32 v%d, -v%d, v%d, v%d" % (SP + 1, SP, SP, SP + 1))
            a("v_max_f32 v%d, 0, v%d" % (SP + 1, SP + 1))
            a("v_add_f32 v%d, 0x3727c5ac, v%d" % (SP + 1, SP + 1))
            a("v_rsq_f32 v248, v%d" % (SP + 1))
    a("s_nop 9")
    red_write(1, 1)
    red_write(0, 1)
    labo = a.label("OWN"); labe = a.label("OWNE")
    a("s_cmp_eq_u32 s47, 0")
    a("s_cbranch_scc1 %s" % labo)
    for i in range(16): a("v_mov_b32 v%d, v%d" % (ACC4 + i, ACC4 + 16 + i))
    a(labo + ":")
    S(a, "red_w")
    a("s_lshl_b32 s52, s47, 6")
    a("v_xor_b32 v15, s52, v8")
    a("s_lshl_b32 s52, s63, 12")
    a("s_add_u32 s52, s52, %d" % HRES)
    a("v_add_u32 v15, s52, v15")
    a("s_mul_i32 s52, s49, %d" % (3 * 4096))
    a("v_add_u32 v14, s52, v4")
    srd(a, 40, 26, 27, NB_SD)
    a("v_mul_u32_u24 v7, 896, v13")
    a("v_lshrrev_b32 v9, 5, v2")
    a("v_lshl_add_u32 v7, v9, 4, v7")
    a("s_mul_i32 s52, s36, %d" % (32 * 896))
    a("s_lshl_b32 s53, s62, 1")
    a("s_add_u32 s53, s53, s63")
    a("s_lshl_b32 s53, s53, 6")
    a("s_add_u32 s52, s52, s53")
    a("s_waitcnt lgkmcnt(0)")
    a("s_barrier")
    S(a, "red_b")
    T = 96
    for j4 in range(4):
        a("ds_read_b64_tr_b16 v[%d:%d], v15 offset:%d" % (240 + 2 * j4, 241 + 2 * j4, j4 * 1024))
    for d in range(3):
        for q in range(4):
            a("ds_read_b128 v[%d:%d], v14 offset:%d" % (T + 16 * d + 4 * q, T + 16 * d + 4 * q + 3, d * 4096 + q * 1024))
    a("s_waitcnt lgkmcnt(12)")
    for dw in range(8):
        hx = 160 + 2 * dw
        a("v_lshlrev_b32 v%d, 16, v%d" % (hx, 240 + dw))
        a("v_and_b32 v%d, 0xffff0000, v%d" % (hx + 1, 240 + dw))
    a("s_waitcnt lgkmcnt(8)")
    for i in range(0, 16, 2):
        a("v_pk_add_f32 v[%d:%d], v[%d:%d], v[%d:%d]" % (ACC4 + i, ACC4 + i + 1, ACC4 + i, ACC4 + i + 1, T + i, T + i + 1))
    a("s_waitcnt lgkmcnt(0)")
    for i in range(0, 16, 2):
        a("v_pk_add_f32 v[%d:%d], v[%d:%d], v[%d:%d]" % (T + 16 + i, T + 17 + i, T + 16 + i, T + 17 + i, T + 32 + i, T + 33 + i))
    for i in range(0, 16, 2):
        a("v_pk_add_f32 v[%d:%d], v[%d:%d], v[%d:%d]" % (ACC4 + i, ACC4 + i + 1, ACC4 + i, ACC4 + i + 1, T + 16 + i, T + 17 + i))
    S(a, "red_r")
    for dw in range(8):
        hx = 160 + 2 * dw
        a("v_pk_fma_f32 v[%d:%d], v[%d:%d], v[248:249], v[%d:%d] op_sel_hi:[1,0,1]" % (hx, hx + 1, ACC4 + 2 * dw, ACC4 + 2 * dw + 1, hx, hx + 1))
    for dw in range(8):
        hx = 160 + 2 * dw
        a("v_cvt_pk_bf16_f32 v%d, v%d, v%d" % (180 + dw, hx, hx + 1))
    for jp in range(2):
        A0 = 180 + 4 * jp
        a("v_permlane32_swap_b32 v%d, v%d" % (A0, A0 + 2))
        a("v_permlane32_swap_b32 v%d, v%d" % (A0 + 1, A0 + 3))
    a("buffer_store_dwordx4 v[180:183], v7, s[40:43], s52 offen")
    a("buffer_store_dwordx4 v[184:187], v7, s[40:43], s52 offen offset:32")
    S(a, "out_st")
    a("L_DONE:")
    if common.STAMPS:
        fstamp_flush(a)
    a("L_END:")
    a("s_endpgm")
    gen_stats(a)
    a("L_CODE_END:")
    a("s_endpgm")
    return a.lines, dict(vgpr=256, sgpr=102, lds=LDS_TOTAL, grid=256, agpr=256)

def build(out, cfg=Cfg):
    lines, info = gen(cfg)
    lines = fix_hazards(lines, verbose=True)
    txt = ["; generated by a hand-written generator (gen/fused13.py)",
           "; @launch grid=(%d,1,1) block=(256,1,1) lds=%d" % (info["grid"], info["lds"]),
           '.amdgcn_target "amdgcn-amd-amdhsa--gfx950"', ".text"]
    txt += lines
    txt.append('.section .rodata,"a"')
    txt += kernel_desc(KN, info["vgpr"], info["sgpr"], accum=256, agpr=info["agpr"])
    open(out, "w").write("\n".join(txt) + "\n")

if __name__ == "__main__":
    import sys, os
    common.STAMPS = int(os.environ.get("STAMPS", "0"))
    out = sys.argv[1]
    for kv in sys.argv[2:]:
        k, v = kv.split("=")
        setattr(Cfg, k, int(v))
    build(out)
```

```python
from common import *
F3C_IDX = 1280
RS = 4224
F2B_IDX = 1536
FC_IDX = 288
F1X_IDX = 1792
import common
from fused import fstamp_flush, publish, poll, token, KN, S_T, S_WAVE, WS
import fused

SC = "sc1"
R0 = 0
R1 = 114688
HC = R1; HC_CH = 4 * 4160; UR = HC + 2 * HC_CH; UR_CH = 4608
LDS_TOTAL = 163840
R2W = 12288
HA = 32768; HB_ = 90112; YB = 147456
HRES = 65536
PB = R1
WS_CM = 0x1330000
WS_ST2P = 0x1340000

class Cfg:
    pubfirst = 1
    lateq = 1
    hwait = 0
    oldpro = 1
    r1late = 0
    fsearly = 1
    r1n = 4
    b1sleep = 0
    w1pf = 0
    hpreB = 2
    chk2 = 14
    hw2 = 0
    tlb = 0
    cpre = 1
    slp = 0
    pubA = 16
    chkB = 17
    w1pre = 2
    sset = 0
    upto = 4
    wpre = 1
    hpre = 16
    Hpre = 14

SETS = {
 0: ["start","ldiss","k_in","p1st","F1pub","prepoll","B1","URin","conv","p2st","F2pub","B2","h_in","P3mm","F3pub","B3"],
 1: ["start","B3","H_iss","H0","H7","H14","H21","H27","red_w","red_b","red_r","out_st", "F3pub", "w2b_iss", "w2b_in", "w2b_tr"],
 3: ["start"],
 4: ["start","karg","p1iss","ldiss","k_in","v_in","q_in","p1lds","p1st","drain","F1pub","hcw","prepoll","B1","URin","conv"],
 2: ["start","URin","conv","p2st","F2pub","cen","w2a_tr","B2","h_in","ps0","ps0e","ps1s","ps1","ps1e","F3pub","B3"],
}
def S(a, name):
    names = SETS[Cfg.sset]
    if name in names: stamp(a, names.index(name))

def poll_late(a, vaddr, soff_sgpr, reg, tag):
    lp = a.label("POLL"); done = a.label("PDONE")
    a.vmwait(tag)
    a("v_cmp_ne_u32 vcc, s%d, v%d" % (S_T, reg))
    a("s_nop 4")
    a("s_cmp_eq_u64 vcc, 0")
    a("s_cbranch_scc1 %s" % done)
    a("s_mov_b32 s51, 0")
    a(lp + ":")
    if Cfg.slp: a("s_sleep %d" % Cfg.slp)
    a("buffer_load_dword v%d, v%d, %s, s%d offen sc0 sc1" % (reg, vaddr, WS, soff_sgpr))
    a("s_waitcnt vmcnt(0)")
    a("v_cmp_ne_u32 vcc, s%d, v%d" % (S_T, reg))
    a("s_nop 4")
    a("s_cmp_eq_u64 vcc, 0")
    a("s_cbranch_scc1 %s" % done)
    a("s_add_u32 s51, s51, 1")
    a("s_cmp_lt_u32 s51, 0x40000")
    a("s_cbranch_scc1 %s" % lp)
    a(done + ":")

def interleave(a, main, side, every):
    si = 0
    for i, l in enumerate(main):
        a(l)
        if (i + 1) % every == 0 and si < len(side):
            side[si](); si += 1
    while si < len(side):
        side[si](); si += 1

def gen_stats(a):
    a("L_STATS0:")
    a("s_load_dword s48, s[30:31], s50")
    srd(a, 32, 30, 31, WS_STAMP)
    a("L_STATS:")
    if Cfg.hwait:
        a("s_waitcnt lgkmcnt(0)")
        a("s_mov_b32 s54, s48")
        a("s_mul_i32 s54, s54, 1664525")
        a("s_add_u32 s54, s54, 1013904223")
        a("s_lshl_b32 s53, s2, 6")
        a("s_add_u32 s53, s53, 0x%x" % WS_FLAG)
        a("v_mov_b32 v20, 0")
        a("s_mov_b32 s51, 0")
        a("L_HW:")
        a("buffer_load_dword v21, v20, %s, s53 offen sc0 sc1" % WS)
        a("s_waitcnt vmcnt(0)")
        a("v_cmp_ne_u32 vcc, s54, v21")
        a("s_nop 4")
        a("s_cmp_eq_u64 vcc, 0")
        a("s_cbranch_scc1 L_HWD")
        a("s_add_u32 s51, s51, 1")
        a("s_cmp_lt_u32 s51, 0x40000")
        a("s_cbranch_scc1 L_HW")
        a("L_HWD:")
    a("v_and_b32 v1, 7, v0")
    a("v_lshrrev_b32 v2, 3, v0")
    a("s_mul_i32 s52, s2, %d" % (64 * 896))
    a("v_lshrrev_b32 v3, 3, v2")
    a("v_and_b32 v4, 7, v2")
    a("v_lshl_add_u32 v5, v3, 4, v4")
    a("v_mul_u32_u24 v6, 896, v5")
    a("v_lshl_add_u32 v6, v1, 4, v6")
    a("v_add_u32 v6, s52, v6")
    a("v_add_u32 v7, %d, v6" % (8 * 896))
    srd(a, 36, 8, 9, NB_SD)
    for p in range(2):
        for i in range(7):
            r = 16 + (p * 7 + i) * 4
            a("buffer_load_dwordx4 v[%d:%d], v%d, s[36:39], 0 offen offset:%d" % (r, r + 3, 6 + p, i * 128))
    if Cfg.hw2:
        srd(a, 44, 24, 25, D * F * 2)
        a("s_mul_i32 s52, s2, 392")
        a("v_add_u32 v11, s52, v0")
        a("v_lshlrev_b32 v11, 7, v11")
        a("buffer_load_dword v12, v11, s[44:47], 0 offen")
        a("v_min_u32 v13, 135, v0")
        a("v_add_u32 v13, s52, v13")
        a("v_lshlrev_b32 v13, 7, v13")
        a("buffer_load_dword v14, v13, s[44:47], 0 offen offset:0" if False else "v_add_u32 v13, %d, v13" % (256 * 128))
        a("buffer_load_dword v14, v13, s[44:47], 0 offen")
    NX = 2 if Cfg.hw2 else 0
    a("v_mov_b32 v8, 0x3f803f80")
    for r in range(80, 88): a("v_mov_b32 v%d, 0" % r)
    for p in range(2):
        for i in range(7):
            a("s_waitcnt vmcnt(%d)" % (13 - (p * 7 + i)))
            for c in range(4):
                r = 16 + (p * 7 + i) * 4 + c
                o = 80 + 4 * p + 2 * (c & 1)
                a("v_dot2_f32_bf16 v%d, v%d, v8, v%d" % (o, r, o))
                a("v_dot2_f32_bf16 v%d, v%d, v%d, v%d" % (o + 1, r, r, o + 1))
    for p in range(2):
        a("v_add_f32 v%d, v%d, v%d" % (80 + 4 * p, 80 + 4 * p, 82 + 4 * p))
        a("v_add_f32 v%d, v%d, v%d" % (81 + 4 * p, 81 + 4 * p, 83 + 4 * p))
    for mod in ("quad_perm:[1,0,3,2]", "quad_perm:[2,3,0,1]", "row_half_mirror"):
        for r in (80, 81, 84, 85):
            a("v_add_f32_dpp v%d, v%d, v%d %s row_mask:0xf bank_mask:0xf" % (r, r, r, mod))
    for p in range(2):
        s_, q_ = 80 + 4 * p, 81 + 4 * p
        a("v_mul_f32 v%d, 0x3b124925, v%d" % (s_, s_))
        a("v_mul_f32 v%d, 0x3b124925, v%d" % (q_, q_))
        a("v_fma_f32 v%d, -v%d, v%d, v%d" % (q_, s_, s_, q_))
        a("v_max_f32 v%d, 0, v%d" % (q_, q_))
        a("v_add_f32 v%d, 0x3727c5ac, v%d" % (q_, q_))
        a("v_rsq_f32 v%d, v%d" % (88 + 2 * p, q_))
        a("v_mul_f32 v%d, v%d, v%d" % (89 + 2 * p, s_, 88 + 2 * p))
        a("v_sub_f32 v%d, 0, v%d" % (89 + 2 * p, 89 + 2 * p))
    a("s_lshl_b32 s52, s2, 8")
    a("s_add_u32 s52, s52, 0x%x" % WS_STA)
    a("s_add_u32 s53, s52, 8192")
    a("v_lshlrev_b32 v9, 2, v5")
    a("v_cmp_eq_u32 vcc, 0, v1")
    a("s_and_saveexec_b64 s[54:55], vcc")
    a("buffer_store_dword v88, v9, %s, s52 offen %s" % (WS, SC))
    a("buffer_store_dword v89, v9, %s, s53 offen %s" % (WS, SC))
    a("buffer_store_dword v90, v9, %s, s52 offen offset:32 %s" % (WS, SC))
    a("buffer_store_dword v91, v9, %s, s53 offen offset:32 %s" % (WS, SC))
    a("s_mov_b64 exec, s[54:55]")
    srd(a, 40, 22, 23, D * F * 2)
    a("v_mul_u32_u24 v10, 3584, v2")
    a("v_lshl_add_u32 v10, v1, 4, v10")
    a("s_lshl_b32 s52, s2, 7")
    a("s_cmp_lt_u32 s2, 28")
    a("s_cselect_b32 s52, s52, 0x40000000")
    for i in range(14):
        a("buffer_load_dwordx4 v[%d:%d], v10, s[40:43], s52 offen" % (100 + 4 * i, 103 + 4 * i))
        if i != 13: a("s_add_u32 s52, s52, %d" % (32 * 3584))
    a("s_waitcnt vmcnt(14) lgkmcnt(0)")
    token(a)
    a("s_barrier")
    a("s_add_u32 s52, s2, %d" % FS_IDX)
    publish(a, 52)
    a("s_waitcnt vmcnt(0)")
    a("v_mov_b32 v8, 0x00003f80")
    a("v_mov_b32 v9, 0x3f800000")
    for r in range(16, 24): a("v_mov_b32 v%d, 0" % r)
    for i in range(14):
        for c in range(4):
            a("v_dot2_f32_bf16 v%d, v%d, v8, v%d" % (16 + 2 * c, 100 + 4 * i + c, 16 + 2 * c))
            a("v_dot2_f32_bf16 v%d, v%d, v9, v%d" % (17 + 2 * c, 100 + 4 * i + c, 17 + 2 * c))
    a("v_lshlrev_b32 v24, 8, v2")
    a("v_lshl_add_u32 v24, v1, 5, v24")
    a("ds_write_b128 v24, v[16:19]")
    a("ds_write_b128 v24, v[20:23] offset:16")
    a("v_and_b32 v25, 63, v0")
    a("v_lshrrev_b32 v26, 6, v0")
    a("v_lshlrev_b32 v27, 11, v26")
    a("v_lshl_add_u32 v27, v25, 2, v27")
    a("s_waitcnt lgkmcnt(0)")
    a("s_barrier")
    for i in range(8):
        a("ds_read_b32 v%d, v27 offset:%d" % (28 + i, i * 256))
    a("s_waitcnt lgkmcnt(0)")
    for i in range(1, 8):
        a("v_add_f32 v28, v28, v%d" % (28 + i))
    a("v_lshlrev_b32 v27, 8, v26")
    a("v_lshl_add_u32 v27, v25, 2, v27")
    a("ds_write_b32 v27, v28 offset:8192")
    a("v_lshlrev_b32 v27, 2, v25")
    a("s_waitcnt lgkmcnt(0)")
    a("s_barrier")
    for i in range(4):
        a("ds_read_b32 v%d, v27 offset:%d" % (28 + i, 8192 + i * 256))
    a("s_waitcnt lgkmcnt(0)")
    a("v_add_f32 v28, v28, v29")
    a("v_add_f32 v30, v30, v31")
    a("v_add_f32 v28, v28, v30")
    a("v_mul_f32 v28, 0xbb124925, v28")
    lab = a.label("NOCM")
    a("s_cmp_ge_u32 s2, 28")
    a("s_cbranch_scc1 %s" % lab)
    a("s_cmp_lg_u32 s49, 0")
    a("s_cbranch_scc1 %s" % lab)
    a("s_lshl_b32 s52, s2, 8")
    a("s_add_u32 s52, s52, 0x%x" % WS_CM)
    a("buffer_store_dword v28, v27, %s, s52 offen %s" % (WS, SC))
    a(lab + ":")
    a("s_waitcnt vmcnt(0) lgkmcnt(0)")
    a("s_barrier")
    a("s_add_u32 s52, s2, %d" % FC_IDX)
    publish(a, 52)
    S(a, "B3")
    fstamp_flush(a)
    a("s_endpgm")

def gen(cfg=Cfg):
    a = Asm()
    for l in kernel_header(KN): a(l)
    a("s_load_dwordx16 s[8:23], s[0:1], 0")
    a("s_load_dwordx8 s[24:31], s[0:1], 64")
    S(a, "start")
    a("s_cmp_ge_u32 s2, 256")
    a("s_cbranch_scc1 L_END")
    a("v_lshrrev_b32 v1, 6, v0")
    a("v_and_b32 v2, 63, v0")
    a("v_readfirstlane_b32 s49, v1")
    a("s_mov_b32 s50, 0x%x" % (WS_FLAG + E_IDX * 64))
    a("s_sub_u32 s3, s2, 32")
    a("s_mul_i32 s56, s3, 9363")
    a("s_lshr_b32 s56, s56, 16")
    a("s_mul_i32 s57, s56, 7")
    a("s_sub_u32 s57, s3, s57")
    a("s_and_b32 s52, s3, 7")
    a("s_lshr_b32 s53, s3, 3")
    a("s_mul_i32 s58, s52, 28")
    a("s_add_u32 s58, s58, s53")
    a("s_lshr_b32 s59, s52, 1")
    a("s_lshl_b32 s59, s59, 2")
    a("s_and_b32 s54, s53, 3")
    a("s_add_u32 s59, s59, s54")
    a("s_and_b32 s60, s52, 1")
    a("s_mul_i32 s60, s60, 7")
    a("s_lshr_b32 s55, s53, 2")
    a("s_add_u32 s60, s60, s55")
    a("s_lshl_b32 s61, s52, 2")
    a("s_add_u32 s61, s61, s54")
    a("s_mov_b32 s62, s55")
    a("v_and_b32 v1, 7, v0")
    a("v_lshrrev_b32 v14, 3, v0")
    a("s_mul_i32 s52, s56, %d" % (64 * 896))
    a("s_lshl_b32 s53, s57, 7")
    a("s_add_u32 s52, s52, s53")
    a("v_mul_u32_u24 v8, %d, v14" % (2 * 896))
    a("v_lshl_add_u32 v8, v1, 4, v8")
    a("v_add_u32 v8, s52, v8")
    for j in range(5):
        d = (j - 3) * 896
        if d < 0: a("v_subrev_u32 v%d, %d, v8" % (3 + j, -d))
        else: a("v_add_u32 v%d, %d, v8" % (3 + j, d))
    a("s_lshl_b32 s53, s57, 9")
    a("v_lshl_add_u32 v9, v1, 6, s53")
    for r, n in ((36, NB_SD), (44, NB_SD), (40, 448 * 4 * 2), (4, NB_SD)):
        a("s_mov_b32 s%d, 0x%x" % (r + 2, n))
        a("s_mov_b32 s%d, 0x20000" % (r + 3))
    a("s_cmp_lt_u32 s2, 32")
    a("s_waitcnt lgkmcnt(0)")
    S(a, "karg")
    a("s_cbranch_scc1 L_STATS0")
    a("s_mov_b32 s36, s10")
    a("s_and_b32 s37, s11, 0xffff")
    for j in range(5):
        a.vm("buffer_load_dwordx4 v[%d:%d], v%d, s[36:39], 0 offen" % (16 + 4 * j, 19 + 4 * j, 3 + j), "k")
    a("s_mov_b32 s40, s14")
    a("s_and_b32 s41, s15, 0xffff")
    a("s_mov_b32 s44, s12")
    a("s_and_b32 s45, s13, 0xffff")
    a("s_mov_b32 s4, s8")
    a("s_and_b32 s5, s9, 0xffff")
    for j in range(4):
        a.vm("buffer_load_dwordx4 v[%d:%d], v9, s[40:43], 0 offen offset:%d" % (52 + 4 * j, 55 + 4 * j, 16 * j), "k")
    a.vm("buffer_load_dwordx4 v[36:39], v8, s[44:47], 0 offen", "v")
    a.vm("buffer_load_dwordx4 v[40:43], v8, s[44:47], 0 offen offset:896", "v")
    def partB():
        a.vm("buffer_load_dwordx4 v[44:47], v8, s[4:7], 0 offen", "q")
        a.vm("buffer_load_dwordx4 v[48:51], v8, s[4:7], 0 offen offset:896", "q")
        S(a, "p1iss")
        a("s_mov_b32 s96, 0x%x" % (WS_FLAG + E_IDX * 64))
        a("s_load_dword s48, s[30:31], s96")
        srd(a, 32, 30, 31, WS_STAMP)
        srd(a, 36, 16, 17, NB_SD)
        a("v_lshlrev_b32 v232, 4, v0")
        a("s_lshl_b32 s96, s58, 13")
        a("s_add_u32 s97, s96, 4096")
        for c in range(2):
            r = 200 + 8 * c
            a.vm("buffer_load_dwordx4 v[%d:%d], v232, s[36:39], s%d offen" % (r, r + 3, 96 + c), "ssm")
            a.vm("buffer_load_dwordx2 v[%d:%d], v232, s[36:39], s%d offen offset:16" % (r + 4, r + 5, 96 + c), "ssm")
        a("v_and_b32 v233, 15, v2")
        a("v_lshrrev_b32 v234, 4, v2")
        a("v_add_u32 v233, v233, v234")
        a("v_subrev_u32 v233, 15, v233")
        a("v_lshlrev_b32 v234, 1, v233")
        a("v_mov_b32 v225, 0x40000000")
        a("v_cmp_gt_i32 vcc, 0, v233")
        a("v_cndmask_b32 v234, v234, v225, vcc")
        a("s_and_b32 s97, s49, 1")
        a("s_lshl_b32 s97, s97, 12")
        a("s_add_u32 s97, s97, s96")
        a.vm("buffer_load_ushort v224, v234, s[36:39], s97 offen", "ssm")
        a("s_lshl_b32 s96, s58, 2")
        a("s_load_dword s63, s[18:19], s96")
        if cfg.cpre:
            a("s_getpc_b64 s[98:99]")
            a("L_PC:")
            a("s_lshl_b32 s96, s49, 13")
            a("v_lshlrev_b32 v226, 7, v2")
            a("v_add_u32 v226, s96, v226")
            a("v_min_u32 v226, L_CODE_END-L_PC-4, v226")
            a.vm("global_load_dword v227, v226, s[98:99]", "pre")
    if not cfg.lateq: partB()
    S(a, "ldiss")
    a("v_sub_u32 v10, 31, v14")
    a("v_lshrrev_b32 v11, 2, v10")
    a("v_xor_b32 v11, v11, v1")
    a("v_lshlrev_b32 v11, 4, v11")
    a("v_and_b32 v10, 3, v10")
    a("v_lshl_add_u32 v11, v10, 2, v11")
    a("v_lshl_add_u32 v11, v1, 10, v11")
    a("v_add_u32 v11, %d, v11" % R1)
    a("v_lshrrev_b32 v12, 2, v14")
    a("v_xor_b32 v12, v12, v1")
    a("v_lshlrev_b32 v12, 4, v12")
    a("v_and_b32 v10, 3, v14")
    a("v_lshl_add_u32 v12, v10, 2, v12")
    a("v_lshl_add_u32 v12, v1, 10, v12")
    a("v_add_u32 v12, %d, v12" % (R1 + 8192))
    a("v_lshrrev_b32 v10, 3, v14")
    a("v_xor_b32 v15, v1, v10")
    a("v_lshlrev_b32 v15, 4, v15")
    a("v_lshl_add_u32 v15, v14, 7, v15")
    a("v_add_u32 v15, %d, v15" % R1)
    a("v_xor_b32 v3, 64, v15") if False else None
    a("v_mul_u32_u24 v13, %d, v14" % RS)
    a("v_lshl_add_u32 v13, v1, 4, v13")
    a("s_mul_i32 s52, s57, %d" % (64 * RS))
    a("s_lshl_b32 s53, s56, 7")
    a("s_sub_u32 s50, 3968, s53")
    a("s_add_u32 s50, s50, s52")
    a("s_add_u32 s51, s52, s53")
    a("s_add_u32 s51, s51, 0x%x" % WS_XT)
    a.vmwait("k")
    S(a, "k_in")
    if cfg.lateq: partB()
    W = lambda c, t: 68 + (c * 4 + t) * 2
    for c in range(4):
        r = 52 + 4 * c
        a("v_lshlrev_b32 v%d, 16, v%d" % (W(c, 0), r))
        a("v_lshlrev_b32 v%d, 16, v%d" % (W(c, 0) + 1, r + 2))
        a("v_and_b32 v%d, 0xffff0000, v%d" % (W(c, 1), r))
        a("v_and_b32 v%d, 0xffff0000, v%d" % (W(c, 1) + 1, r + 2))
        a("v_lshlrev_b32 v%d, 16, v%d" % (W(c, 2), r + 1))
        a("v_lshlrev_b32 v%d, 16, v%d" % (W(c, 2) + 1, r + 3))
        a("v_and_b32 v%d, 0xffff0000, v%d" % (W(c, 3), r + 1))
        a("v_and_b32 v%d, 0xffff0000, v%d" % (W(c, 3) + 1, r + 3))
    K = lambda j, c: 100 + (j * 4 + c) * 2
    for j in range(5):
        for c in range(4):
            r = 16 + 4 * j + c
            a("v_lshlrev_b32 v%d, 16, v%d" % (K(j, c), r))
            a("v_and_b32 v%d, 0xffff0000, v%d" % (K(j, c) + 1, r))
    U = lambda e, c: 140 + e * 8 + 2 * c
    P = lambda r: "v[%d:%d]" % (r, r + 1)
    for e in range(2):
        for c in range(4):
            a("v_pk_mul_f32 %s, %s, %s" % (P(U(e, c)), P(K(3 + e, c)), P(W(c, 0))))
        for t in range(1, 4):
            for c in range(4):
                a("v_pk_fma_f32 %s, %s, %s, %s" % (P(U(e, c)), P(K(3 + e - t, c)), P(W(c, t)), P(U(e, c))))
    a("v_xor_b32 v3, 64, v15")
    a.vmwait("v")
    S(a, "v_in")
    for e in range(2):
        for c in range(4):
            r = 36 + 4 * e + c
            t = 156 + (e * 4 + c) * 2
            a("v_lshlrev_b32 v%d, 16, v%d" % (t, r))
            a("v_and_b32 v%d, 0xffff0000, v%d" % (t + 1, r))
    for e in range(2):
        for c in range(4):
            t = 156 + (e * 4 + c) * 2
            a("v_pk_mul_f32 %s, %s, %s" % (P(U(e, c)), P(U(e, c)), P(t)))
    for i in range(8):
        a("v_cvt_pk_bf16_f32 v%d, v%d, v%d" % (172 + i, 148 + i, 140 + i))
    for i in range(8):
        a("ds_write_b32 v11, v%d offset:%d" % (172 + i, i * 128))
    a("s_waitcnt lgkmcnt(0)")
    a("s_barrier")
    S(a, "p1lds")
    a("ds_read_b128 v[16:19], v15")
    a("ds_read_b128 v[20:23], v3 offset:4096")
    a("s_add_u32 s52, s50, %d" % (32 * RS))
    a("s_waitcnt lgkmcnt(1)")
    a.vm("buffer_store_dwordx4 v[16:19], v13, %s, s50 offen %s" % (WS, SC), "p1st")
    a("s_waitcnt lgkmcnt(0)")
    a.vm("buffer_store_dwordx4 v[20:23], v13, %s, s52 offen %s" % (WS, SC), "p1st")
    a.vmwait("q")
    S(a, "q_in")
    a("s_mov_b32 s52, 0x05040100")
    a("s_mov_b32 s53, 0x07060302")
    for i in range(4):
        a("v_perm_b32 v%d, v%d, v%d, s52" % (180 + 2 * i, 48 + i, 44 + i))
        a("v_perm_b32 v%d, v%d, v%d, s53" % (181 + 2 * i, 48 + i, 44 + i))
    for i in range(8):
        a("ds_write_b32 v12, v%d offset:%d" % (180 + i, i * 128))
    a("s_add_u32 s53, s51, %d" % (32 * RS))
    a("s_waitcnt lgkmcnt(0)")
    a("s_barrier")
    a("ds_read_b128 v[24:27], v15 offset:8192")
    a("ds_read_b128 v[28:31], v3 offset:12288")
    a("s_waitcnt lgkmcnt(1)")
    a.vm("buffer_store_dwordx4 v[24:27], v13, %s, s51 offen %s" % (WS, SC), "p1x")
    a("s_waitcnt lgkmcnt(0)")
    a.vm("buffer_store_dwordx4 v[28:31], v13, %s, s53 offen %s" % (WS, SC), "p1x")
    S(a, "p1st")
    token(a)
    if cfg.pubfirst:
        a.vmwait("p1st")
        S(a, "drain")
        a("s_barrier")
        a("s_lshl_b32 s52, s57, 5")
        a("s_add_u32 s52, s52, s56")
        publish(a, 52)
        S(a, "F1pub")
        if cfg.upto == 1:
            a("s_branch L_DONE")
    a.vmwait("ssm")
    for c in range(2):
        w0 = 200 + 8 * c
        b = 140 + 12 * c
        for i in range(4): a("v_alignbit_b32 v%d, v%d, v%d, 16" % (b + i, w0 + i + 1, w0 + i))
        for i in range(4): a("v_mov_b32 v%d, v%d" % (b + 4 + i, w0 + i + 1))
        for i in range(4): a("v_alignbit_b32 v%d, v%d, v%d, 16" % (b + 8 + i, w0 + i + 2, w0 + i + 1))
    srd(a, 40, 24, 25, D * F * 2)
    a("v_lshrrev_b32 v6, 3, v2")
    a("v_and_b32 v7, 7, v2")
    a("v_bfe_u32 v8, v2, 4, 1")
    a("v_lshlrev_b32 v8, 2, v8")
    a("v_xor_b32 v7, v7, v8")
    a("v_mul_u32_u24 v6, 896, v6")
    a("v_lshl_add_u32 v6, v7, 4, v6")
    a("s_mul_i32 s44, s49, %d" % (448 * 896))
    a("s_lshl_b32 s45, s62, 7")
    a("s_add_u32 s44, s44, s45")
    a("s_mul_i32 s45, s49, %d" % (cfg.r1n * 2048))
    def w2dma(base_sgpr, i, tag):
        def f():
            a("s_add_u32 m0, s%d, %d" % (base_sgpr, i * 1024))
            a.vm("buffer_load_dwordx4 v6, s[40:43], s44 offen lds", tag)
            a("s_add_u32 s44, s44, %d" % (8 * 896))
        return f
    for i in range(2 * cfg.r1n): w2dma(45, i, "w2r1")()
    a("v_and_b32 v10, 15, v2")
    a("v_lshrrev_b32 v11, 4, v2")
    a("v_bfe_u32 v4, v2, 2, 2")
    a("v_lshrrev_b32 v5, 5, v2")
    a("v_lshl_add_u32 v5, v5, 2, v4")
    a("v_lshlrev_b32 v8, 7, v5")
    a("v_lshlrev_b32 v5, 8, v5")
    a("v_lshl_add_u32 v5, v4, 6, v5")
    a("v_bfe_u32 v4, v2, 3, 1")
    a("v_lshl_add_u32 v8, v4, 6, v8")
    a("v_bfe_u32 v4, v2, 4, 1")
    a("v_lshl_add_u32 v5, v4, 5, v5")
    a("v_lshl_add_u32 v8, v4, 5, v8")
    a("v_and_b32 v4, 3, v2")
    a("v_lshl_add_u32 v5, v4, 3, v5")
    a("v_lshl_add_u32 v8, v4, 3, v8")
    a("s_lshr_b32 s52, s49, 1")
    a("s_and_b32 s53, s49, 1")
    a("s_lshl_b32 s36, s52, 6")
    a("v_xor_b32 v245, s36, v8")
    A_, B_ = 128, 129
    a("v_and_b32 v%d, 3, v10" % A_)
    a("v_mul_u32_u24 v%d, 4160, v%d" % (A_, A_))
    a("v_lshrrev_b32 v130, 2, v10")
    a("v_lshl_add_u32 v%d, v130, 3, v%d" % (A_, A_))
    a("v_lshl_add_u32 v%d, v11, 4, v%d" % (A_, A_))
    a("s_mul_i32 s36, s52, %d" % HC_CH)
    a("s_lshl_b32 s37, s53, 8")
    a("s_add_u32 s36, s36, s37")
    a("s_add_u32 s36, s36, %d" % HC)
    a("v_add_u32 v%d, s36, v%d" % (A_, A_))
    a("v_lshlrev_b32 v%d, 5, v10" % B_)
    a("v_lshlrev_b32 v130, 4, v11")
    a("v_sub_u32 v%d, v130, v%d" % (B_, B_))
    a("s_mul_i32 s36, s52, %d" % UR_CH)
    a("s_add_u32 s36, s36, s37")
    a("s_add_u32 s36, s36, %d" % (UR + 480))
    a("v_add_u32 v%d, s36, v%d" % (B_, B_))
    AD = 132
    a("s_lshl_b32 s36, s52, 4")
    a("s_lshr_b32 s37, s63, s36")
    a("s_and_b32 s37, s37, 0xffff")
    a("s_cmp_eq_u32 s53, 0")
    a("s_cselect_b32 s37, s37, 0")
    a("v_lshlrev_b32 v130, 3, v11")
    a("v_add_u32 v130, v130, v10")
    a("v_sub_u32 v130, 15, v130")
    a("v_and_b32 v131, 1, v130")
    a("v_lshlrev_b32 v131, 4, v131")
    a("v_mov_b32 v136, s37")
    a("v_lshlrev_b32 v131, v131, v136")
    a("v_ashrrev_i32 v130, 1, v130")
    for dw in range(4):
        a("v_cmp_eq_u32 vcc, %d, v130" % dw)
        a("v_cndmask_b32 v%d, 0, v131, vcc" % (AD + dw))
    ACC = 136
    a("v_lshlrev_b32 v4, 4, v2")
    a("v_and_b32 v14, 127, v0")
    a("v_lshrrev_b32 v15, 7, v0")
    a("v_lshlrev_b32 v13, 4, v14")
    a("v_mul_u32_u24 v241, %d, v15" % RS)
    a("v_add_u32 v13, v241, v13")
    a("v_lshlrev_b32 v9, 5, v14")
    a("s_mul_i32 s54, s58, %d" % (2 * RS))
    a("s_mul_i32 s55, s52, %d" % RS)
    a("s_add_u32 s55, s55, s54")
    a("s_lshl_b32 s50, s53, 11")
    a("s_add_u32 s38, s55, s50")
    a("s_mul_i32 s39, s52, %d" % UR_CH)
    a("s_add_u32 s39, s39, s50")
    a("s_add_u32 s39, s39, %d" % UR)
    a("s_lshr_b32 s52, s58, 5")
    a("s_lshl_b32 s52, s52, 5")
    a("v_and_b32 v12, 31, v2")
    a("v_add_u32 v12, s52, v12")
    a("v_lshlrev_b32 v12, 6, v12")
    a("v_lshlrev_b32 v244, 4, v0")
    a("v_add_u32 v244, %d, v244" % (32 + HC))
    a("v_mul_u32_u24 v243, 4160, v11")
    a("v_lshl_add_u32 v243, v10, 1, v243")
    a("s_and_b32 s52, s49, 1")
    a("s_mul_i32 s52, s52, %d" % HC_CH)
    a("s_add_u32 s52, s52, %d" % HC)
    a("v_add_u32 v243, s52, v243")
    a("v_lshrrev_b32 v232, 5, v2")
    a("v_mul_u32_u24 v232, %d, v232" % UR_CH)
    a("v_and_b32 v233, 31, v2")
    a("v_lshl_add_u32 v232, v233, 4, v232")
    a("v_add_u32 v232, %d, v232" % (UR + 4096))
    for i in range(4): a("v_mov_b32 v%d, 0" % (236 + i))
    srd(a, 4, 22, 23, D * F * 2)
    a("v_lshrrev_b32 v7, 4, v2")
    a("v_and_b32 v233, 15, v2")
    a("v_lshlrev_b32 v234, 2, v7")
    a("v_xor_b32 v233, v233, v234")
    a("v_mul_u32_u24 v7, 3584, v7")
    a("v_lshl_add_u32 v7, v233, 4, v7")
    a("s_mul_i32 s46, s49, %d" % (4 * 3584))
    a("s_lshl_b32 s47, s60, 8")
    a("s_add_u32 s46, s46, s47")
    a("s_lshl_b32 s47, s49, 10")
    def w1dma(ks):
        def f():
            a("s_add_u32 m0, s47, %d" % (ks * 4096))
            a.vm("buffer_load_dwordx4 v7, s[4:7], s46 offen lds", "w1")
            if ks != 27: a("s_add_u32 s46, s46, %d" % (16 * 3584))
        return f
    if not cfg.pubfirst:
        a.vmwait("p1st")
        S(a, "drain")
        a("s_barrier")
        a("s_lshl_b32 s52, s57, 5")
        a("s_add_u32 s52, s52, s56")
        publish(a, 52)
        S(a, "F1pub")
        if cfg.upto == 1:
            a("s_branch L_DONE")
    for c in range(2):
        w0 = 200 + 8 * c; b = 140 + 12 * c
        base = c * HC_CH
        a("ds_write_b128 v244, v[%d:%d] offset:%d" % (b, b + 3, base + 0 * 4160))
        a("ds_write_b128 v244, v[%d:%d] offset:%d" % (b + 4, b + 7, base + 1 * 4160))
        a("ds_write_b128 v244, v[%d:%d] offset:%d" % (b + 8, b + 11, base + 2 * 4160))
        a("ds_write_b128 v244, v[%d:%d] offset:%d" % (w0 + 2, w0 + 5, base + 3 * 4160))
    a("ds_write_b16 v243, v224")
    a("ds_write_b128 v232, v[236:239]")
    if cfg.wpre:
        a("s_mul_i32 s52, s3, 56")
        a("s_mul_i32 s53, s49, 14")
        a("s_add_u32 s52, s52, s53")
        a("v_min_u32 v226, 13, v2")
        a("v_add_u32 v226, s52, v226")
        a("v_lshlrev_b32 v226, 7, v226")
        a.vm("buffer_load_dword v228, v226, s[40:43], 0 offen", "pre")
        a.vm("buffer_load_dword v229, v226, s[4:7], 0 offen", "pre")
    a("v_add_u32 v234, s45, v245")
    a("v_xor_b32 v235, 64, v234")
    def w2tr_lines(abase, nks, b0, b1):
        out = []
        for ks in range(nks):
            for dt in range(2):
                r = abase + (ks * 2 + dt) * 4
                b = b0 if dt == 0 else b1
                out.append("ds_read_b64_tr_b16 a[%d:%d], v%d offset:%d" % (r, r + 1, b, ks * 2048))
                out.append("ds_read_b64_tr_b16 a[%d:%d], v%d offset:%d" % (r + 2, r + 3, b, ks * 2048 + 1024))
        return out
    if not cfg.r1late:
        a.vmwait("w2r1")
        for l in w2tr_lines(128, cfg.r1n, 234, 235): a(l)
    S(a, "prepoll")
    if cfg.b1sleep: a("s_sleep %d" % cfg.b1sleep)
    a("s_mov_b32 s53, 0x%x" % WS_FLAG)
    a.vmwait("p1x")
    a("s_waitcnt lgkmcnt(0)")
    poll(a, [12], 53)
    S(a, "B1")
    a("s_mov_b32 m0, s39")
    a("s_add_u32 s37, s38, 1024")
    a.vm("buffer_load_dwordx4 v4, %s, s38 offen lds" % WS, "ur")
    a("s_add_u32 m0, s39, 1024")
    a.vm("buffer_load_dwordx4 v4, %s, s37 offen lds" % WS, "ur")
    XR = 168; SA = 176
    a("s_lshl_b32 s52, s57, 5")
    a("s_add_u32 s52, s52, s56")
    a("s_add_u32 s52, s52, %d" % F1X_IDX)
    publish(a, 52)
    FR = 16
    w1q = [w1dma(ks) for ks in range(28)]
    a("s_lshr_b32 s52, s58, 5")
    a("s_lshl_b32 s52, s52, 5")
    a("s_add_u32 s52, s52, %d" % (F1X_IDX - 32))
    a("v_mov_b32 v12, s52")
    a("v_mov_b32 v241, %d" % FS_IDX)
    a("v_cmp_gt_u32 vcc, 32, v2")
    a("v_cndmask_b32 v12, v12, v241, vcc")
    a("v_add_u32 v12, v12, v2")
    a("v_lshlrev_b32 v12, 6, v12")
    if cfg.r1late:
        a.vmwait("w2r1")
        for l in w2tr_lines(128, cfg.r1n, 234, 235): a(l)
    else:
        for _ in range(cfg.w1pre): w1q.pop(0)()
    a.vmwait("ur")
    a("s_waitcnt lgkmcnt(0)")
    a("s_barrier")
    S(a, "URin")
    AM = {}
    for ks in range(cfg.r1n): AM[ks] = 128 + 8 * ks
    segs = [[0, 16], [16 + cfg.r1n, 32]]
    for k0, n in ((cfg.r1n, 16 - cfg.r1n), (16, 4), (22, 4), (20, 2), (26, 2)):
        for sg in segs:
            if sg[1] - sg[0] >= n:
                for i in range(n): AM[k0 + i] = 8 * (sg[0] + i)
                sg[0] += n
                break
        else:
            raise RuntimeError("no room for W2 group")
    AB = [0, 32]; BB = [64, 96]
    def readA(st, rho, aa):
        r = AB[st] + 4 * aa
        off = 64 * rho + 512 * aa
        return ["ds_read_b64 a[%d:%d], v%d offset:%d" % (r, r + 1, A_, off),
                "ds_read_b64 a[%d:%d], v%d offset:%d" % (r + 2, r + 3, A_, off + 8)]
    def readB(st, rho, b):
        r = BB[st] + 4 * b
        return ["ds_read_b128 a[%d:%d], v%d offset:%d" % (r, r + 3, B_, 64 * rho + 512 * (7 - b))]
    def mfma(t, areg, breg, av=False):
        c = "0" if av else "v[%d:%d]" % (ACC + 4 * t, ACC + 4 * t + 3)
        return "v_mfma_f32_16x16x32_bf16 v[%d:%d], %s[%d:%d], a[%d:%d], %s" % (ACC + 4 * t, ACC + 4 * t + 3, "v" if av else "a", areg, areg + 3, breg, breg + 3, c)
    def fs_issue():
        a.vm("buffer_load_dword v242, v12, %s, s53 offen sc0 sc1" % WS, "fs")
    def x_load(g):
        def f():
            a("s_add_u32 s36, s54, 0x%x" % WS_XT)
            a.vm("buffer_load_dwordx4 v[%d:%d], v13, %s, s36 offen offset:%d" % (XR + 4 * g, XR + 4 * g + 3, WS, 2048 * g), "ep")
        return f
    def st_load(g, hlf, which):
        def f():
            reg = SA + 16 * which + 8 * g + 4 * hlf
            a("s_mov_b32 s36, 0x%x" % ((WS_STA if which == 0 else WS_STB) + 4096 * g))
            a.vm("buffer_load_dwordx4 v[%d:%d], v9, %s, s36 offen offset:%d" % (reg, reg + 3, WS, 16 * hlf), "ep")
        return f
    def cm_load():
        a("s_lshl_b32 s36, s60, 2")
        a("s_add_u32 s36, s36, s49")
        a("s_lshl_b32 s36, s36, 7")
        a("s_add_u32 s36, s36, 0x%x" % WS_CM)
        a("v_and_b32 v12, 31, v2")
        a("v_lshlrev_b32 v12, 2, v12")
        a.vm("buffer_load_dword v3, v12, %s, s36 offen" % WS, "cm")
    def fc_issue():
        a("v_and_b32 v12, 31, v2")
        a("v_add_u32 v12, %d, v12" % FC_IDX)
        a("v_lshlrev_b32 v12, 6, v12")
        a.vm("buffer_load_dword v242, v12, %s, s53 offen sc0 sc1" % WS, "fc")
    n1 = len(w1q) // 3
    sides = {0: w1q[:n1],
             1: w1q[n1:2 * n1],
             2: [fs_issue] + w1q[2 * n1:],
             3: [x_load(0), x_load(1)] + [st_load(g, h, w) for g in range(2) for h in range(2) for w in range(2)] + [fc_issue]}
    for b in range(8):
        for l in readB(0, 0, b): a(l)
    for aa in range(8):
        for l in readA(0, 0, aa): a(l)
    for rho in range(4):
        st = rho & 1
        nxt = []
        if rho < 3:
            for b in range(8): nxt += readB(1 - st, rho + 1, b)
            for aa in range(8): nxt += readA(1 - st, rho + 1, aa)
        ms = []
        if rho == 0:
            for t in range(8): ms.append((mfma(t, AD, BB[st] + 4 * t, True), None))
        for aa in range(8):
            for t in range(aa, 8):
                ms.append((mfma(t, AB[st] + 4 * aa, BB[st] + 4 * (t - aa)), aa))
        a("s_waitcnt lgkmcnt(%d)" % (15 if rho == 0 else 0))
        if rho == 3:
            poll_late(a, 12, 53, 242, "fs")
        side = list(sides[rho]); step = max(1, len(ms) // (len(side) + 1))
        ni = 0; waited = -1
        for i, (m, aa) in enumerate(ms):
            if rho == 0 and aa is not None and aa > waited and aa <= 1:
                a("s_waitcnt lgkmcnt(%d)" % (14 if aa == 0 else 0))
                waited = aa
            a(m)
            if (rho > 0 or waited == 1) and ni < len(nxt):
                a(nxt[ni]); ni += 1
            if (i + 1) % step == 0 and side:
                side.pop(0)()
        while ni < len(nxt):
            a(nxt[ni]); ni += 1
        while side: side.pop(0)()
    S(a, "conv")
    a("v_lshl_add_u32 v130, v10, 2, v11")
    a("v_bfe_u32 v131, v10, 1, 2")
    a("v_xor_b32 v130, v130, v131")
    a("v_lshlrev_b32 v130, 4, v130")
    a("s_lshl_b32 s36, s49, 13")
    a("s_add_u32 s36, s36, %d" % PB)
    a("v_add_u32 v130, s36, v130")
    a("v_and_b32 v131, 31, v14")
    a("v_lshlrev_b32 v132, 1, v131")
    a("v_bfe_u32 v133, v131, 2, 2")
    a("v_xor_b32 v132, v132, v133")
    a("v_lshlrev_b32 v132, 4, v132")
    a("v_lshrrev_b32 v133, 5, v14")
    a("v_lshl_add_u32 v132, v133, 10, v132")
    a("v_lshl_add_u32 v132, v15, 14, v132")
    if PB: a("v_add_u32 v132, %d, v132" % PB)
    a("v_xor_b32 v133, 16, v132")
    a.vmwait("w1")
    a("s_barrier")
    for t in range(8):
        a("ds_write_b128 v130, v[%d:%d] offset:%d" % (ACC + 4 * t, ACC + 4 * t + 3, 1024 * t))
    a.vmwait("ep")
    X = 224
    Z = 208
    a("s_add_u32 s36, s54, 0x%x" % WS_HT)
    a("s_waitcnt lgkmcnt(0)")
    a("s_barrier")
    ZR = [136, 152]
    for g in range(2):
        for hf in range(2):
            a("ds_read_b128 v[%d:%d], v132 offset:%d" % (ZR[g] + 8 * hf, ZR[g] + 8 * hf + 3, hf * 8192 + g * 4096))
            a("ds_read_b128 v[%d:%d], v133 offset:%d" % (ZR[g] + 8 * hf + 4, ZR[g] + 8 * hf + 7, hf * 8192 + g * 4096))
    for g in range(2):
        Xg = 208 + 16 * g
        for i in range(4):
            a("v_lshlrev_b32 v%d, 16, v%d" % (Xg + 2 * i, XR + 4 * g + i))
            a("v_and_b32 v%d, 0xffff0000, v%d" % (Xg + 2 * i + 1, XR + 4 * g + i))
        for i in range(4):
            A2 = SA + 8 * g + 2 * i; B2 = SA + 16 + 8 * g + 2 * i
            a("v_pk_fma_f32 v[%d:%d], v[%d:%d], v[%d:%d], v[%d:%d]" % (Xg + 8 + 2 * i, Xg + 9 + 2 * i, Xg + 2 * i, Xg + 2 * i + 1, A2, A2 + 1, B2, B2 + 1))
    for g in range(2):
        Xg = 208 + 16 * g
        a("s_waitcnt lgkmcnt(%d)" % (4 if g == 0 else 0))
        z = ZR[g]
        for i in range(4):
            a("v_pk_add_f32 v[%d:%d], v[%d:%d], v[%d:%d]" % (z + 2 * i, z + 2 * i + 1, z + 2 * i, z + 2 * i + 1, z + 8 + 2 * i, z + 9 + 2 * i))
        for i in range(4):
            a("v_pk_fma_f32 v[%d:%d], v[%d:%d], v[%d:%d], v[%d:%d]" % (z + 2 * i, z + 2 * i + 1, Xg + 8 + 2 * i, Xg + 9 + 2 * i, z + 2 * i, z + 2 * i + 1, Xg + 2 * i, Xg + 2 * i + 1))
        for i in range(4):
            a("v_cvt_pk_bf16_f32 v%d, v%d, v%d" % (z + 8 + i, z + 2 * i, z + 2 * i + 1))
        a.vm("buffer_store_dwordx4 v[%d:%d], v13, %s, s36 offen offset:%d %s" % (z + 8, z + 11, WS, 2048 * g, SC), "p2st")
    S(a, "p2st")
    poll_late(a, 12, 53, 242, "fc")
    cm_load()
    a("s_lshl_b32 s52, s49, 6")
    a("v_xor_b32 v247, s52, v5")
    a("v_add_u32 v248, 0x10000, v247")
    for ks in range(28):
        b = 247 if ks < 16 else 248
        a("ds_read_b64_tr_b16 v[%d:%d], v%d offset:%d" % (FR + 4 * ks, FR + 4 * ks + 1, b, (ks & 15) * 4096))
        a("ds_read_b64_tr_b16 v[%d:%d], v%d offset:%d" % (FR + 4 * ks + 2, FR + 4 * ks + 3, b, (ks & 15) * 4096 + 2048))
    def f2_addr():
        a("v_lshlrev_b32 v12, 6, v2")
        a("v_add_u32 v13, %d, v12" % (64 * 64))
        a("v_add_u32 v14, %d, v12" % (128 * 64))
        a("v_min_u32 v15, 31, v2")
        a("v_lshlrev_b32 v15, 6, v15")
        a("v_add_u32 v15, %d, v15" % (192 * 64))
    def f2_issue(soff):
        lab = a.label("FI")
        a("s_cmp_lg_u32 s49, 0")
        a("s_cbranch_scc1 %s" % lab)
        for i, v in enumerate((12, 13, 14, 15)):
            a("buffer_load_dword v%d, v%d, %s, s%d offen sc0 sc1" % (246 + i, v, WS, soff))
        a(lab + ":")
    def f2_check(soff):
        lp = a.label("POLL"); done = a.label("PDONE"); chk = a.label("PCHK")
        a("s_cmp_lg_u32 s49, 0")
        a("s_cbranch_scc1 %s" % done)
        a("s_mov_b32 s51, 0")
        a("s_branch %s" % chk)
        a(lp + ":")
        for i, v in enumerate((12, 13, 14, 15)):
            a("buffer_load_dword v%d, v%d, %s, s%d offen sc0 sc1" % (246 + i, v, WS, soff))
        a(chk + ":")
        a("s_waitcnt vmcnt(0)")
        for i in range(4): a("v_xor_b32 v%d, s%d, v%d" % (246 + i, S_T, 246 + i))
        for i in range(1, 4): a("v_or_b32 v246, v246, v%d" % (246 + i))
        a("v_cmp_ne_u32 vcc, 0, v246")
        a("s_nop 4")
        a("s_cmp_eq_u64 vcc, 0")
        a("s_cbranch_scc1 %s" % done)
        a("s_add_u32 s51, s51, 1")
        a("s_cmp_lt_u32 s51, 0x40000")
        a("s_cbranch_scc1 %s" % lp)
        a(done + ":")
    a("s_lshl_b32 s46, s49, 13")
    a("s_lshl_b32 s47, s49, 12")
    a("s_add_u32 s47, s47, %d" % YB)
    a("v_lshrrev_b32 v10, 3, v2")
    a("v_and_b32 v241, 7, v2")
    a("v_bfe_u32 v242, v2, 4, 1")
    a("v_lshlrev_b32 v242, 2, v242")
    a("v_xor_b32 v241, v241, v242")
    a("v_mul_u32_u24 v10, %d, v10" % RS)
    a("v_lshl_add_u32 v10, v241, 4, v10")
    a("s_mul_i32 s38, s49, %d" % (8 * RS))
    a("s_lshl_b32 s39, s59, 7")
    a("s_add_u32 s38, s38, s39")
    a("s_add_u32 s38, s38, 0x%x" % WS_HT)
    a("s_lshl_b32 s39, s49, 10")
    a.vmwait("p2st")
    a("s_waitcnt lgkmcnt(0)")
    a("s_barrier")
    a("s_add_u32 s52, s3, %d" % F2_IDX)
    publish(a, 52)
    S(a, "F2pub")
    if cfg.upto == 2:
        a("s_branch L_DONE")
    def hdma(half, i):
        def f():
            a("s_add_u32 m0, s39, %d" % ((HA, HB_)[half] + i * 4096))
            a.vm("buffer_load_dwordx4 v10, %s, s38 offen lds" % WS, "h%d_%d" % (half, i))
            if i != 13: a("s_add_u32 s38, s38, %d" % (32 * RS))
            elif half == 0: a("s_sub_u32 s38, s38, %d" % (13 * 32 * RS - 2048))
        return f
    def w2round(tag):
        return [w2dma(46, i, tag) for i in range(8)] + [w2dma(47, i, tag) for i in range(4)]
    def w2round_reads(abaseX, abaseY):
        return w2tr_lines(abaseX, 4, 9, 7) + w2tr_lines(abaseY, 2, 11, 3)
    a("v_mov_b32 v128, 0x00003f80")
    a("v_mov_b32 v129, 0x3f800000")
    cen = []
    for g in range(28):
        for i in range(4):
            r = FR + 4 * g + i; t = 132 + 8 * (g & 1) + 2 * i
            cen.append("v_dot2_f32_bf16 v%d, v%d, v128, v3" % (t, r))
            cen.append("v_dot2_f32_bf16 v%d, v%d, v129, v3" % (t + 1, r))
        if g > 0:
            for i in range(4):
                r = FR + 4 * (g - 1) + i; t = 132 + 8 * ((g - 1) & 1) + 2 * i
                cen.append("v_cvt_pk_bf16_f32 v%d, v%d, v%d" % (r, t, t + 1))
    for i in range(4):
        cen.append("s_nop 0")
    for i in range(4):
        r = FR + 4 * 27 + i; t = 132 + 8 * (27 & 1) + 2 * i
        cen.append("v_cvt_pk_bf16_f32 v%d, v%d, v%d" % (r, t, t + 1))
    a.vmwait("cm")
    r2n = 16 - cfg.r1n
    a("s_mul_i32 s45, s49, %d" % (r2n * 2048))
    interleave(a, cen, [w2dma(45, i, "w2r2") for i in range(2 * r2n)], 336 // (2 * r2n + 1))
    S(a, "cen")
    a("v_add_u32 v9, s46, v245")
    a("v_xor_b32 v7, 64, v9")
    a("v_add_u32 v11, s47, v245")
    a("v_xor_b32 v3, 64, v11")
    a("v_add_u32 v128, %d, v8" % HA)
    a("v_xor_b32 v129, 64, v128")
    a("v_add_u32 v130, %d, v8" % HB_)
    a("v_xor_b32 v131, 64, v130")
    a("v_add_u32 v247, s45, v245")
    a("v_xor_b32 v248, 64, v247")
    a.vmwait("w2r2")
    S(a, "w2a_in")
    for l in w2tr_lines(0, r2n, 247, 248): a(l)
    f2_addr()
    a("s_mov_b32 s53, 0x%x" % (WS_FLAG + F2_IDX * 64))
    a.lkall()
    S(a, "w2a_tr")
    poll(a, [12, 13, 14, 15], 53)
    S(a, "B2")
    for i in range(14): hdma(0, i)()
    hB = [hdma(1, i) for i in range(14)]
    for i in range(cfg.hpreB): hB.pop(0)()
    lab = a.label("EPO")
    a("s_or_b32 s52, s3, s49")
    a("s_cmp_lg_u32 s52, 0")
    a("s_cbranch_scc1 %s" % lab)
    a("s_mov_b32 s52, %d" % E_IDX)
    publish(a, 52)
    a(lab + ":")
    NB = 3
    HBUF = 200
    def hreads(ks, ps):
        out = []
        for i in range(2):
            r = HBUF + (ks % NB) * 8 + 4 * i
            vb = 128 + 2 * ps + i
            tag = "hr%d_%d_%d" % (ps, ks, i)
            out.append(("ds_read_b64_tr_b16 v[%d:%d], v%d offset:%d" % (r, r + 1, vb, ks * 2048), tag))
            out.append(("ds_read_b64_tr_b16 v[%d:%d], v%d offset:%d" % (r + 2, r + 3, vb, ks * 2048 + 1024), tag))
        return out
    ACCP = [136, 168]
    r3 = w2round("w2r3"); r4 = w2round("w2r4")
    sync1 = {0: 1, 4: 5, 12: 13}
    sync0 = {0: 0, 2: 2, 6: 6, 14: 13}
    for ps in range(2):
        acc = ACCP[ps]
        if ps == 0:
            a.vmwait("h0_%d" % sync0[0]); a("s_barrier")
            S(a, "h_in")
        if ps == 1:
            a.vmwait("w2r3")
            for l in w2round_reads(AM[16], AM[20]): a.lk(l, "r3")
            a.vmwait("h1_%d" % sync1[0]); a("s_barrier")
            S(a, "ps1s")
        for k0 in range(NB - 1):
            for l, t in hreads(k0, ps): a.lk(l, t)
        for ks in range(28):
            kn = ks + NB - 1
            nxt = []
            if kn < 28:
                if ps == 0 and kn in sync0 and kn > 0:
                    a.vmwait("h0_%d" % sync0[kn]); a("s_barrier")
                if ps == 1 and kn in sync1 and kn > 0:
                    a.vmwait("h1_%d" % sync1[kn]); a("s_barrier")
                nxt = hreads(kn, ps)
            if ps == 1 and ks == 2: a.lkneed("r3")
            for i in range(2):
                a.lkneed("hr%d_%d_%d" % (ps, ks, i))
                r = HBUF + (ks % NB) * 8 + 4 * i
                a("v_mfma_f32_32x32x16_bf16 v[%d:%d], v[%d:%d], v[%d:%d], %s" % (acc + 16 * i, acc + 16 * i + 15, FR + 4 * ks, FR + 4 * ks + 3, r, r + 3, "0" if ks == 0 else "v[%d:%d]" % (acc + 16 * i, acc + 16 * i + 15)))
                if nxt:
                    a.lk(*nxt[2 * i]); a.lk(*nxt[2 * i + 1])
            if ps == 0:
                if hB: hB.pop(0)()
                elif r3: r3.pop(0)()
            if ps == 1 and 2 <= ks < 26 and ks % 2 == 0: r4[(ks - 2) // 2]()
            if ps == 1 and ks == cfg.pubA:
                a.vmwait("p3a")
                a("s_barrier")
                a("s_lshl_b32 s37, s59, 4")
                a("s_add_u32 s37, s37, s60")
                a("s_add_u32 s37, s37, %d" % F3_IDX)
                publish(a, 37)
        S(a, "ps%d" % ps)
        if ps == 0:
            while hB: hB.pop(0)()
            while r3: r3.pop(0)()
            a("s_lshl_b32 s43x, s60, 2" if False else "s_lshl_b32 s55, s60, 2")
            a("s_add_u32 s55, s55, s49")
            a("s_lshl_b32 s55, s55, 11")
            a("s_add_u32 s55, s55, 0x%x" % WS_H1F)
        for i in range(2):
            a("s_lshl_b32 s52, s59, 1")
            a("s_add_u32 s52, s52, %d" % (32 * ps + i))
            a("s_mul_i32 s52, s52, %d" % (112 * 1024))
            a("s_add_u32 s52, s52, s55")
            o = 224 + 8 * i
            for q in range(8):
                a("v_cvt_pk_bf16_f32 v%d, v%d, v%d" % (o + q, acc + 16 * i + 2 * q, acc + 16 * i + 2 * q + 1))
            for q in range(8):
                a("v_pk_max_i16 v%d, v%d, 0" % (o + q, o + q))
            a.vm("buffer_store_dwordx4 v[%d:%d], v4, %s, s52 offen %s" % (o, o + 3, WS, SC), "p3a" if ps == 0 else "p3st")
            a.vm("buffer_store_dwordx4 v[%d:%d], v4, %s, s52 offen offset:1024 %s" % (o + 4, o + 7, WS, SC), "p3a" if ps == 0 else "p3st")
        S(a, "ps%de" % ps)
    S(a, "P3mm")
    a("v_min_u32 v15, 13, v2")
    a("v_lshlrev_b32 v15, 6, v15")
    a("s_lshr_b32 s36, s61, 1")
    a("s_lshl_b32 s38, s36, 10")
    a("s_add_u32 s38, s38, 0x%x" % (WS_FLAG + F3_IDX * 64))
    a.vm("buffer_load_dword v14, v15, %s, s38 offen sc0 sc1" % WS, "f3a")
    a("s_and_b32 s52, s49, 1")
    a("s_lshl_b32 s52, s52, 6")
    a("v_xor_b32 v12, s52, v8")
    a("s_lshr_b32 s52, s49, 1")
    a("s_mul_i32 s52, s52, %d" % (HB_ - HA))
    a("s_lshl_b32 s53, s60, 12")
    a("s_add_u32 s52, s52, s53")
    a("s_add_u32 s52, s52, %d" % HA)
    a("v_add_u32 v12, s52, v12")
    for k in range(2):
        a("ds_read_b64_tr_b16 v[%d:%d], v12 offset:%d" % (200 + 4 * k, 201 + 4 * k, k * 2048))
        a("ds_read_b64_tr_b16 v[%d:%d], v12 offset:%d" % (202 + 4 * k, 203 + 4 * k, k * 2048 + 1024))
    a.vmwait("w2r4")
    for l in w2round_reads(AM[22], AM[26]): a(l)
    a.vmwait("p3st")
    a("s_waitcnt lgkmcnt(0)")
    a("s_barrier")
    a("s_lshl_b32 s50, s59, 4")
    a("s_add_u32 s50, s50, s60")
    a("s_add_u32 s37, s50, %d" % F3B_IDX)
    publish(a, 37)
    S(a, "F3pub")
    if cfg.upto == 3:
        a("s_branch L_DONE")
    RING = 30; RB = 80
    a("s_lshr_b32 s36, s61, 1")
    a("s_lshl_b32 s36, s36, 1")
    a("s_and_b32 s39, s61, 1")
    a("s_add_u32 s36, s36, s39")
    a("s_mul_i32 s39, s49, %d" % (28 * 1024))
    a("s_mul_i32 s37, s36, %d" % (112 * 1024))
    a("s_add_u32 s39, s39, s37")
    a("s_add_u32 s39, s39, 0x%x" % WS_H1F)
    def hload(j):
        st, ks = divmod(j, 28)
        r = RB + (j % RING) * 4
        if j == 28: a("s_add_u32 s39, s39, %d" % (32 * 112 * 1024 - 28 * 1024))
        a.vm("buffer_load_dwordx4 v[%d:%d], v4, %s, s39 offen offset:%d" % (r, r + 3, WS, (ks % 4) * 1024), "H%d" % j)
        if ks % 4 == 3: a("s_add_u32 s39, s39, 4096")
    poll_late(a, 15, 38, 14, "f3a")
    S(a, "B3")
    for j in range(cfg.Hpre): hload(j)
    S(a, "H_iss")
    a("v_mov_b32 v208, 0x3f803f80")
    for i in range(4): a("v_mov_b32 v%d, 0" % (210 + i))
    for i in range(8):
        a("v_dot2_f32_bf16 v%d, v%d, v208, v%d" % (210 + 2 * (i & 1), 200 + i, 210 + 2 * (i & 1)))
        a("v_dot2_f32_bf16 v%d, v%d, v%d, v%d" % (211 + 2 * (i & 1), 200 + i, 200 + i, 211 + 2 * (i & 1)))
    a("v_pk_add_f32 v[210:211], v[210:211], v[212:213]")
    a("v_mov_b32 v212, v210")
    a("v_mov_b32 v213, v211")
    a("v_permlane32_swap_b32 v210, v212")
    a("v_permlane32_swap_b32 v211, v213")
    a("v_pk_add_f32 v[210:211], v[210:211], v[212:213]")
    a("s_lshr_b32 s52, s49, 1")
    a("s_lshl_b32 s52, s52, 5")
    a("s_and_b32 s50, s49, 1")
    a("s_add_u32 s52, s52, s50")
    a("s_lshl_b32 s50, s59, 1")
    a("s_add_u32 s52, s52, s50")
    a("s_lshl_b32 s52, s52, 8")
    a("s_lshl_b32 s50, s60, 14")
    a("s_add_u32 s52, s52, s50")
    a("s_add_u32 s52, s52, 0x%x" % WS_ST2P)
    a("v_and_b32 v12, 31, v2")
    a("v_lshlrev_b32 v12, 3, v12")
    a("s_mov_b32 exec_hi, 0")
    a.vm("buffer_store_dwordx2 v[210:211], v12, %s, s52 offen %s" % (WS, SC), "st2p")
    a("s_mov_b64 exec, -1")
    a("v_lshrrev_b32 v12, 3, v2")
    a("v_and_b32 v13, 7, v2")
    a("v_bfe_u32 v10, v2, 4, 1")
    a("v_lshlrev_b32 v10, 2, v10")
    a("v_xor_b32 v13, v13, v10")
    a("v_mul_u32_u24 v12, %d, v12" % RS)
    a("v_lshrrev_b32 v10, 2, v13")
    a("v_lshl_add_u32 v12, v10, 11, v12")
    a("v_and_b32 v13, 3, v13")
    a("v_lshl_add_u32 v12, v13, 4, v12")
    a("s_lshl_b32 s45, s62, 6")
    a("s_lshl_b32 s46, s49, 4")
    a("s_add_u32 s45, s45, s46")
    a("s_mul_i32 s45, s45, %d" % RS)
    a("s_lshl_b32 s46, s36, 6")
    a("s_add_u32 s45, s45, s46")
    a("s_add_u32 s45, s45, 0x%x" % WS_HT)
    a("s_lshl_b32 s46, s49, 11")
    a("s_add_u32 s46, s46, %d" % HRES)
    def hres(i):
        a("s_add_u32 m0, s46, %d" % (i * 1024))
        a.vm("buffer_load_dwordx4 v12, %s, s45 offen lds" % WS, "hres")
        if i == 0: a("s_add_u32 s45, s45, %d" % (8 * RS))
    ACC4 = 16
    a("s_and_b32 s47, s49, 1")
    a("s_lshr_b32 s63, s49, 1")
    a("s_lshl_b32 s52, s47, 5")
    a("s_add_u32 s36, s36, s52")
    a("v_and_b32 v13, 31, v2")
    a("v_lshlrev_b32 v10, 3, v13")
    a("s_add_u32 s38, s38, %d" % ((F3B_IDX - F3_IDX) * 64))
    SP = 200
    def st2load(f):
        a.vm("buffer_load_dwordx2 v[%d:%d], v10, %s, s37 offen" % (SP + 2 * f, SP + 2 * f + 1, WS), "st2")
        if f != 13: a("s_add_u32 s37, s37, 16384")
    def red_write(dtp, st):
        lab = a.label("RW")
        t = 2 * dtp + st
        if dtp == 0:
            a("s_cmp_eq_u32 s47, %d" % st)
            a("s_cbranch_scc1 %s" % lab)
        a("s_lshr_b32 s52, s49, 1")
        a("s_xor_b32 s52, s52, %d" % dtp)
        a("s_lshl_b32 s52, s52, 1")
        a("s_add_u32 s52, s52, %d" % st)
        a("s_sub_u32 s53, s49, s52")
        a("s_and_b32 s53, s53, 3")
        a("s_mul_i32 s52, s52, 3")
        a("s_add_u32 s52, s52, s53")
        a("s_lshl_b32 s52, s52, 12")
        a("s_sub_u32 s52, s52, 4096")
        a("v_add_u32 v14, s52, v4")
        for q in range(4):
            a("ds_write_b128 v14, v[%d:%d] offset:%d" % (ACC4 + 16 * t + 4 * q, ACC4 + 16 * t + 4 * q + 3, q * 1024))
        a(lab + ":")
    RED = red_write
    issued = cfg.Hpre
    S(a, "w2b_tr")
    for j in range(56):
        st, ks = divmod(j, 28)
        if j == cfg.chkB - 6:
            a.vm("buffer_load_dword v14, v15, %s, s38 offen sc0 sc1" % WS, "f3b")
        if j == cfg.chkB:
            poll_late(a, 15, 38, 14, "f3b")
            S(a, "out_stX")
        a.vmwait("H%d" % j)
        S(a, "H%d" % {0: 0, 14: 7, 28: 14, 42: 21, 55: 27}.get(j, 99))
        r = RB + (j % RING) * 4
        ab = AM[ks]
        for dt in range(2):
            t = dt * 2 + st
            a("v_mfma_f32_32x32x16_bf16 v[%d:%d], a[%d:%d], v[%d:%d], %s" % (ACC4 + 16 * t, ACC4 + 16 * t + 15, ab + 4 * dt, ab + 4 * dt + 3, r, r + 3, "0" if ks == 0 else "v[%d:%d]" % (ACC4 + 16 * t, ACC4 + 16 * t + 15)))
            if issued < (56 if j >= cfg.chkB else 28) and issued < j + RING and (j >= cfg.chkB or dt == 0):
                hload(issued); issued += 1
        if j == 8:
            a.vmwait("st2p")
            a("s_barrier")
            a("s_lshl_b32 s37, s59, 4")
            a("s_add_u32 s37, s37, s60")
            a("s_add_u32 s37, s37, %d" % F3C_IDX)
            publish(a, 37)
        if j == 30:
            a("s_add_u32 s48x, s38, 0" if False else "s_add_u32 s43, s38, %d" % ((F3C_IDX - F3B_IDX) * 64))
            a.vm("buffer_load_dword v14, v15, %s, s43 offen sc0 sc1" % WS, "f3c")
        if j == 33:
            poll_late(a, 15, 43, 14, "f3c")
            a("s_lshl_b32 s37, s36, 8")
            a("s_add_u32 s37, s37, 0x%x" % WS_ST2P)
        if j in (30, 31): hres(j - 30)
        if j == 44: red_write(1, 0)
        if j == 47: red_write(0, 0)
        if 34 <= j < 41:
            st2load(2 * (j - 34)); st2load(2 * (j - 34) + 1)
        if j == 50:
            a.vmwait("st2")
            for f in range(1, 14):
                a("v_pk_add_f32 v[%d:%d], v[%d:%d], v[%d:%d]" % (SP, SP + 1, SP, SP + 1, SP + 2 * f, SP + 2 * f + 1))
            a("v_mul_f32 v%d, 0x3b124925, v%d" % (SP, SP))
            a("v_mul_f32 v%d, 0x3b124925, v%d" % (SP + 1, SP + 1))
            a("v_fma_f32 v%d, -v%d, v%d, v%d" % (SP + 1, SP, SP, SP + 1))
            a("v_max_f32 v%d, 0, v%d" % (SP + 1, SP + 1))
            a("v_add_f32 v%d, 0x3727c5ac, v%d" % (SP + 1, SP + 1))
            a("v_rsq_f32 v248, v%d" % (SP + 1))
    a("s_nop 9")
    red_write(1, 1)
    red_write(0, 1)
    labo = a.label("OWN"); labe = a.label("OWNE")
    a("s_cmp_eq_u32 s47, 0")
    a("s_cbranch_scc1 %s" % labo)
    for i in range(16): a("v_mov_b32 v%d, v%d" % (ACC4 + i, ACC4 + 16 + i))
    a(labo + ":")
    S(a, "red_w")
    a("s_lshl_b32 s52, s47, 6")
    a("v_xor_b32 v15, s52, v8")
    a("s_lshl_b32 s52, s63, 12")
    a("s_add_u32 s52, s52, %d" % HRES)
    a("v_add_u32 v15, s52, v15")
    a("s_mul_i32 s52, s49, %d" % (3 * 4096))
    a("v_add_u32 v14, s52, v4")
    srd(a, 40, 26, 27, NB_SD)
    a("v_mul_u32_u24 v7, 896, v13")
    a("v_lshrrev_b32 v9, 5, v2")
    a("v_lshl_add_u32 v7, v9, 4, v7")
    a("s_mul_i32 s52, s36, %d" % (32 * 896))
    a("s_lshl_b32 s53, s62, 1")
    a("s_add_u32 s53, s53, s63")
    a("s_lshl_b32 s53, s53, 6")
    a("s_add_u32 s52, s52, s53")
    a("s_waitcnt lgkmcnt(0)")
    a("s_barrier")
    S(a, "red_b")
    T = 96
    for j4 in range(4):
        a("ds_read_b64_tr_b16 v[%d:%d], v15 offset:%d" % (240 + 2 * j4, 241 + 2 * j4, j4 * 1024))
    for d in range(3):
        for q in range(4):
            a("ds_read_b128 v[%d:%d], v14 offset:%d" % (T + 16 * d + 4 * q, T + 16 * d + 4 * q + 3, d * 4096 + q * 1024))
    a("s_waitcnt lgkmcnt(12)")
    for dw in range(8):
        hx = 160 + 2 * dw
        a("v_lshlrev_b32 v%d, 16, v%d" % (hx, 240 + dw))
        a("v_and_b32 v%d, 0xffff0000, v%d" % (hx + 1, 240 + dw))
    a("s_waitcnt lgkmcnt(8)")
    for i in range(0, 16, 2):
        a("v_pk_add_f32 v[%d:%d], v[%d:%d], v[%d:%d]" % (ACC4 + i, ACC4 + i + 1, ACC4 + i, ACC4 + i + 1, T + i, T + i + 1))
    a("s_waitcnt lgkmcnt(0)")
    for i in range(0, 16, 2):
        a("v_pk_add_f32 v[%d:%d], v[%d:%d], v[%d:%d]" % (T + 16 + i, T + 17 + i, T + 16 + i, T + 17 + i, T + 32 + i, T + 33 + i))
    for i in range(0, 16, 2):
        a("v_pk_add_f32 v[%d:%d], v[%d:%d], v[%d:%d]" % (ACC4 + i, ACC4 + i + 1, ACC4 + i, ACC4 + i + 1, T + 16 + i, T + 17 + i))
    S(a, "red_r")
    for dw in range(8):
        hx = 160 + 2 * dw
        a("v_pk_fma_f32 v[%d:%d], v[%d:%d], v[248:249], v[%d:%d] op_sel_hi:[1,0,1]" % (hx, hx + 1, ACC4 + 2 * dw, ACC4 + 2 * dw + 1, hx, hx + 1))
    for dw in range(8):
        hx = 160 + 2 * dw
        a("v_cvt_pk_bf16_f32 v%d, v%d, v%d" % (180 + dw, hx, hx + 1))
    for jp in range(2):
        A0 = 180 + 4 * jp
        a("v_permlane32_swap_b32 v%d, v%d" % (A0, A0 + 2))
        a("v_permlane32_swap_b32 v%d, v%d" % (A0 + 1, A0 + 3))
    a("buffer_store_dwordx4 v[180:183], v7, s[40:43], s52 offen")
    a("buffer_store_dwordx4 v[184:187], v7, s[40:43], s52 offen offset:32")
    S(a, "out_st")
    a("L_DONE:")
    if common.STAMPS:
        fstamp_flush(a)
    a("L_END:")
    a("s_endpgm")
    gen_stats(a)
    a("L_CODE_END:")
    a("s_endpgm")
    return a.lines, dict(vgpr=256, sgpr=102, lds=LDS_TOTAL, grid=256, agpr=256)

def build(out, cfg=Cfg):
    lines, info = gen(cfg)
    lines = fix_hazards(lines, verbose=True)
    txt = ["; generated by a hand-written generator (gen/fused16.py)",
           "; @launch grid=(%d,1,1) block=(256,1,1) lds=%d" % (info["grid"], info["lds"]),
           '.amdgcn_target "amdgcn-amd-amdhsa--gfx950"', ".text"]
    txt += lines
    txt.append('.section .rodata,"a"')
    txt += kernel_desc(KN, info["vgpr"], info["sgpr"], accum=256, agpr=info["agpr"])
    open(out, "w").write("\n".join(txt) + "\n")

if __name__ == "__main__":
    import sys, os
    common.STAMPS = int(os.environ.get("STAMPS", "0"))
    out = sys.argv[1]
    for kv in sys.argv[2:]:
        k, v = kv.split("=")
        setattr(Cfg, k, int(v))
    build(out)
```

```python
from common import *
F3C_IDX = 1280
WS_UL = 0x1500000
RS2 = 8320
WS_SIZE = 0x1900000
RS = 4224
F2B_IDX = 1536
FC_IDX = 288
F1X_IDX = 1792
import common
from fused import fstamp_flush, publish, poll, token, KN, S_T, S_WAVE, WS
import fused

SC = "sc1"
R0 = 0
R1 = 114688
HC = R1; HC_CH = 4 * 4160; UR = HC + 2 * HC_CH; UR_CH = 4608
LDS_TOTAL = 163840
R2W = 12288
HA = 32768; HB_ = 90112; YB = 147456
HRES = 65536
PB = R1
WS_CM = 0x1330000
WS_ST2P = 0x1340000

class Cfg:
    r2pre = 8
    outsc = 0
    xp = 0
    pubfirst = 1
    lateq = 1
    hwait = 0
    oldpro = 1
    r1late = 0
    fsearly = 1
    r1n = 4
    b1sleep = 0
    w1pf = 0
    hpreB = 2
    chk2 = 14
    hw2 = 0
    tlb = 0
    cpre = 1
    slp = 0
    pubA = 16
    chkB = 17
    w1pre = 2
    sset = 0
    upto = 4
    wpre = 1
    hpre = 16
    Hpre = 14

SETS = {
 0: ["start","ldiss","k_in","p1st","F1pub","prepoll","B1","URin","conv","p2st","F2pub","B2","h_in","P3mm","F3pub","B3"],
 1: ["start","B3","H_iss","H0","H7","H14","H21","H27","red_w","red_b","red_r","out_st", "F3pub", "w2b_iss", "w2b_in", "w2b_tr"],
 3: ["start"],
 4: ["start","karg","p1iss","ldiss","k_in","v_in","q_in","p1lds","p1st","drain","F1pub","hcw","prepoll","B1","URin","conv"],
 2: ["start","URin","conv","p2st","F2pub","cen","w2a_tr","B2","h_in","ps0","ps0e","ps1s","ps1","ps1e","F3pub","B3"],
 5: ["start","URin","rho0","rho1","rho2","rho3","conv","pw","pbar","pz","p2st","F2pub"],
}
def S(a, name):
    names = SETS[Cfg.sset]
    if name in names: stamp(a, names.index(name))

def poll_late(a, vaddr, soff_sgpr, reg, tag):
    lp = a.label("POLL"); done = a.label("PDONE")
    a.vmwait(tag)
    a("v_cmp_ne_u32 vcc, s%d, v%d" % (S_T, reg))
    a("s_nop 4")
    a("s_cmp_eq_u64 vcc, 0")
    a("s_cbranch_scc1 %s" % done)
    a("s_mov_b32 s51, 0")
    a(lp + ":")
    if Cfg.slp: a("s_sleep %d" % Cfg.slp)
    a("buffer_load_dword v%d, v%d, %s, s%d offen sc0 sc1" % (reg, vaddr, WS, soff_sgpr))
    a("s_waitcnt vmcnt(0)")
    a("v_cmp_ne_u32 vcc, s%d, v%d" % (S_T, reg))
    a("s_nop 4")
    a("s_cmp_eq_u64 vcc, 0")
    a("s_cbranch_scc1 %s" % done)
    a("s_add_u32 s51, s51, 1")
    a("s_cmp_lt_u32 s51, 0x40000")
    a("s_cbranch_scc1 %s" % lp)
    a(done + ":")

def interleave(a, main, side, every):
    si = 0
    for i, l in enumerate(main):
        a(l)
        if (i + 1) % every == 0 and si < len(side):
            side[si](); si += 1
    while si < len(side):
        side[si](); si += 1

def gen_stats(a):
    a("L_STATS0:")
    a("s_load_dword s48, s[30:31], s50")
    srd(a, 32, 30, 31, WS_SIZE)
    a("L_STATS:")
    if Cfg.hwait:
        a("s_waitcnt lgkmcnt(0)")
        a("s_mov_b32 s54, s48")
        a("s_mul_i32 s54, s54, 1664525")
        a("s_add_u32 s54, s54, 1013904223")
        a("s_lshl_b32 s53, s2, 6")
        a("s_add_u32 s53, s53, 0x%x" % WS_FLAG)
        a("v_mov_b32 v20, 0")
        a("s_mov_b32 s51, 0")
        a("L_HW:")
        a("buffer_load_dword v21, v20, %s, s53 offen sc0 sc1" % WS)
        a("s_waitcnt vmcnt(0)")
        a("v_cmp_ne_u32 vcc, s54, v21")
        a("s_nop 4")
        a("s_cmp_eq_u64 vcc, 0")
        a("s_cbranch_scc1 L_HWD")
        a("s_add_u32 s51, s51, 1")
        a("s_cmp_lt_u32 s51, 0x40000")
        a("s_cbranch_scc1 L_HW")
        a("L_HWD:")
    a("v_and_b32 v1, 7, v0")
    a("v_lshrrev_b32 v2, 3, v0")
    a("s_mul_i32 s52, s2, %d" % (64 * 896))
    a("v_lshrrev_b32 v3, 3, v2")
    a("v_and_b32 v4, 7, v2")
    a("v_lshl_add_u32 v5, v3, 4, v4")
    a("v_mul_u32_u24 v6, 896, v5")
    a("v_lshl_add_u32 v6, v1, 4, v6")
    a("v_add_u32 v6, s52, v6")
    a("v_add_u32 v7, %d, v6" % (8 * 896))
    srd(a, 36, 8, 9, NB_SD)
    for p in range(2):
        for i in range(7):
            r = 16 + (p * 7 + i) * 4
            a("buffer_load_dwordx4 v[%d:%d], v%d, s[36:39], 0 offen offset:%d" % (r, r + 3, 6 + p, i * 128))
    if Cfg.hw2:
        srd(a, 44, 24, 25, D * F * 2)
        a("s_mul_i32 s52, s2, 392")
        a("v_add_u32 v11, s52, v0")
        a("v_lshlrev_b32 v11, 7, v11")
        a("buffer_load_dword v12, v11, s[44:47], 0 offen")
        a("v_min_u32 v13, 135, v0")
        a("v_add_u32 v13, s52, v13")
        a("v_lshlrev_b32 v13, 7, v13")
        a("buffer_load_dword v14, v13, s[44:47], 0 offen offset:0" if False else "v_add_u32 v13, %d, v13" % (256 * 128))
        a("buffer_load_dword v14, v13, s[44:47], 0 offen")
    NX = 2 if Cfg.hw2 else 0
    a("v_mov_b32 v8, 0x3f803f80")
    for r in range(80, 88): a("v_mov_b32 v%d, 0" % r)
    for p in range(2):
        for i in range(7):
            a("s_waitcnt vmcnt(%d)" % (13 - (p * 7 + i)))
            for c in range(4):
                r = 16 + (p * 7 + i) * 4 + c
                o = 80 + 4 * p + 2 * (c & 1)
                a("v_dot2_f32_bf16 v%d, v%d, v8, v%d" % (o, r, o))
                a("v_dot2_f32_bf16 v%d, v%d, v%d, v%d" % (o + 1, r, r, o + 1))
    for p in range(2):
        a("v_add_f32 v%d, v%d, v%d" % (80 + 4 * p, 80 + 4 * p, 82 + 4 * p))
        a("v_add_f32 v%d, v%d, v%d" % (81 + 4 * p, 81 + 4 * p, 83 + 4 * p))
    for mod in ("quad_perm:[1,0,3,2]", "quad_perm:[2,3,0,1]", "row_half_mirror"):
        for r in (80, 81, 84, 85):
            a("v_add_f32_dpp v%d, v%d, v%d %s row_mask:0xf bank_mask:0xf" % (r, r, r, mod))
    for p in range(2):
        s_, q_ = 80 + 4 * p, 81 + 4 * p
        a("v_mul_f32 v%d, 0x3b124925, v%d" % (s_, s_))
        a("v_mul_f32 v%d, 0x3b124925, v%d" % (q_, q_))
        a("v_fma_f32 v%d, -v%d, v%d, v%d" % (q_, s_, s_, q_))
        a("v_max_f32 v%d, 0, v%d" % (q_, q_))
        a("v_add_f32 v%d, 0x3727c5ac, v%d" % (q_, q_))
        a("v_rsq_f32 v%d, v%d" % (88 + 2 * p, q_))
        a("v_mul_f32 v%d, v%d, v%d" % (89 + 2 * p, s_, 88 + 2 * p))
        a("v_sub_f32 v%d, 0, v%d" % (89 + 2 * p, 89 + 2 * p))
    a("s_lshl_b32 s52, s2, 8")
    a("s_add_u32 s52, s52, 0x%x" % WS_STA)
    a("s_add_u32 s53, s52, 8192")
    a("v_lshlrev_b32 v9, 2, v5")
    a("v_cmp_eq_u32 vcc, 0, v1")
    a("s_and_saveexec_b64 s[54:55], vcc")
    a("buffer_store_dword v88, v9, %s, s52 offen %s" % (WS, SC))
    a("buffer_store_dword v89, v9, %s, s53 offen %s" % (WS, SC))
    a("buffer_store_dword v90, v9, %s, s52 offen offset:32 %s" % (WS, SC))
    a("buffer_store_dword v91, v9, %s, s53 offen offset:32 %s" % (WS, SC))
    a("s_mov_b64 exec, s[54:55]")
    srd(a, 40, 22, 23, D * F * 2)
    a("v_mul_u32_u24 v10, 3584, v2")
    a("v_lshl_add_u32 v10, v1, 4, v10")
    a("s_lshl_b32 s52, s2, 7")
    a("s_cmp_lt_u32 s2, 28")
    a("s_cselect_b32 s52, s52, 0x40000000")
    for i in range(14):
        a("buffer_load_dwordx4 v[%d:%d], v10, s[40:43], s52 offen" % (100 + 4 * i, 103 + 4 * i))
        if i != 13: a("s_add_u32 s52, s52, %d" % (32 * 3584))
    a("s_waitcnt vmcnt(14) lgkmcnt(0)")
    token(a)
    a("s_barrier")
    a("s_add_u32 s52, s2, %d" % FS_IDX)
    publish(a, 52)
    a("s_waitcnt vmcnt(0)")
    a("v_mov_b32 v8, 0x00003f80")
    a("v_mov_b32 v9, 0x3f800000")
    for r in range(16, 24): a("v_mov_b32 v%d, 0" % r)
    for i in range(14):
        for c in range(4):
            a("v_dot2_f32_bf16 v%d, v%d, v8, v%d" % (16 + 2 * c, 100 + 4 * i + c, 16 + 2 * c))
            a("v_dot2_f32_bf16 v%d, v%d, v9, v%d" % (17 + 2 * c, 100 + 4 * i + c, 17 + 2 * c))
    a("v_lshlrev_b32 v24, 8, v2")
    a("v_lshl_add_u32 v24, v1, 5, v24")
    a("ds_write_b128 v24, v[16:19]")
    a("ds_write_b128 v24, v[20:23] offset:16")
    a("v_and_b32 v25, 63, v0")
    a("v_lshrrev_b32 v26, 6, v0")
    a("v_lshlrev_b32 v27, 11, v26")
    a("v_lshl_add_u32 v27, v25, 2, v27")
    a("s_waitcnt lgkmcnt(0)")
    a("s_barrier")
    for i in range(8):
        a("ds_read_b32 v%d, v27 offset:%d" % (28 + i, i * 256))
    a("s_waitcnt lgkmcnt(0)")
    for i in range(1, 8):
        a("v_add_f32 v28, v28, v%d" % (28 + i))
    a("v_lshlrev_b32 v27, 8, v26")
    a("v_lshl_add_u32 v27, v25, 2, v27")
    a("ds_write_b32 v27, v28 offset:8192")
    a("v_lshlrev_b32 v27, 2, v25")
    a("s_waitcnt lgkmcnt(0)")
    a("s_barrier")
    for i in range(4):
        a("ds_read_b32 v%d, v27 offset:%d" % (28 + i, 8192 + i * 256))
    a("s_waitcnt lgkmcnt(0)")
    a("v_add_f32 v28, v28, v29")
    a("v_add_f32 v30, v30, v31")
    a("v_add_f32 v28, v28, v30")
    a("v_mul_f32 v28, 0xbb124925, v28")
    lab = a.label("NOCM")
    a("s_cmp_ge_u32 s2, 28")
    a("s_cbranch_scc1 %s" % lab)
    a("s_cmp_lg_u32 s49, 0")
    a("s_cbranch_scc1 %s" % lab)
    a("s_lshl_b32 s52, s2, 8")
    a("s_add_u32 s52, s52, 0x%x" % WS_CM)
    a("buffer_store_dword v28, v27, %s, s52 offen %s" % (WS, SC))
    a(lab + ":")
    a("s_waitcnt vmcnt(0) lgkmcnt(0)")
    a("s_barrier")
    a("s_add_u32 s52, s2, %d" % FC_IDX)
    publish(a, 52)
    S(a, "B3")
    fstamp_flush(a)
    a("s_endpgm")

def gen(cfg=Cfg):
    a = Asm()
    for l in kernel_header(KN): a(l)
    a("s_load_dwordx16 s[8:23], s[0:1], 0")
    a("s_load_dwordx8 s[24:31], s[0:1], 64")
    S(a, "start")
    a("s_cmp_ge_u32 s2, 256")
    a("s_cbranch_scc1 L_END")
    a("v_lshrrev_b32 v1, 6, v0")
    a("v_and_b32 v2, 63, v0")
    a("v_readfirstlane_b32 s49, v1")
    a("s_mov_b32 s50, 0x%x" % (WS_FLAG + E_IDX * 64))
    a("s_sub_u32 s3, s2, 32")
    a("s_mul_i32 s56, s3, 9363")
    a("s_lshr_b32 s56, s56, 16")
    a("s_mul_i32 s57, s56, 7")
    a("s_sub_u32 s57, s3, s57")
    a("s_and_b32 s52, s3, 7")
    a("s_lshr_b32 s53, s3, 3")
    a("s_mul_i32 s58, s52, 28")
    a("s_add_u32 s58, s58, s53")
    a("s_lshr_b32 s59, s52, 1")
    a("s_lshl_b32 s59, s59, 2")
    a("s_and_b32 s54, s53, 3")
    a("s_add_u32 s59, s59, s54")
    a("s_and_b32 s60, s52, 1")
    a("s_mul_i32 s60, s60, 7")
    a("s_lshr_b32 s55, s53, 2")
    a("s_add_u32 s60, s60, s55")
    a("s_lshl_b32 s61, s52, 2")
    a("s_add_u32 s61, s61, s54")
    a("s_mov_b32 s62, s55")
    a("v_and_b32 v1, 7, v0")
    a("v_lshrrev_b32 v14, 3, v0")
    a("s_mul_i32 s52, s56, %d" % (64 * 896))
    a("s_lshl_b32 s53, s57, 7")
    a("s_add_u32 s52, s52, s53")
    a("v_mul_u32_u24 v8, %d, v14" % (2 * 896))
    a("v_lshl_add_u32 v8, v1, 4, v8")
    a("v_add_u32 v8, s52, v8")
    for j in range(5):
        d = (j - 3) * 896
        if d < 0: a("v_subrev_u32 v%d, %d, v8" % (3 + j, -d))
        else: a("v_add_u32 v%d, %d, v8" % (3 + j, d))
    a("s_lshl_b32 s53, s57, 9")
    a("v_lshl_add_u32 v9, v1, 6, s53")
    for r, n in ((36, NB_SD), (44, NB_SD), (40, 448 * 4 * 2), (4, NB_SD)):
        a("s_mov_b32 s%d, 0x%x" % (r + 2, n))
        a("s_mov_b32 s%d, 0x20000" % (r + 3))
    a("s_cmp_lt_u32 s2, 32")
    a("s_waitcnt lgkmcnt(0)")
    S(a, "karg")
    a("s_cbranch_scc1 L_STATS0")
    a("s_load_dword s48, s[30:31], s50")
    a("s_mov_b32 s36, s10")
    a("s_and_b32 s37, s11, 0xffff")
    for j in range(5):
        a.vm("buffer_load_dwordx4 v[%d:%d], v%d, s[36:39], 0 offen" % (16 + 4 * j, 19 + 4 * j, 3 + j), "k")
    a("s_mov_b32 s44, s12")
    a("s_and_b32 s45, s13, 0xffff")
    a.vm("buffer_load_dwordx4 v[36:39], v8, s[44:47], 0 offen", "v")
    a.vm("buffer_load_dwordx4 v[40:43], v8, s[44:47], 0 offen offset:896", "v")
    a("s_mov_b32 s40, s14")
    a("s_and_b32 s41, s15, 0xffff")
    for j in range(4):
        a.vm("buffer_load_dwordx4 v[%d:%d], v9, s[40:43], 0 offen offset:%d" % (52 + 4 * j, 55 + 4 * j, 16 * j), "sk")
    a("s_mov_b32 s4, s8")
    a("s_and_b32 s5, s9, 0xffff")
    W2V = [6]
    srd(a, 40, 24, 25, D * F * 2)
    a("v_lshrrev_b32 v246, 3, v2")
    a("v_and_b32 v247, 7, v2")
    a("v_bfe_u32 v248, v2, 4, 1")
    a("v_lshlrev_b32 v248, 2, v248")
    a("v_xor_b32 v247, v247, v248")
    a("v_mul_u32_u24 v246, 896, v246")
    a("v_lshl_add_u32 v6, v247, 4, v246")
    a("s_mul_i32 s44, s49, %d" % (448 * 896))
    a("s_lshl_b32 s45, s62, 7")
    a("s_add_u32 s44, s44, s45")
    a("s_sub_u32 s44, s44, %d" % (8 * 896))
    a("s_mul_i32 s45, s49, %d" % (cfg.r1n * 2048))
    def w2dma(base_sgpr, i, tag):
        def f():
            a("s_add_u32 m0, s%d, %d" % (base_sgpr, i * 1024))
            a("s_add_u32 s44, s44, %d" % (8 * 896))
            a.vm("buffer_load_dwordx4 v%d, s[40:43], s44 offen lds" % W2V[0], tag)
        return f
    def partB():
        a.vm("buffer_load_dwordx4 v[44:47], v8, s[4:7], 0 offen", "q")
        a.vm("buffer_load_dwordx4 v[48:51], v8, s[4:7], 0 offen offset:896", "q")
        S(a, "p1iss")
        srd(a, 32, 30, 31, WS_SIZE)
        srd(a, 36, 16, 17, NB_SD)
        a("v_lshlrev_b32 v232, 4, v0")
        a("s_lshl_b32 s96, s58, 13")
        a("s_add_u32 s97, s96, 4096")
        for c in range(2):
            r = 200 + 8 * c
            a.vm("buffer_load_dwordx4 v[%d:%d], v232, s[36:39], s%d offen" % (r, r + 3, 96 + c), "ssm")
            a.vm("buffer_load_dwordx2 v[%d:%d], v232, s[36:39], s%d offen offset:16" % (r + 4, r + 5, 96 + c), "ssm")
        a("v_and_b32 v233, 15, v2")
        a("v_lshrrev_b32 v234, 4, v2")
        a("v_add_u32 v233, v233, v234")
        a("v_subrev_u32 v233, 15, v233")
        a("v_lshlrev_b32 v234, 1, v233")
        a("v_mov_b32 v225, 0x40000000")
        a("v_cmp_gt_i32 vcc, 0, v233")
        a("v_cndmask_b32 v234, v234, v225, vcc")
        a("s_and_b32 s97, s49, 1")
        a("s_lshl_b32 s97, s97, 12")
        a("s_add_u32 s97, s97, s96")
        a.vm("buffer_load_ushort v224, v234, s[36:39], s97 offen", "ssm")
        a("s_lshl_b32 s96, s58, 2")
        a("s_load_dword s63, s[18:19], s96")
        if cfg.cpre:
            a("s_getpc_b64 s[98:99]")
            a("L_PC:")
            a("s_lshl_b32 s96, s49, 13")
            a("v_lshlrev_b32 v226, 7, v2")
            a("v_add_u32 v226, s96, v226")
            a("v_min_u32 v226, L_CODE_END-L_PC-4, v226")
            a.vm("global_load_dword v227, v226, s[98:99]", "pre")
    if not cfg.lateq: partB()
    S(a, "ldiss")
    a("v_sub_u32 v10, 31, v14")
    a("v_lshrrev_b32 v11, 2, v10")
    a("v_xor_b32 v11, v11, v1")
    a("v_lshlrev_b32 v11, 4, v11")
    a("v_and_b32 v10, 3, v10")
    a("v_lshl_add_u32 v11, v10, 2, v11")
    a("v_lshl_add_u32 v11, v1, 10, v11")
    a("v_add_u32 v11, %d, v11" % R1)
    a("v_lshrrev_b32 v12, 2, v14")
    a("v_xor_b32 v12, v12, v1")
    a("v_lshlrev_b32 v12, 4, v12")
    a("v_and_b32 v10, 3, v14")
    a("v_lshl_add_u32 v12, v10, 2, v12")
    a("v_lshl_add_u32 v12, v1, 10, v12")
    a("v_add_u32 v12, %d, v12" % (R1 + 8192))
    a("v_lshrrev_b32 v10, 3, v14")
    a("v_xor_b32 v15, v1, v10")
    a("v_lshlrev_b32 v15, 4, v15")
    a("v_lshl_add_u32 v15, v14, 7, v15")
    a("v_add_u32 v15, %d, v15" % R1)
    a("v_xor_b32 v3, 64, v15") if False else None
    a("v_mul_u32_u24 v13, %d, v14" % RS)
    a("v_lshl_add_u32 v13, v1, 4, v13")
    a("s_mul_i32 s52, s57, %d" % (64 * RS))
    a("s_lshl_b32 s53, s56, 7")
    a("s_add_u32 s51, s52, s53")
    a("s_add_u32 s51, s51, 0x%x" % WS_XT)
    a("v_lshrrev_b32 v240, 1, v1")
    a("v_xor_b32 v240, v240, v10")
    a("v_lshlrev_b32 v240, 4, v240")
    a("v_lshl_add_u32 v240, v14, 7, v240")
    a("v_and_b32 v241, 1, v1")
    a("v_lshl_add_u32 v240, v241, 3, v240")
    a("v_add_u32 v240, %d, v240" % R1)
    a("v_mul_u32_u24 v241, %d, v14" % RS2)
    a("v_lshl_add_u32 v241, v1, 4, v241")
    a("s_mul_i32 s50, s57, %d" % (64 * RS2))
    a("s_lshl_b32 s53, s56, 8")
    a("s_sub_u32 s50, s50, s53")
    a("s_add_u32 s50, s50, 0x%x" % (WS_UL + 7936))
    a.vmwait("k")
    S(a, "k_in")
    if cfg.lateq: partB()
    K = lambda j, c: 100 + (j * 4 + c) * 2
    for j in range(5):
        for c in range(4):
            r = 16 + 4 * j + c
            a("v_lshlrev_b32 v%d, 16, v%d" % (K(j, c), r))
            a("v_and_b32 v%d, 0xffff0000, v%d" % (K(j, c) + 1, r))
    a.vmwait("sk")
    W = lambda c, t: 68 + (c * 4 + t) * 2
    for c in range(4):
        r = 52 + 4 * c
        a("v_lshlrev_b32 v%d, 16, v%d" % (W(c, 0), r))
        a("v_lshlrev_b32 v%d, 16, v%d" % (W(c, 0) + 1, r + 2))
        a("v_and_b32 v%d, 0xffff0000, v%d" % (W(c, 1), r))
        a("v_and_b32 v%d, 0xffff0000, v%d" % (W(c, 1) + 1, r + 2))
        a("v_lshlrev_b32 v%d, 16, v%d" % (W(c, 2), r + 1))
        a("v_lshlrev_b32 v%d, 16, v%d" % (W(c, 2) + 1, r + 3))
        a("v_and_b32 v%d, 0xffff0000, v%d" % (W(c, 3), r + 1))
        a("v_and_b32 v%d, 0xffff0000, v%d" % (W(c, 3) + 1, r + 3))
    U = lambda e, c: 140 + e * 8 + 2 * c
    P = lambda r: "v[%d:%d]" % (r, r + 1)
    for e in range(2):
        for c in range(4):
            a("v_pk_mul_f32 %s, %s, %s" % (P(U(e, c)), P(K(3 + e, c)), P(W(c, 0))))
        for t in range(1, 4):
            for c in range(4):
                a("v_pk_fma_f32 %s, %s, %s, %s" % (P(U(e, c)), P(K(3 + e - t, c)), P(W(c, t)), P(U(e, c))))
    a("v_xor_b32 v3, 64, v15")
    a.vmwait("v")
    S(a, "v_in")
    for e in range(2):
        for c in range(4):
            r = 36 + 4 * e + c
            t = 156 + (e * 4 + c) * 2
            a("v_lshlrev_b32 v%d, 16, v%d" % (t, r))
            a("v_and_b32 v%d, 0xffff0000, v%d" % (t + 1, r))
    for e in range(2):
        for c in range(4):
            t = 156 + (e * 4 + c) * 2
            a("v_pk_mul_f32 %s, %s, %s" % (P(U(e, c)), P(U(e, c)), P(t)))
    for i in range(8):
        a("v_cvt_pk_bf16_f32 v%d, v%d, v%d" % (172 + i, 148 + i, 140 + i))
    for i in range(8):
        a("ds_write_b32 v11, v%d offset:%d" % (172 + i, i * 128))
    a("s_waitcnt lgkmcnt(0)")
    a("s_barrier")
    S(a, "p1lds")
    token(a)
    for it in range(2):
        for hb in range(2):
            m = 2 * it + hb
            off = it * 4096 + ((hb ^ it) << 6)
            a("ds_read_b32 v%d, v240 offset:%d" % (16 + 4 * m, off))
            a("ds_read_b32 v%d, v240 offset:%d" % (18 + 4 * m, off + 4))
    for m in range(4):
        a("v_mov_b32 v%d, s%d" % (17 + 4 * m, S_T))
        a("v_mov_b32 v%d, s%d" % (19 + 4 * m, S_T))
    a("s_add_u32 s52, s50, %d" % (32 * RS2))
    for m in range(4):
        a("s_waitcnt lgkmcnt(%d)" % (6 - 2 * m))
        a.vm("buffer_store_dwordx4 v[%d:%d], v241, %s, s%d offen offset:%d %s" % (16 + 4 * m, 19 + 4 * m, WS, 50 if m < 2 else 52, (m & 1) * 128, SC), "p1u")
    a.vmwait("q")
    S(a, "q_in")
    a("s_mov_b32 s52, 0x05040100")
    a("s_mov_b32 s53, 0x07060302")
    for i in range(4):
        a("v_perm_b32 v%d, v%d, v%d, s52" % (180 + 2 * i, 48 + i, 44 + i))
        a("v_perm_b32 v%d, v%d, v%d, s53" % (181 + 2 * i, 48 + i, 44 + i))
    for i in range(8):
        a("ds_write_b32 v12, v%d offset:%d" % (180 + i, i * 128))
    a("s_add_u32 s53, s51, %d" % (32 * RS))
    a("s_waitcnt lgkmcnt(0)")
    a("s_barrier")
    a("ds_read_b128 v[32:35], v15 offset:8192")
    a("ds_read_b128 v[36:39], v3 offset:12288")
    a("s_waitcnt lgkmcnt(1)")
    a.vm("buffer_store_dwordx4 v[32:35], v13, %s, s51 offen %s" % (WS, SC), "p1x")
    a("s_waitcnt lgkmcnt(0)")
    a.vm("buffer_store_dwordx4 v[36:39], v13, %s, s53 offen %s" % (WS, SC), "p1x")
    S(a, "p1st")
    a("s_barrier")
    a.vmwait("ssm")
    for c in range(2):
        w0 = 200 + 8 * c
        b = 140 + 12 * c
        for i in range(4): a("v_alignbit_b32 v%d, v%d, v%d, 16" % (b + i, w0 + i + 1, w0 + i))
        for i in range(4): a("v_mov_b32 v%d, v%d" % (b + 4 + i, w0 + i + 1))
        for i in range(4): a("v_alignbit_b32 v%d, v%d, v%d, 16" % (b + 8 + i, w0 + i + 2, w0 + i + 1))
    a("v_and_b32 v10, 15, v2")
    a("v_lshrrev_b32 v11, 4, v2")
    a("v_bfe_u32 v4, v2, 2, 2")
    a("v_lshrrev_b32 v5, 5, v2")
    a("v_lshl_add_u32 v5, v5, 2, v4")
    a("v_lshlrev_b32 v8, 7, v5")
    a("v_lshlrev_b32 v5, 8, v5")
    a("v_lshl_add_u32 v5, v4, 6, v5")
    a("v_bfe_u32 v4, v2, 3, 1")
    a("v_lshl_add_u32 v8, v4, 6, v8")
    a("v_bfe_u32 v4, v2, 4, 1")
    a("v_lshl_add_u32 v5, v4, 5, v5")
    a("v_lshl_add_u32 v8, v4, 5, v8")
    a("v_and_b32 v4, 3, v2")
    a("v_lshl_add_u32 v5, v4, 3, v5")
    a("v_lshl_add_u32 v8, v4, 3, v8")
    a("s_lshr_b32 s52, s49, 1")
    a("s_and_b32 s53, s49, 1")
    a("s_lshl_b32 s36, s52, 6")
    a("v_xor_b32 v245, s36, v8")
    A_, B_ = 128, 129
    a("v_and_b32 v%d, 3, v10" % A_)
    a("v_mul_u32_u24 v%d, 4160, v%d" % (A_, A_))
    a("v_lshrrev_b32 v130, 2, v10")
    a("v_lshl_add_u32 v%d, v130, 3, v%d" % (A_, A_))
    a("v_lshl_add_u32 v%d, v11, 4, v%d" % (A_, A_))
    a("s_mul_i32 s36, s52, %d" % HC_CH)
    a("s_lshl_b32 s37, s53, 8")
    a("s_add_u32 s36, s36, s37")
    a("s_add_u32 s36, s36, %d" % HC)
    a("v_add_u32 v%d, s36, v%d" % (A_, A_))
    a("v_lshlrev_b32 v%d, 5, v10" % B_)
    a("v_lshlrev_b32 v130, 4, v11")
    a("v_sub_u32 v%d, v130, v%d" % (B_, B_))
    a("s_mul_i32 s36, s52, %d" % UR_CH)
    a("s_add_u32 s36, s36, s37")
    a("s_add_u32 s36, s36, %d" % (UR + 480))
    a("v_add_u32 v%d, s36, v%d" % (B_, B_))
    AD = 132
    a("s_lshl_b32 s36, s52, 4")
    a("s_lshr_b32 s37, s63, s36")
    a("s_and_b32 s37, s37, 0xffff")
    a("s_cmp_eq_u32 s53, 0")
    a("s_cselect_b32 s37, s37, 0")
    a("v_lshlrev_b32 v130, 3, v11")
    a("v_add_u32 v130, v130, v10")
    a("v_sub_u32 v130, 15, v130")
    a("v_and_b32 v131, 1, v130")
    a("v_lshlrev_b32 v131, 4, v131")
    a("v_mov_b32 v136, s37")
    a("v_lshlrev_b32 v131, v131, v136")
    a("v_ashrrev_i32 v130, 1, v130")
    for dw in range(4):
        a("v_cmp_eq_u32 vcc, %d, v130" % dw)
        a("v_cndmask_b32 v%d, 0, v131, vcc" % (AD + dw))
    ACC = 136
    a("v_lshlrev_b32 v4, 4, v2")
    a("v_and_b32 v14, 127, v0")
    a("v_lshrrev_b32 v15, 7, v0")
    a("v_lshlrev_b32 v13, 4, v14")
    a("v_mul_u32_u24 v241, %d, v15" % RS)
    a("v_add_u32 v13, v241, v13")
    a("v_lshlrev_b32 v9, 5, v14")
    a("s_mul_i32 s54, s58, %d" % (2 * RS))
    a("s_mul_i32 s55, s52, %d" % RS)
    a("s_add_u32 s55, s55, s54")
    a("s_lshl_b32 s50, s53, 11")
    a("s_add_u32 s38, s55, s50")
    a("s_mul_i32 s39, s52, %d" % UR_CH)
    a("s_add_u32 s39, s39, s50")
    a("s_add_u32 s39, s39, %d" % UR)
    a("s_lshr_b32 s52, s58, 5")
    a("s_lshl_b32 s52, s52, 5")
    a("v_and_b32 v12, 31, v2")
    a("v_add_u32 v12, s52, v12")
    a("v_lshlrev_b32 v12, 6, v12")
    a("v_lshlrev_b32 v244, 4, v0")
    a("v_add_u32 v244, %d, v244" % (32 + HC))
    a("v_mul_u32_u24 v243, 4160, v11")
    a("v_lshl_add_u32 v243, v10, 1, v243")
    a("s_and_b32 s52, s49, 1")
    a("s_mul_i32 s52, s52, %d" % HC_CH)
    a("s_add_u32 s52, s52, %d" % HC)
    a("v_add_u32 v243, s52, v243")
    a("v_lshrrev_b32 v232, 5, v2")
    a("v_mul_u32_u24 v232, %d, v232" % UR_CH)
    a("v_and_b32 v233, 31, v2")
    a("v_lshl_add_u32 v232, v233, 4, v232")
    a("v_add_u32 v232, %d, v232" % (UR + 4096))
    for i in range(4): a("v_mov_b32 v%d, 0" % (236 + i))
    srd(a, 4, 22, 23, D * F * 2)
    a("v_lshrrev_b32 v7, 4, v2")
    a("v_and_b32 v233, 15, v2")
    a("v_lshlrev_b32 v234, 2, v7")
    a("v_xor_b32 v233, v233, v234")
    a("v_mul_u32_u24 v7, 3584, v7")
    a("v_lshl_add_u32 v7, v233, 4, v7")
    a("s_mul_i32 s46, s49, %d" % (4 * 3584))
    a("s_lshl_b32 s47, s60, 8")
    a("s_add_u32 s46, s46, s47")
    a("s_sub_u32 s46, s46, %d" % (16 * 3584))
    a("s_lshl_b32 s47, s49, 10")
    NLOW = 2 * cfg.r1n
    def w1dma(ks):
        def f():
            a("s_add_u32 m0, s47, %d" % (ks * 4096))
            if ks == NLOW: a("s_add_u32 s46, s46, %d" % ((NLOW + 1) * 16 * 3584))
            elif ks == 0: a("s_sub_u32 s46, s46, %d" % (27 * 16 * 3584))
            else: a("s_add_u32 s46, s46, %d" % (16 * 3584))
            a.vm("buffer_load_dwordx4 v7, s[4:7], s46 offen lds", "w1")
        return f
    a("ds_write_b128 v232, v[236:239]")
    for c in range(2):
        w0 = 200 + 8 * c; b = 140 + 12 * c
        base = c * HC_CH
        a("ds_write_b128 v244, v[%d:%d] offset:%d" % (b, b + 3, base + 0 * 4160))
        a("ds_write_b128 v244, v[%d:%d] offset:%d" % (b + 4, b + 7, base + 1 * 4160))
        a("ds_write_b128 v244, v[%d:%d] offset:%d" % (b + 8, b + 11, base + 2 * 4160))
        a("ds_write_b128 v244, v[%d:%d] offset:%d" % (w0 + 2, w0 + 5, base + 3 * 4160))
    a("ds_write_b16 v243, v224")
    a("v_lshl_add_u32 v236, v10, 2, v11")
    a("v_bfe_u32 v237, v10, 1, 2")
    a("v_xor_b32 v236, v236, v237")
    a("v_lshlrev_b32 v236, 4, v236")
    a("s_lshl_b32 s36, s49, 13")
    a("s_add_u32 s36, s36, %d" % PB)
    a("v_add_u32 v236, s36, v236")
    a("v_and_b32 v238, 31, v14")
    a("v_lshlrev_b32 v237, 1, v238")
    a("v_bfe_u32 v238, v238, 2, 2")
    a("v_xor_b32 v237, v237, v238")
    a("v_lshlrev_b32 v237, 4, v237")
    a("v_lshrrev_b32 v238, 5, v14")
    a("v_lshl_add_u32 v237, v238, 10, v237")
    a("v_lshl_add_u32 v237, v15, 14, v237")
    a("v_add_u32 v237, %d, v237" % PB)
    a("v_xor_b32 v238, 16, v237")
    a("v_add_u32 v239, 4096, v9")
    a("s_mov_b32 s96, 0x%x" % WS_STA)
    a("s_mov_b32 s97, 0x%x" % WS_STB)
    a("s_add_u32 s98, s54, 0x%x" % WS_XT)
    a("s_add_u32 s99, s54, 0x%x" % WS_HT)
    a("v_add_u32 v234, s45, v245")
    a("v_xor_b32 v235, 64, v234")
    def w2tr_lines(abase, nks, b0, b1):
        out = []
        for ks in range(nks):
            for dt in range(2):
                r = abase + (ks * 2 + dt) * 4
                b = b0 if dt == 0 else b1
                out.append("ds_read_b64_tr_b16 a[%d:%d], v%d offset:%d" % (r, r + 1, b, ks * 2048))
                out.append("ds_read_b64_tr_b16 a[%d:%d], v%d offset:%d" % (r + 2, r + 3, b, ks * 2048 + 1024))
        return out
    S(a, "prepoll")
    UL = 168
    a("v_lshlrev_b32 v240, 4, v0")
    a("v_add_u32 v241, 4096, v240")
    a("s_mul_i32 s36, s58, %d" % (2 * RS2))
    a("s_add_u32 s36, s36, 0x%x" % WS_UL)
    a("s_add_u32 s37, s36, %d" % RS2)
    a("v_lshlrev_b32 v246, 3, v0")
    a("v_add_u32 v246, %d, v246" % UR)
    def ul_loads(tracked):
        for i in range(4):
            l = "buffer_load_dwordx4 v[%d:%d], v%d, %s, s%d offen sc0 sc1" % (UL + 4 * i, UL + 4 * i + 3, 240 + (i & 1), WS, 36 + (i >> 1))
            if tracked: a.vm(l, "ul")
            else: a(l)
    ul_loads(True)
    for i in range(2 * cfg.r1n): w2dma(45, i, "w2r1")()
    if cfg.wpre:
        a("s_mul_i32 s52, s3, 56")
        a("s_mul_i32 s53, s49, 14")
        a("s_add_u32 s52, s52, s53")
        a("v_min_u32 v226, 13, v2")
        a("v_add_u32 v226, s52, v226")
        a("v_lshlrev_b32 v226, 7, v226")
        a.vm("buffer_load_dword v228, v226, s[40:43], 0 offen", "pre")
        a.vm("buffer_load_dword v229, v226, s[4:7], 0 offen", "pre")
    lp = a.label("ULP"); chk = a.label("ULC"); done = a.label("ULD")
    a("s_mov_b32 s51, 0")
    a.vmwait("ul")
    a("s_branch %s" % chk)
    a(lp + ":")
    ul_loads(False)
    a("s_waitcnt vmcnt(0)")
    a(chk + ":")
    for i in range(4):
        a("v_xor_b32 v%d, s%d, v%d" % (184 + 2 * i, S_T, UL + 4 * i + 1))
        a("v_xor_b32 v%d, s%d, v%d" % (185 + 2 * i, S_T, UL + 4 * i + 3))
    a("v_or3_b32 v184, v184, v185, v186")
    a("v_or3_b32 v187, v187, v188, v189")
    a("v_or3_b32 v184, v184, v190, v191")
    a("v_or_b32 v184, v184, v187")
    a("v_cmp_ne_u32 vcc, 0, v184")
    a("s_nop 4")
    a("s_cmp_eq_u64 vcc, 0")
    a("s_cbranch_scc1 %s" % done)
    a("s_add_u32 s51, s51, 1")
    a("s_cmp_lt_u32 s51, 0x40000")
    a("s_cbranch_scc1 %s" % lp)
    a(done + ":")
    S(a, "B1")
    for i in range(4):
        a("v_mov_b32 v%d, v%d" % (UL + 4 * i + 1, UL + 4 * i + 2))
    for i in range(4):
        a("ds_write_b64 v246, v[%d:%d] offset:%d" % (UL + 4 * i, UL + 4 * i + 1, (i >> 1) * UR_CH + (i & 1) * 2048))
    XR = 168; SA = 176
    FR = 16
    w1q = [w1dma(ks) for ks in list(range(NLOW, 28)) + list(range(NLOW))]
    a("s_mov_b32 s53, 0x%x" % WS_FLAG)
    a("s_lshr_b32 s52, s58, 5")
    a("s_lshl_b32 s52, s52, 5")
    a("s_add_u32 s52, s52, %d" % (F1X_IDX - 32))
    a("v_mov_b32 v12, s52")
    a("v_mov_b32 v241, %d" % FS_IDX)
    a("v_cmp_gt_u32 vcc, 32, v2")
    a("v_cndmask_b32 v12, v12, v241, vcc")
    a("v_add_u32 v12, v12, v2")
    a("v_lshlrev_b32 v12, 6, v12")
    a.vmwait("p1x")
    a("s_waitcnt lgkmcnt(0)")
    a("s_barrier")
    a("s_lshl_b32 s52, s57, 5")
    a("s_add_u32 s52, s52, s56")
    a("s_add_u32 s52, s52, %d" % F1X_IDX)
    publish(a, 52)
    S(a, "URin")
    AM = {}
    for ks in range(cfg.r1n): AM[ks] = 128 + 8 * ks
    segs = [[0, 16], [16 + cfg.r1n, 32]]
    for k0, n in ((cfg.r1n, 16 - cfg.r1n), (16, 4), (22, 4), (20, 2), (26, 2)):
        for sg in segs:
            if sg[1] - sg[0] >= n:
                for i in range(n): AM[k0 + i] = 8 * (sg[0] + i)
                sg[0] += n
                break
        else:
            raise RuntimeError("no room for W2 group")
    AB = [0, 32]; BB = [64, 96]
    def readA(st, rho, aa):
        r = AB[st] + 4 * aa
        off = 64 * rho + 512 * aa
        return ["ds_read_b64 a[%d:%d], v%d offset:%d" % (r, r + 1, A_, off),
                "ds_read_b64 a[%d:%d], v%d offset:%d" % (r + 2, r + 3, A_, off + 8)]
    def readB(st, rho, b):
        r = BB[st] + 4 * b
        return ["ds_read_b128 a[%d:%d], v%d offset:%d" % (r, r + 3, B_, 64 * rho + 512 * (7 - b))]
    def mfma(t, areg, breg, av=False):
        c = "0" if av else "v[%d:%d]" % (ACC + 4 * t, ACC + 4 * t + 3)
        return "v_mfma_f32_16x16x32_bf16 v[%d:%d], %s[%d:%d], a[%d:%d], %s" % (ACC + 4 * t, ACC + 4 * t + 3, "v" if av else "a", areg, areg + 3, breg, breg + 3, c)
    def fs_issue():
        a.vm("buffer_load_dword v242, v12, %s, s53 offen sc0 sc1" % WS, "fs")
    def x_load(g):
        def f():
            a.vm("buffer_load_dwordx4 v[%d:%d], v13, %s, s98 offen offset:%d" % (XR + 4 * g, XR + 4 * g + 3, WS, 2048 * g), "ep")
        return f
    def st_load(g, hlf, which):
        def f():
            reg = SA + 16 * which + 8 * g + 4 * hlf
            a.vm("buffer_load_dwordx4 v[%d:%d], v%d, %s, s%d offen offset:%d" % (reg, reg + 3, 9 if g == 0 else 239, WS, 96 + which, 16 * hlf), "ep")
        return f
    def cm_load():
        a("s_lshl_b32 s36, s60, 2")
        a("s_add_u32 s36, s36, s49")
        a("s_lshl_b32 s36, s36, 7")
        a("s_add_u32 s36, s36, 0x%x" % WS_CM)
        a("v_and_b32 v12, 31, v2")
        a("v_lshlrev_b32 v12, 2, v12")
        a.vm("buffer_load_dword v3, v12, %s, s36 offen" % WS, "cm")
    def fc_issue():
        a("v_and_b32 v12, 31, v2")
        a("v_add_u32 v12, %d, v12" % FC_IDX)
        a("v_lshlrev_b32 v12, 6, v12")
        a.vm("buffer_load_dword v242, v12, %s, s53 offen sc0 sc1" % WS, "fc")
    if cfg.xp == 1: w1q_all = list(w1q); w1q = w1q[:1] + w1q[-1:]
    nhi = 28 - NLOW
    r1rd = [(lambda l: (lambda: a(l)))(l) for l in w2tr_lines(128, cfg.r1n, 234, 235)]
    sides = {0: w1q[:nhi // 2],
             1: [lambda: a.vmwait("w2r1")] + r1rd + w1q[nhi // 2:nhi],
             2: [fs_issue] + w1q[nhi:],
             3: [x_load(0), x_load(1)] + [st_load(g, h, w) for g in range(2) for h in range(2) for w in range(2)] + [fc_issue]}
    for b in range(8):
        for l in readB(0, 0, b): a(l)
    for aa in range(8):
        for l in readA(0, 0, aa): a(l)
    for rho in range(4):
        st = rho & 1
        nxt = []
        if rho < 3:
            for b in range(8): nxt += readB(1 - st, rho + 1, b)
            for aa in range(8): nxt += readA(1 - st, rho + 1, aa)
        ms = []
        if rho == 0:
            for t in range(8): ms.append((mfma(t, AD, BB[st] + 4 * t, True), None))
        for aa in range(8):
            for t in range(aa, 8):
                ms.append((mfma(t, AB[st] + 4 * aa, BB[st] + 4 * (t - aa)), aa))
        a("s_waitcnt lgkmcnt(%d)" % (15 if rho == 0 else 0))
        S(a, "rho%d" % rho)
        if rho == 2: a("s_barrier")
        if rho == 3:
            poll_late(a, 12, 53, 242, "fs")
        side = list(sides[rho]); step = max(1, len(ms) // (len(side) + 1))
        ni = 0; waited = -1
        for i, (m, aa) in enumerate(ms):
            if rho == 0 and aa is not None and aa > waited and aa <= 1:
                a("s_waitcnt lgkmcnt(%d)" % (14 if aa == 0 else 0))
                waited = aa
            a(m)
            if (rho > 0 or waited == 1) and ni < len(nxt):
                a(nxt[ni]); ni += 1
            if (i + 1) % step == 0 and side:
                side.pop(0)()
        while ni < len(nxt):
            a(nxt[ni]); ni += 1
        while side: side.pop(0)()
    S(a, "conv")
    a("s_lshl_b32 s52, s49, 6")
    a("v_xor_b32 v247, s52, v5")
    a("v_add_u32 v248, 0x10000, v247")
    a.vmwait("w1")
    a("s_barrier")
    for ks in range(28):
        b = 247 if ks < 16 else 248
        a("ds_read_b64_tr_b16 v[%d:%d], v%d offset:%d" % (FR + 4 * ks, FR + 4 * ks + 1, b, (ks & 15) * 4096))
        a("ds_read_b64_tr_b16 v[%d:%d], v%d offset:%d" % (FR + 4 * ks + 2, FR + 4 * ks + 3, b, (ks & 15) * 4096 + 2048))
    for t in range(8):
        a("ds_write_b128 v236, v[%d:%d] offset:%d" % (ACC + 4 * t, ACC + 4 * t + 3, 1024 * t))
    S(a, "pw")
    a.vmwait("ep")
    X = 224
    Z = 208
    a("s_waitcnt lgkmcnt(0)")
    a("s_barrier")
    S(a, "pbar")
    ZR = [136, 152]
    for g in range(2):
        for hf in range(2):
            a("ds_read_b128 v[%d:%d], v237 offset:%d" % (ZR[g] + 8 * hf, ZR[g] + 8 * hf + 3, hf * 8192 + g * 4096))
            a("ds_read_b128 v[%d:%d], v238 offset:%d" % (ZR[g] + 8 * hf + 4, ZR[g] + 8 * hf + 7, hf * 8192 + g * 4096))
    for g in range(2):
        Xg = 208 + 16 * g
        for i in range(4):
            a("v_lshlrev_b32 v%d, 16, v%d" % (Xg + 2 * i, XR + 4 * g + i))
            a("v_and_b32 v%d, 0xffff0000, v%d" % (Xg + 2 * i + 1, XR + 4 * g + i))
        for i in range(4):
            A2 = SA + 8 * g + 2 * i; B2 = SA + 16 + 8 * g + 2 * i
            a("v_pk_fma_f32 v[%d:%d], v[%d:%d], v[%d:%d], v[%d:%d]" % (Xg + 8 + 2 * i, Xg + 9 + 2 * i, Xg + 2 * i, Xg + 2 * i + 1, A2, A2 + 1, B2, B2 + 1))
    for g in range(2):
        Xg = 208 + 16 * g
        a("s_waitcnt lgkmcnt(%d)" % (4 if g == 0 else 0))
        z = ZR[g]
        for i in range(4):
            a("v_pk_add_f32 v[%d:%d], v[%d:%d], v[%d:%d]" % (z + 2 * i, z + 2 * i + 1, z + 2 * i, z + 2 * i + 1, z + 8 + 2 * i, z + 9 + 2 * i))
        for i in range(4):
            a("v_pk_fma_f32 v[%d:%d], v[%d:%d], v[%d:%d], v[%d:%d]" % (z + 2 * i, z + 2 * i + 1, Xg + 8 + 2 * i, Xg + 9 + 2 * i, z + 2 * i, z + 2 * i + 1, Xg + 2 * i, Xg + 2 * i + 1))
        for i in range(4):
            a("v_cvt_pk_bf16_f32 v%d, v%d, v%d" % (z + 8 + i, z + 2 * i, z + 2 * i + 1))
        a.vm("buffer_store_dwordx4 v[%d:%d], v13, %s, s99 offen offset:%d %s" % (z + 8, z + 11, WS, 2048 * g, SC), "p2st")
    S(a, "p2st")
    poll_late(a, 12, 53, 242, "fc")
    cm_load()
    r2n = 16 - cfg.r1n
    a("s_mul_i32 s45, s49, %d" % (r2n * 2048))
    r2q = [w2dma(45, i, "w2r2") for i in range(2 * r2n)]
    for _ in range(cfg.r2pre): r2q.pop(0)()
    def f2_addr():
        a("v_lshlrev_b32 v12, 6, v2")
        a("v_add_u32 v13, %d, v12" % (64 * 64))
        a("v_add_u32 v14, %d, v12" % (128 * 64))
        a("v_min_u32 v15, 31, v2")
        a("v_lshlrev_b32 v15, 6, v15")
        a("v_add_u32 v15, %d, v15" % (192 * 64))
    def f2_issue(soff):
        lab = a.label("FI")
        a("s_cmp_lg_u32 s49, 0")
        a("s_cbranch_scc1 %s" % lab)
        for i, v in enumerate((12, 13, 14, 15)):
            a("buffer_load_dword v%d, v%d, %s, s%d offen sc0 sc1" % (246 + i, v, WS, soff))
        a(lab + ":")
    def f2_check(soff):
        lp = a.label("POLL"); done = a.label("PDONE"); chk = a.label("PCHK")
        a("s_cmp_lg_u32 s49, 0")
        a("s_cbranch_scc1 %s" % done)
        a("s_mov_b32 s51, 0")
        a("s_branch %s" % chk)
        a(lp + ":")
        for i, v in enumerate((12, 13, 14, 15)):
            a("buffer_load_dword v%d, v%d, %s, s%d offen sc0 sc1" % (246 + i, v, WS, soff))
        a(chk + ":")
        a("s_waitcnt vmcnt(0)")
        for i in range(4): a("v_xor_b32 v%d, s%d, v%d" % (246 + i, S_T, 246 + i))
        for i in range(1, 4): a("v_or_b32 v246, v246, v%d" % (246 + i))
        a("v_cmp_ne_u32 vcc, 0, v246")
        a("s_nop 4")
        a("s_cmp_eq_u64 vcc, 0")
        a("s_cbranch_scc1 %s" % done)
        a("s_add_u32 s51, s51, 1")
        a("s_cmp_lt_u32 s51, 0x40000")
        a("s_cbranch_scc1 %s" % lp)
        a(done + ":")
    a("s_lshl_b32 s46, s49, 13")
    a("s_lshl_b32 s47, s49, 12")
    a("s_add_u32 s47, s47, %d" % YB)
    a("v_lshrrev_b32 v10, 3, v2")
    a("v_and_b32 v241, 7, v2")
    a("v_bfe_u32 v242, v2, 4, 1")
    a("v_lshlrev_b32 v242, 2, v242")
    a("v_xor_b32 v241, v241, v242")
    a("v_mul_u32_u24 v10, %d, v10" % RS)
    a("v_lshl_add_u32 v10, v241, 4, v10")
    a("s_mul_i32 s38, s49, %d" % (8 * RS))
    a("s_lshl_b32 s39, s59, 7")
    a("s_add_u32 s38, s38, s39")
    a("s_add_u32 s38, s38, 0x%x" % (WS_HT - 32 * RS))
    a("s_lshl_b32 s39, s49, 10")
    a.vmwait("p2st")
    a("s_waitcnt lgkmcnt(0)")
    a("s_barrier")
    a("s_add_u32 s52, s3, %d" % F2_IDX)
    publish(a, 52)
    S(a, "F2pub")
    if cfg.upto == 2:
        a("s_branch L_DONE")
    def hdma(half, i):
        def f():
            a("s_add_u32 m0, s39, %d" % ((HA, HB_)[half] + i * 4096))
            if half == 1 and i == 0: a("s_sub_u32 s38, s38, %d" % (13 * 32 * RS - 2048))
            else: a("s_add_u32 s38, s38, %d" % (32 * RS))
            a.vm("buffer_load_dwordx4 v10, %s, s38 offen lds" % WS, "h%d_%d" % (half, i))
        return f
    def w2round(tag):
        return [w2dma(46, i, tag) for i in range(8)] + [w2dma(47, i, tag) for i in range(4)]
    def w2round_reads(abaseX, abaseY):
        return w2tr_lines(abaseX, 4, 9, 7) + w2tr_lines(abaseY, 2, 11, 3)
    a("v_mov_b32 v128, 0x00003f80")
    a("v_mov_b32 v129, 0x3f800000")
    cen = []
    for g in range(28):
        for i in range(4):
            r = FR + 4 * g + i; t = 132 + 8 * (g & 1) + 2 * i
            cen.append("v_dot2_f32_bf16 v%d, v%d, v128, v3" % (t, r))
            cen.append("v_dot2_f32_bf16 v%d, v%d, v129, v3" % (t + 1, r))
        if g > 0:
            for i in range(4):
                r = FR + 4 * (g - 1) + i; t = 132 + 8 * ((g - 1) & 1) + 2 * i
                cen.append("v_cvt_pk_bf16_f32 v%d, v%d, v%d" % (r, t, t + 1))
    for i in range(4):
        cen.append("s_nop 0")
    for i in range(4):
        r = FR + 4 * 27 + i; t = 132 + 8 * (27 & 1) + 2 * i
        cen.append("v_cvt_pk_bf16_f32 v%d, v%d, v%d" % (r, t, t + 1))
    a.vmwait("cm")
    interleave(a, cen, r2q, 336 // (len(r2q) + 1) // 2)
    S(a, "cen")
    a("v_add_u32 v9, s46, v245")
    a("v_xor_b32 v7, 64, v9")
    a("v_add_u32 v11, s47, v245")
    a("v_xor_b32 v3, 64, v11")
    a("v_add_u32 v128, %d, v8" % HA)
    a("v_xor_b32 v129, 64, v128")
    a("v_add_u32 v130, %d, v8" % HB_)
    a("v_xor_b32 v131, 64, v130")
    a("v_add_u32 v247, s45, v245")
    a("v_xor_b32 v248, 64, v247")
    a.vmwait("w2r2")
    S(a, "w2a_in")
    for l in w2tr_lines(0, r2n, 247, 248): a(l)
    f2_addr()
    a("s_mov_b32 s53, 0x%x" % (WS_FLAG + F2_IDX * 64))
    a.lkall()
    S(a, "w2a_tr")
    poll(a, [12, 13, 14, 15], 53)
    S(a, "B2")
    for i in range(14): hdma(0, i)()
    hB = [hdma(1, i) for i in range(14)]
    for i in range(cfg.hpreB): hB.pop(0)()
    lab = a.label("EPO")
    a("s_or_b32 s52, s3, s49")
    a("s_cmp_lg_u32 s52, 0")
    a("s_cbranch_scc1 %s" % lab)
    a("s_mov_b32 s52, %d" % E_IDX)
    publish(a, 52)
    a(lab + ":")
    NB = 3
    HBUF = 200
    def hreads(ks, ps):
        out = []
        for i in range(2):
            r = HBUF + (ks % NB) * 8 + 4 * i
            vb = 128 + 2 * ps + i
            tag = "hr%d_%d_%d" % (ps, ks, i)
            out.append(("ds_read_b64_tr_b16 v[%d:%d], v%d offset:%d" % (r, r + 1, vb, ks * 2048), tag))
            out.append(("ds_read_b64_tr_b16 v[%d:%d], v%d offset:%d" % (r + 2, r + 3, vb, ks * 2048 + 1024), tag))
        return out
    ACCP = [136, 168]
    r3 = w2round("w2r3"); r4 = w2round("w2r4")
    sync1 = {0: 1, 4: 5, 12: 13}
    sync0 = {0: 0, 2: 2, 6: 6, 14: 13}
    for ps in range(2):
        acc = ACCP[ps]
        if ps == 0:
            a.vmwait("h0_%d" % sync0[0]); a("s_barrier")
            S(a, "h_in")
        if ps == 1:
            r3rd = w2round_reads(AM[16], AM[20])
            a.vmwait("h1_%d" % sync1[0]); a("s_barrier")
            S(a, "ps1s")
        for k0 in range(NB - 1):
            for l, t in hreads(k0, ps): a.lk(l, t)
        for ks in range(28):
            kn = ks + NB - 1
            nxt = []
            if kn < 28:
                if ps == 0 and kn in sync0 and kn > 0:
                    a.vmwait("h0_%d" % sync0[kn]); a("s_barrier")
                if ps == 1 and kn in sync1 and kn > 0:
                    a.vmwait("h1_%d" % sync1[kn]); a("s_barrier")
                nxt = hreads(kn, ps)
            if ps == 1 and ks == 1: a.vmwait("w2r3")
            if ps == 1 and ks == 10: a.lkneed("r3")
            for i in range(2):
                a.lkneed("hr%d_%d_%d" % (ps, ks, i))
                r = HBUF + (ks % NB) * 8 + 4 * i
                a("v_mfma_f32_32x32x16_bf16 v[%d:%d], v[%d:%d], v[%d:%d], %s" % (acc + 16 * i, acc + 16 * i + 15, FR + 4 * ks, FR + 4 * ks + 3, r, r + 3, "0" if ks == 0 else "v[%d:%d]" % (acc + 16 * i, acc + 16 * i + 15)))
                if nxt:
                    a.lk(*nxt[2 * i]); a.lk(*nxt[2 * i + 1])
                if ps == 1 and 1 <= ks < 9:
                    for _ in range(2 if ks % 2 else 1):
                        if r3rd: a.lk(r3rd.pop(0), "r3")
            if ps == 0:
                if hB: hB.pop(0)()
                elif r3: r3.pop(0)()
            if ps == 1 and 10 <= ks < 22: r4[ks - 10]()
            if ps == 1 and ks == cfg.pubA:
                a.vmwait("p3a")
                a("s_barrier")
                a("s_lshl_b32 s37, s59, 4")
                a("s_add_u32 s37, s37, s60")
                a("s_add_u32 s37, s37, %d" % F3_IDX)
                publish(a, 37)
        S(a, "ps%d" % ps)
        if ps == 0:
            while hB: hB.pop(0)()
            while r3: r3.pop(0)()
            a("s_lshl_b32 s43x, s60, 2" if False else "s_lshl_b32 s55, s60, 2")
            a("s_add_u32 s55, s55, s49")
            a("s_lshl_b32 s55, s55, 11")
            a("s_add_u32 s55, s55, 0x%x" % WS_H1F)
        for i in range(2):
            a("s_lshl_b32 s52, s59, 1")
            a("s_add_u32 s52, s52, %d" % (32 * ps + i))
            a("s_mul_i32 s52, s52, %d" % (112 * 1024))
            a("s_add_u32 s52, s52, s55")
            o = 224 + 8 * i
            for q in range(8):
                a("v_cvt_pk_bf16_f32 v%d, v%d, v%d" % (o + q, acc + 16 * i + 2 * q, acc + 16 * i + 2 * q + 1))
            for q in range(8):
                a("v_pk_max_i16 v%d, v%d, 0" % (o + q, o + q))
            a.vm("buffer_store_dwordx4 v[%d:%d], v4, %s, s52 offen %s" % (o, o + 3, WS, SC), "p3a" if ps == 0 else "p3st")
            a.vm("buffer_store_dwordx4 v[%d:%d], v4, %s, s52 offen offset:1024 %s" % (o + 4, o + 7, WS, SC), "p3a" if ps == 0 else "p3st")
        S(a, "ps%de" % ps)
    S(a, "P3mm")
    a("v_min_u32 v15, 13, v2")
    a("v_lshlrev_b32 v15, 6, v15")
    a("s_lshr_b32 s36, s61, 1")
    a("s_lshl_b32 s38, s36, 10")
    a("s_add_u32 s38, s38, 0x%x" % (WS_FLAG + F3_IDX * 64))
    a.vm("buffer_load_dword v14, v15, %s, s38 offen sc0 sc1" % WS, "f3a")
    a("s_and_b32 s52, s49, 1")
    a("s_lshl_b32 s52, s52, 6")
    a("v_xor_b32 v12, s52, v8")
    a("s_lshr_b32 s52, s49, 1")
    a("s_mul_i32 s52, s52, %d" % (HB_ - HA))
    a("s_lshl_b32 s53, s60, 12")
    a("s_add_u32 s52, s52, s53")
    a("s_add_u32 s52, s52, %d" % HA)
    a("v_add_u32 v12, s52, v12")
    for k in range(2):
        a("ds_read_b64_tr_b16 v[%d:%d], v12 offset:%d" % (200 + 4 * k, 201 + 4 * k, k * 2048))
        a("ds_read_b64_tr_b16 v[%d:%d], v12 offset:%d" % (202 + 4 * k, 203 + 4 * k, k * 2048 + 1024))
    a.vmwait("w2r4")
    for l in w2round_reads(AM[22], AM[26]): a(l)
    a.vmwait("p3st")
    a("s_waitcnt lgkmcnt(0)")
    a("s_barrier")
    a("s_lshl_b32 s50, s59, 4")
    a("s_add_u32 s50, s50, s60")
    a("s_add_u32 s37, s50, %d" % F3B_IDX)
    publish(a, 37)
    S(a, "F3pub")
    if cfg.upto == 3:
        a("s_branch L_DONE")
    RING = 30; RB = 80
    a("s_lshr_b32 s36, s61, 1")
    a("s_lshl_b32 s36, s36, 1")
    a("s_and_b32 s39, s61, 1")
    a("s_add_u32 s36, s36, s39")
    a("s_mul_i32 s39, s49, %d" % (28 * 1024))
    a("s_mul_i32 s37, s36, %d" % (112 * 1024))
    a("s_add_u32 s39, s39, s37")
    a("s_add_u32 s39, s39, 0x%x" % WS_H1F)
    def hload(j):
        st, ks = divmod(j, 28)
        r = RB + (j % RING) * 4
        if j == 28: a("s_add_u32 s39, s39, %d" % (32 * 112 * 1024 - 28 * 1024))
        a.vm("buffer_load_dwordx4 v[%d:%d], v4, %s, s39 offen offset:%d" % (r, r + 3, WS, (ks % 4) * 1024), "H%d" % j)
        if ks % 4 == 3: a("s_add_u32 s39, s39, 4096")
    poll_late(a, 15, 38, 14, "f3a")
    S(a, "B3")
    for j in range(cfg.Hpre): hload(j)
    S(a, "H_iss")
    a("v_mov_b32 v208, 0x3f803f80")
    for i in range(4): a("v_mov_b32 v%d, 0" % (210 + i))
    for i in range(8):
        a("v_dot2_f32_bf16 v%d, v%d, v208, v%d" % (210 + 2 * (i & 1), 200 + i, 210 + 2 * (i & 1)))
        a("v_dot2_f32_bf16 v%d, v%d, v%d, v%d" % (211 + 2 * (i & 1), 200 + i, 200 + i, 211 + 2 * (i & 1)))
    a("v_pk_add_f32 v[210:211], v[210:211], v[212:213]")
    a("v_mov_b32 v212, v210")
    a("v_mov_b32 v213, v211")
    a("v_permlane32_swap_b32 v210, v212")
    a("v_permlane32_swap_b32 v211, v213")
    a("v_pk_add_f32 v[210:211], v[210:211], v[212:213]")
    a("s_lshr_b32 s52, s49, 1")
    a("s_lshl_b32 s52, s52, 5")
    a("s_and_b32 s50, s49, 1")
    a("s_add_u32 s52, s52, s50")
    a("s_lshl_b32 s50, s59, 1")
    a("s_add_u32 s52, s52, s50")
    a("s_lshl_b32 s52, s52, 8")
    a("s_lshl_b32 s50, s60, 14")
    a("s_add_u32 s52, s52, s50")
    a("s_add_u32 s52, s52, 0x%x" % WS_ST2P)
    a("v_and_b32 v12, 31, v2")
    a("v_lshlrev_b32 v12, 3, v12")
    a("s_mov_b32 exec_hi, 0")
    a.vm("buffer_store_dwordx2 v[210:211], v12, %s, s52 offen %s" % (WS, SC), "st2p")
    a("s_mov_b64 exec, -1")
    a("v_lshrrev_b32 v12, 3, v2")
    a("v_and_b32 v13, 7, v2")
    a("v_bfe_u32 v10, v2, 4, 1")
    a("v_lshlrev_b32 v10, 2, v10")
    a("v_xor_b32 v13, v13, v10")
    a("v_mul_u32_u24 v12, %d, v12" % RS)
    a("v_lshrrev_b32 v10, 2, v13")
    a("v_lshl_add_u32 v12, v10, 11, v12")
    a("v_and_b32 v13, 3, v13")
    a("v_lshl_add_u32 v12, v13, 4, v12")
    a("s_lshl_b32 s45, s62, 6")
    a("s_lshl_b32 s46, s49, 4")
    a("s_add_u32 s45, s45, s46")
    a("s_mul_i32 s45, s45, %d" % RS)
    a("s_lshl_b32 s46, s36, 6")
    a("s_add_u32 s45, s45, s46")
    a("s_add_u32 s45, s45, 0x%x" % WS_HT)
    a("s_lshl_b32 s46, s49, 11")
    a("s_add_u32 s46, s46, %d" % HRES)
    def hres(i):
        a("s_add_u32 m0, s46, %d" % (i * 1024))
        a.vm("buffer_load_dwordx4 v12, %s, s45 offen lds" % WS, "hres")
        if i == 0: a("s_add_u32 s45, s45, %d" % (8 * RS))
    ACC4 = 16
    a("s_and_b32 s47, s49, 1")
    a("s_lshr_b32 s63, s49, 1")
    a("s_lshl_b32 s52, s47, 5")
    a("s_add_u32 s36, s36, s52")
    a("v_and_b32 v13, 31, v2")
    a("v_lshlrev_b32 v10, 3, v13")
    a("s_add_u32 s38, s38, %d" % ((F3B_IDX - F3_IDX) * 64))
    SP = 200
    def st2load(f):
        a.vm("buffer_load_dwordx2 v[%d:%d], v10, %s, s37 offen" % (SP + 2 * f, SP + 2 * f + 1, WS), "st2")
        if f != 13: a("s_add_u32 s37, s37, 16384")
    def red_write(dtp, st):
        lab = a.label("RW")
        t = 2 * dtp + st
        if dtp == 0:
            a("s_cmp_eq_u32 s47, %d" % st)
            a("s_cbranch_scc1 %s" % lab)
        a("s_lshr_b32 s52, s49, 1")
        a("s_xor_b32 s52, s52, %d" % dtp)
        a("s_lshl_b32 s52, s52, 1")
        a("s_add_u32 s52, s52, %d" % st)
        a("s_sub_u32 s53, s49, s52")
        a("s_and_b32 s53, s53, 3")
        a("s_mul_i32 s52, s52, 3")
        a("s_add_u32 s52, s52, s53")
        a("s_lshl_b32 s52, s52, 12")
        a("s_sub_u32 s52, s52, 4096")
        a("v_add_u32 v14, s52, v4")
        for q in range(4):
            a("ds_write_b128 v14, v[%d:%d] offset:%d" % (ACC4 + 16 * t + 4 * q, ACC4 + 16 * t + 4 * q + 3, q * 1024))
        a(lab + ":")
    RED = red_write
    issued = cfg.Hpre
    S(a, "w2b_tr")
    for j in range(56):
        st, ks = divmod(j, 28)
        if j == cfg.chkB - 6:
            a.vm("buffer_load_dword v14, v15, %s, s38 offen sc0 sc1" % WS, "f3b")
        if j == cfg.chkB:
            poll_late(a, 15, 38, 14, "f3b")
            S(a, "out_stX")
        a.vmwait("H%d" % j)
        S(a, "H%d" % {0: 0, 14: 7, 28: 14, 42: 21, 55: 27}.get(j, 99))
        r = RB + (j % RING) * 4
        ab = AM[ks]
        for dt in range(2):
            t = dt * 2 + st
            a("v_mfma_f32_32x32x16_bf16 v[%d:%d], a[%d:%d], v[%d:%d], %s" % (ACC4 + 16 * t, ACC4 + 16 * t + 15, ab + 4 * dt, ab + 4 * dt + 3, r, r + 3, "0" if ks == 0 else "v[%d:%d]" % (ACC4 + 16 * t, ACC4 + 16 * t + 15)))
            if issued < (56 if j >= cfg.chkB else 28) and issued < j + RING and (j >= cfg.chkB or dt == 0):
                hload(issued); issued += 1
        if j == 8:
            a.vmwait("st2p")
            a("s_barrier")
            a("s_lshl_b32 s37, s59, 4")
            a("s_add_u32 s37, s37, s60")
            a("s_add_u32 s37, s37, %d" % F3C_IDX)
            publish(a, 37)
        if j == 30:
            a("s_add_u32 s48x, s38, 0" if False else "s_add_u32 s43, s38, %d" % ((F3C_IDX - F3B_IDX) * 64))
            a.vm("buffer_load_dword v14, v15, %s, s43 offen sc0 sc1" % WS, "f3c")
        if j == 33:
            poll_late(a, 15, 43, 14, "f3c")
            a("s_lshl_b32 s37, s36, 8")
            a("s_add_u32 s37, s37, 0x%x" % WS_ST2P)
        if j in (30, 31): hres(j - 30)
        if j == 44: red_write(1, 0)
        if j == 47: red_write(0, 0)
        if 34 <= j < 41:
            st2load(2 * (j - 34)); st2load(2 * (j - 34) + 1)
        if j == 50:
            a.vmwait("st2")
            for f in range(1, 14):
                a("v_pk_add_f32 v[%d:%d], v[%d:%d], v[%d:%d]" % (SP, SP + 1, SP, SP + 1, SP + 2 * f, SP + 2 * f + 1))
            a("v_mul_f32 v%d, 0x3b124925, v%d" % (SP, SP))
            a("v_mul_f32 v%d, 0x3b124925, v%d" % (SP + 1, SP + 1))
            a("v_fma_f32 v%d, -v%d, v%d, v%d" % (SP + 1, SP, SP, SP + 1))
            a("v_max_f32 v%d, 0, v%d" % (SP + 1, SP + 1))
            a("v_add_f32 v%d, 0x3727c5ac, v%d" % (SP + 1, SP + 1))
            a("v_rsq_f32 v248, v%d" % (SP + 1))
    a("s_nop 9")
    red_write(1, 1)
    red_write(0, 1)
    labo = a.label("OWN"); labe = a.label("OWNE")
    a("s_cmp_eq_u32 s47, 0")
    a("s_cbranch_scc1 %s" % labo)
    for i in range(16): a("v_mov_b32 v%d, v%d" % (ACC4 + i, ACC4 + 16 + i))
    a(labo + ":")
    S(a, "red_w")
    a("s_lshl_b32 s52, s47, 6")
    a("v_xor_b32 v15, s52, v8")
    a("s_lshl_b32 s52, s63, 12")
    a("s_add_u32 s52, s52, %d" % HRES)
    a("v_add_u32 v15, s52, v15")
    a("s_mul_i32 s52, s49, %d" % (3 * 4096))
    a("v_add_u32 v14, s52, v4")
    srd(a, 40, 26, 27, NB_SD)
    a("v_mul_u32_u24 v7, 896, v13")
    a("v_lshrrev_b32 v9, 5, v2")
    a("v_lshl_add_u32 v7, v9, 4, v7")
    a("s_mul_i32 s52, s36, %d" % (32 * 896))
    a("s_lshl_b32 s53, s62, 1")
    a("s_add_u32 s53, s53, s63")
    a("s_lshl_b32 s53, s53, 6")
    a("s_add_u32 s52, s52, s53")
    a("s_waitcnt lgkmcnt(0)")
    a("s_barrier")
    S(a, "red_b")
    T = 96
    for j4 in range(4):
        a("ds_read_b64_tr_b16 v[%d:%d], v15 offset:%d" % (240 + 2 * j4, 241 + 2 * j4, j4 * 1024))
    for d in range(3):
        for q in range(4):
            a("ds_read_b128 v[%d:%d], v14 offset:%d" % (T + 16 * d + 4 * q, T + 16 * d + 4 * q + 3, d * 4096 + q * 1024))
    a("s_waitcnt lgkmcnt(12)")
    for dw in range(8):
        hx = 160 + 2 * dw
        a("v_lshlrev_b32 v%d, 16, v%d" % (hx, 240 + dw))
        a("v_and_b32 v%d, 0xffff0000, v%d" % (hx + 1, 240 + dw))
    a("s_waitcnt lgkmcnt(8)")
    for i in range(0, 16, 2):
        a("v_pk_add_f32 v[%d:%d], v[%d:%d], v[%d:%d]" % (ACC4 + i, ACC4 + i + 1, ACC4 + i, ACC4 + i + 1, T + i, T + i + 1))
    a("s_waitcnt lgkmcnt(0)")
    for i in range(0, 16, 2):
        a("v_pk_add_f32 v[%d:%d], v[%d:%d], v[%d:%d]" % (T + 16 + i, T + 17 + i, T + 16 + i, T + 17 + i, T + 32 + i, T + 33 + i))
    for i in range(0, 16, 2):
        a("v_pk_add_f32 v[%d:%d], v[%d:%d], v[%d:%d]" % (ACC4 + i, ACC4 + i + 1, ACC4 + i, ACC4 + i + 1, T + 16 + i, T + 17 + i))
    S(a, "red_r")
    for dw in range(8):
        hx = 160 + 2 * dw
        a("v_pk_fma_f32 v[%d:%d], v[%d:%d], v[248:249], v[%d:%d] op_sel_hi:[1,0,1]" % (hx, hx + 1, ACC4 + 2 * dw, ACC4 + 2 * dw + 1, hx, hx + 1))
    for dw in range(8):
        hx = 160 + 2 * dw
        a("v_cvt_pk_bf16_f32 v%d, v%d, v%d" % (180 + dw, hx, hx + 1))
    for jp in range(2):
        A0 = 180 + 4 * jp
        a("v_permlane32_swap_b32 v%d, v%d" % (A0, A0 + 2))
        a("v_permlane32_swap_b32 v%d, v%d" % (A0 + 1, A0 + 3))
    ob = ["", " sc1", " sc0 sc1", " nt"][cfg.outsc]
    a("buffer_store_dwordx4 v[180:183], v7, s[40:43], s52 offen" + ob)
    a("buffer_store_dwordx4 v[184:187], v7, s[40:43], s52 offen offset:32" + ob)
    S(a, "out_st")
    a("L_DONE:")
    if common.STAMPS:
        fstamp_flush(a)
    a("L_END:")
    a("s_endpgm")
    gen_stats(a)
    a("L_CODE_END:")
    a("s_endpgm")
    return a.lines, dict(vgpr=256, sgpr=102, lds=LDS_TOTAL, grid=256, agpr=256)

def build(out, cfg=Cfg):
    lines, info = gen(cfg)
    lines = fix_hazards(lines, verbose=True)
    txt = ["; generated by a hand-written generator (gen/fused20.py)",
           "; @launch grid=(%d,1,1) block=(256,1,1) lds=%d" % (info["grid"], info["lds"]),
           '.amdgcn_target "amdgcn-amd-amdhsa--gfx950"', ".text"]
    txt += lines
    txt.append('.section .rodata,"a"')
    txt += kernel_desc(KN, info["vgpr"], info["sgpr"], accum=256, agpr=info["agpr"])
    open(out, "w").write("\n".join(txt) + "\n")

if __name__ == "__main__":
    import sys, os
    common.STAMPS = int(os.environ.get("STAMPS", "0"))
    out = sys.argv[1]
    for kv in sys.argv[2:]:
        k, v = kv.split("=")
        setattr(Cfg, k, int(v))
    build(out)
```

```python
from common import *
F3C_IDX = 1280
WS_UL = 0x1500000
RS2 = 8320
WS_SIZE = 0x1900000
RS = 4224
F2B_IDX = 1536
FC_IDX = 288
F1X_IDX = 1792
import common
from fused import fstamp_flush, publish, poll, token, KN, S_T, S_WAVE, WS
import fused

SC = "sc1"
R0 = 0
R1 = 114688
HC = R1; HC_CH = 4 * 4160; UR = HC + 2 * HC_CH; UR_CH = 4608
LDS_TOTAL = 163840
R2W = 12288
HA = 32768; HB_ = 90112; YB = 147456
HRES = 65536
PB = R1
WS_CM = 0x1330000
WS_ST2P = 0x1340000

class Cfg:
    f3cj = 46
    dbl = 2
    ln2j = 45
    r2pre = 8
    outsc = 0
    xp = 0
    pubfirst = 1
    lateq = 1
    hwait = 0
    oldpro = 1
    r1late = 0
    fsearly = 1
    r1n = 4
    b1sleep = 0
    w1pf = 0
    hpreB = 2
    chk2 = 14
    hw2 = 0
    tlb = 0
    cpre = 1
    slp = 0
    pubA = 16
    chkB = 18
    w1pre = 4
    sset = 0
    upto = 4
    wpre = 1
    hpre = 16
    Hpre = 14

SETS = {
 0: ["start","ldiss","k_in","p1st","F1pub","prepoll","B1","URin","conv","p2st","F2pub","B2","h_in","P3mm","F3pub","B3"],
 1: ["start","B3","H_iss","H0","H7","H14","H21","H27","red_w","red_b","red_r","out_st", "F3pub", "w2b_iss", "w2b_in", "w2b_tr"],
 3: ["start"],
 6: ["start","F3pub","J0","J8","J16","J18","J22","J26","J30","J34","J38","J42","J46","J50","J55","red_w"],
 4: ["start","karg","p1iss","ldiss","k_in","v_in","q_in","p1lds","p1st","drain","F1pub","hcw","prepoll","B1","URin","conv"],
 2: ["start","URin","conv","p2st","F2pub","cen","w2a_tr","B2","h_in","ps0","ps0e","ps1s","ps1","ps1e","F3pub","B3"],
 5: ["start","URin","rho0","rho1","rho2","rho3","conv","pw","pbar","pz","p2st","F2pub"],
}
def S(a, name):
    names = SETS[Cfg.sset]
    if name in names: stamp(a, names.index(name))

def poll_late(a, vaddr, soff_sgpr, reg, tag):
    lp = a.label("POLL"); done = a.label("PDONE")
    a.vmwait(tag)
    a("v_cmp_ne_u32 vcc, s%d, v%d" % (S_T, reg))
    a("s_nop 4")
    a("s_cmp_eq_u64 vcc, 0")
    a("s_cbranch_scc1 %s" % done)
    a("s_mov_b32 s51, 0")
    a(lp + ":")
    if Cfg.slp: a("s_sleep %d" % Cfg.slp)
    a("buffer_load_dword v%d, v%d, %s, s%d offen sc0 sc1" % (reg, vaddr, WS, soff_sgpr))
    a("s_waitcnt vmcnt(0)")
    a("v_cmp_ne_u32 vcc, s%d, v%d" % (S_T, reg))
    a("s_nop 4")
    a("s_cmp_eq_u64 vcc, 0")
    a("s_cbranch_scc1 %s" % done)
    a("s_add_u32 s51, s51, 1")
    a("s_cmp_lt_u32 s51, 0x40000")
    a("s_cbranch_scc1 %s" % lp)
    a(done + ":")

def interleave(a, main, side, every):
    si = 0
    for i, l in enumerate(main):
        a(l)
        if (i + 1) % every == 0 and si < len(side):
            side[si](); si += 1
    while si < len(side):
        side[si](); si += 1

def gen_stats(a):
    a("L_STATS0:")
    a("s_load_dword s48, s[30:31], s50")
    srd(a, 32, 30, 31, WS_SIZE)
    a("L_STATS:")
    if Cfg.hwait:
        a("s_waitcnt lgkmcnt(0)")
        a("s_mov_b32 s54, s48")
        a("s_mul_i32 s54, s54, 1664525")
        a("s_add_u32 s54, s54, 1013904223")
        a("s_lshl_b32 s53, s2, 6")
        a("s_add_u32 s53, s53, 0x%x" % WS_FLAG)
        a("v_mov_b32 v20, 0")
        a("s_mov_b32 s51, 0")
        a("L_HW:")
        a("buffer_load_dword v21, v20, %s, s53 offen sc0 sc1" % WS)
        a("s_waitcnt vmcnt(0)")
        a("v_cmp_ne_u32 vcc, s54, v21")
        a("s_nop 4")
        a("s_cmp_eq_u64 vcc, 0")
        a("s_cbranch_scc1 L_HWD")
        a("s_add_u32 s51, s51, 1")
        a("s_cmp_lt_u32 s51, 0x40000")
        a("s_cbranch_scc1 L_HW")
        a("L_HWD:")
    a("v_and_b32 v1, 7, v0")
    a("v_lshrrev_b32 v2, 3, v0")
    a("s_mul_i32 s52, s2, %d" % (64 * 896))
    a("v_lshrrev_b32 v3, 3, v2")
    a("v_and_b32 v4, 7, v2")
    a("v_lshl_add_u32 v5, v3, 4, v4")
    a("v_mul_u32_u24 v6, 896, v5")
    a("v_lshl_add_u32 v6, v1, 4, v6")
    a("v_add_u32 v6, s52, v6")
    a("v_add_u32 v7, %d, v6" % (8 * 896))
    srd(a, 36, 8, 9, NB_SD)
    for p in range(2):
        for i in range(7):
            r = 16 + (p * 7 + i) * 4
            a("buffer_load_dwordx4 v[%d:%d], v%d, s[36:39], 0 offen offset:%d" % (r, r + 3, 6 + p, i * 128))
    if Cfg.hw2:
        srd(a, 44, 24, 25, D * F * 2)
        a("s_mul_i32 s52, s2, 392")
        a("v_add_u32 v11, s52, v0")
        a("v_lshlrev_b32 v11, 7, v11")
        a("buffer_load_dword v12, v11, s[44:47], 0 offen")
        a("v_min_u32 v13, 135, v0")
        a("v_add_u32 v13, s52, v13")
        a("v_lshlrev_b32 v13, 7, v13")
        a("buffer_load_dword v14, v13, s[44:47], 0 offen offset:0" if False else "v_add_u32 v13, %d, v13" % (256 * 128))
        a("buffer_load_dword v14, v13, s[44:47], 0 offen")
    NX = 2 if Cfg.hw2 else 0
    a("v_mov_b32 v8, 0x3f803f80")
    for r in range(80, 88): a("v_mov_b32 v%d, 0" % r)
    for p in range(2):
        for i in range(7):
            a("s_waitcnt vmcnt(%d)" % (13 - (p * 7 + i)))
            for c in range(4):
                r = 16 + (p * 7 + i) * 4 + c
                o = 80 + 4 * p + 2 * (c & 1)
                a("v_dot2_f32_bf16 v%d, v%d, v8, v%d" % (o, r, o))
                a("v_dot2_f32_bf16 v%d, v%d, v%d, v%d" % (o + 1, r, r, o + 1))
    for p in range(2):
        a("v_add_f32 v%d, v%d, v%d" % (80 + 4 * p, 80 + 4 * p, 82 + 4 * p))
        a("v_add_f32 v%d, v%d, v%d" % (81 + 4 * p, 81 + 4 * p, 83 + 4 * p))
    for mod in ("quad_perm:[1,0,3,2]", "quad_perm:[2,3,0,1]", "row_half_mirror"):
        for r in (80, 81, 84, 85):
            a("v_add_f32_dpp v%d, v%d, v%d %s row_mask:0xf bank_mask:0xf" % (r, r, r, mod))
    for p in range(2):
        s_, q_ = 80 + 4 * p, 81 + 4 * p
        a("v_mul_f32 v%d, 0x3b124925, v%d" % (s_, s_))
        a("v_mul_f32 v%d, 0x3b124925, v%d" % (q_, q_))
        a("v_fma_f32 v%d, -v%d, v%d, v%d" % (q_, s_, s_, q_))
        a("v_max_f32 v%d, 0, v%d" % (q_, q_))
        a("v_add_f32 v%d, 0x3727c5ac, v%d" % (q_, q_))
        a("v_rsq_f32 v%d, v%d" % (88 + 2 * p, q_))
        a("v_mul_f32 v%d, v%d, v%d" % (89 + 2 * p, s_, 88 + 2 * p))
        a("v_sub_f32 v%d, 0, v%d" % (89 + 2 * p, 89 + 2 * p))
    a("s_lshl_b32 s52, s2, 8")
    a("s_add_u32 s52, s52, 0x%x" % WS_STA)
    a("s_add_u32 s53, s52, 8192")
    a("v_lshlrev_b32 v9, 2, v5")
    a("v_cmp_eq_u32 vcc, 0, v1")
    a("s_and_saveexec_b64 s[54:55], vcc")
    a("buffer_store_dword v88, v9, %s, s52 offen %s" % (WS, SC))
    a("buffer_store_dword v89, v9, %s, s53 offen %s" % (WS, SC))
    a("buffer_store_dword v90, v9, %s, s52 offen offset:32 %s" % (WS, SC))
    a("buffer_store_dword v91, v9, %s, s53 offen offset:32 %s" % (WS, SC))
    a("s_mov_b64 exec, s[54:55]")
    srd(a, 40, 22, 23, D * F * 2)
    a("v_mul_u32_u24 v10, 3584, v2")
    a("v_lshl_add_u32 v10, v1, 4, v10")
    a("s_lshl_b32 s52, s2, 7")
    a("s_cmp_lt_u32 s2, 28")
    a("s_cselect_b32 s52, s52, 0x40000000")
    for i in range(14):
        a("buffer_load_dwordx4 v[%d:%d], v10, s[40:43], s52 offen" % (100 + 4 * i, 103 + 4 * i))
        if i != 13: a("s_add_u32 s52, s52, %d" % (32 * 3584))
    a("s_waitcnt vmcnt(14) lgkmcnt(0)")
    token(a)
    a("s_barrier")
    a("s_add_u32 s52, s2, %d" % FS_IDX)
    publish(a, 52)
    a("s_waitcnt vmcnt(0)")
    a("v_mov_b32 v8, 0x00003f80")
    a("v_mov_b32 v9, 0x3f800000")
    for r in range(16, 24): a("v_mov_b32 v%d, 0" % r)
    for i in range(14):
        for c in range(4):
            a("v_dot2_f32_bf16 v%d, v%d, v8, v%d" % (16 + 2 * c, 100 + 4 * i + c, 16 + 2 * c))
            a("v_dot2_f32_bf16 v%d, v%d, v9, v%d" % (17 + 2 * c, 100 + 4 * i + c, 17 + 2 * c))
    a("v_lshlrev_b32 v24, 8, v2")
    a("v_lshl_add_u32 v24, v1, 5, v24")
    a("ds_write_b128 v24, v[16:19]")
    a("ds_write_b128 v24, v[20:23] offset:16")
    a("v_and_b32 v25, 63, v0")
    a("v_lshrrev_b32 v26, 6, v0")
    a("v_lshlrev_b32 v27, 11, v26")
    a("v_lshl_add_u32 v27, v25, 2, v27")
    a("s_waitcnt lgkmcnt(0)")
    a("s_barrier")
    for i in range(8):
        a("ds_read_b32 v%d, v27 offset:%d" % (28 + i, i * 256))
    a("s_waitcnt lgkmcnt(0)")
    for i in range(1, 8):
        a("v_add_f32 v28, v28, v%d" % (28 + i))
    a("v_lshlrev_b32 v27, 8, v26")
    a("v_lshl_add_u32 v27, v25, 2, v27")
    a("ds_write_b32 v27, v28 offset:8192")
    a("v_lshlrev_b32 v27, 2, v25")
    a("s_waitcnt lgkmcnt(0)")
    a("s_barrier")
    for i in range(4):
        a("ds_read_b32 v%d, v27 offset:%d" % (28 + i, 8192 + i * 256))
    a("s_waitcnt lgkmcnt(0)")
    a("v_add_f32 v28, v28, v29")
    a("v_add_f32 v30, v30, v31")
    a("v_add_f32 v28, v28, v30")
    a("v_mul_f32 v28, 0xbb124925, v28")
    lab = a.label("NOCM")
    a("s_cmp_ge_u32 s2, 28")
    a("s_cbranch_scc1 %s" % lab)
    a("s_cmp_lg_u32 s49, 0")
    a("s_cbranch_scc1 %s" % lab)
    a("s_lshl_b32 s52, s2, 8")
    a("s_add_u32 s52, s52, 0x%x" % WS_CM)
    a("buffer_store_dword v28, v27, %s, s52 offen %s" % (WS, SC))
    a(lab + ":")
    a("s_waitcnt vmcnt(0) lgkmcnt(0)")
    a("s_barrier")
    a("s_add_u32 s52, s2, %d" % FC_IDX)
    publish(a, 52)
    S(a, "B3")
    fstamp_flush(a)
    a("s_endpgm")

def gen(cfg=Cfg):
    a = Asm()
    for l in kernel_header(KN): a(l)
    a("s_load_dwordx16 s[8:23], s[0:1], 0")
    a("s_load_dwordx8 s[24:31], s[0:1], 64")
    S(a, "start")
    a("s_cmp_ge_u32 s2, 256")
    a("s_cbranch_scc1 L_END")
    a("v_lshrrev_b32 v1, 6, v0")
    a("v_and_b32 v2, 63, v0")
    a("v_readfirstlane_b32 s49, v1")
    a("s_mov_b32 s50, 0x%x" % (WS_FLAG + E_IDX * 64))
    a("s_sub_u32 s3, s2, 32")
    a("s_mul_i32 s56, s3, 9363")
    a("s_lshr_b32 s56, s56, 16")
    a("s_mul_i32 s57, s56, 7")
    a("s_sub_u32 s57, s3, s57")
    a("s_and_b32 s52, s3, 7")
    a("s_lshr_b32 s53, s3, 3")
    a("s_mul_i32 s58, s52, 28")
    a("s_add_u32 s58, s58, s53")
    a("s_lshr_b32 s59, s52, 1")
    a("s_lshl_b32 s59, s59, 2")
    a("s_and_b32 s54, s53, 3")
    a("s_add_u32 s59, s59, s54")
    a("s_and_b32 s60, s52, 1")
    a("s_mul_i32 s60, s60, 7")
    a("s_lshr_b32 s55, s53, 2")
    a("s_add_u32 s60, s60, s55")
    a("s_lshl_b32 s61, s52, 2")
    a("s_add_u32 s61, s61, s54")
    a("s_mov_b32 s62, s55")
    a("v_and_b32 v1, 7, v0")
    a("v_lshrrev_b32 v14, 3, v0")
    a("s_mul_i32 s52, s56, %d" % (64 * 896))
    a("s_lshl_b32 s53, s57, 7")
    a("s_add_u32 s52, s52, s53")
    a("v_mul_u32_u24 v8, %d, v14" % (2 * 896))
    a("v_lshl_add_u32 v8, v1, 4, v8")
    a("v_add_u32 v8, s52, v8")
    for j in range(5):
        d = (j - 3) * 896
        if d < 0: a("v_subrev_u32 v%d, %d, v8" % (3 + j, -d))
        else: a("v_add_u32 v%d, %d, v8" % (3 + j, d))
    a("s_lshl_b32 s53, s57, 9")
    a("v_lshl_add_u32 v9, v1, 6, s53")
    for r, n in ((36, NB_SD), (44, NB_SD), (40, 448 * 4 * 2), (4, NB_SD)):
        a("s_mov_b32 s%d, 0x%x" % (r + 2, n))
        a("s_mov_b32 s%d, 0x20000" % (r + 3))
    a("s_cmp_lt_u32 s2, 32")
    a("s_waitcnt lgkmcnt(0)")
    S(a, "karg")
    a("s_cbranch_scc1 L_STATS0")
    a("s_load_dword s48, s[30:31], s50")
    a("s_mov_b32 s36, s10")
    a("s_and_b32 s37, s11, 0xffff")
    for j in range(5):
        a.vm("buffer_load_dwordx4 v[%d:%d], v%d, s[36:39], 0 offen" % (16 + 4 * j, 19 + 4 * j, 3 + j), "k")
    a("s_mov_b32 s44, s12")
    a("s_and_b32 s45, s13, 0xffff")
    a.vm("buffer_load_dwordx4 v[36:39], v8, s[44:47], 0 offen", "v")
    a.vm("buffer_load_dwordx4 v[40:43], v8, s[44:47], 0 offen offset:896", "v")
    a("s_mov_b32 s40, s14")
    a("s_and_b32 s41, s15, 0xffff")
    for j in range(4):
        a.vm("buffer_load_dwordx4 v[%d:%d], v9, s[40:43], 0 offen offset:%d" % (52 + 4 * j, 55 + 4 * j, 16 * j), "sk")
    a("s_mov_b32 s4, s8")
    a("s_and_b32 s5, s9, 0xffff")
    W2V = [6]
    srd(a, 40, 24, 25, D * F * 2)
    a("v_lshrrev_b32 v246, 3, v2")
    a("v_and_b32 v247, 7, v2")
    a("v_bfe_u32 v248, v2, 4, 1")
    a("v_lshlrev_b32 v248, 2, v248")
    a("v_xor_b32 v247, v247, v248")
    a("v_mul_u32_u24 v246, 896, v246")
    a("v_lshl_add_u32 v6, v247, 4, v246")
    a("s_mul_i32 s44, s49, %d" % (448 * 896))
    a("s_lshl_b32 s45, s62, 7")
    a("s_add_u32 s44, s44, s45")
    a("s_sub_u32 s44, s44, %d" % (8 * 896))
    a("s_mul_i32 s45, s49, %d" % (cfg.r1n * 2048))
    def w2dma(base_sgpr, i, tag):
        def f():
            a("s_add_u32 m0, s%d, %d" % (base_sgpr, i * 1024))
            a("s_add_u32 s44, s44, %d" % (8 * 896))
            a.vm("buffer_load_dwordx4 v%d, s[40:43], s44 offen lds" % W2V[0], tag)
        return f
    def partB():
        a.vm("buffer_load_dwordx4 v[44:47], v8, s[4:7], 0 offen", "q")
        a.vm("buffer_load_dwordx4 v[48:51], v8, s[4:7], 0 offen offset:896", "q")
        S(a, "p1iss")
        srd(a, 32, 30, 31, WS_SIZE)
        srd(a, 36, 16, 17, NB_SD)
        a("v_lshlrev_b32 v232, 4, v0")
        a("s_lshl_b32 s96, s58, 13")
        a("s_add_u32 s97, s96, 4096")
        for c in range(2):
            r = 200 + 8 * c
            a.vm("buffer_load_dwordx4 v[%d:%d], v232, s[36:39], s%d offen" % (r, r + 3, 96 + c), "ssm")
            a.vm("buffer_load_dwordx2 v[%d:%d], v232, s[36:39], s%d offen offset:16" % (r + 4, r + 5, 96 + c), "ssm")
        a("v_and_b32 v233, 15, v2")
        a("v_lshrrev_b32 v234, 4, v2")
        a("v_add_u32 v233, v233, v234")
        a("v_subrev_u32 v233, 15, v233")
        a("v_lshlrev_b32 v234, 1, v233")
        a("v_mov_b32 v225, 0x40000000")
        a("v_cmp_gt_i32 vcc, 0, v233")
        a("v_cndmask_b32 v234, v234, v225, vcc")
        a("s_and_b32 s97, s49, 1")
        a("s_lshl_b32 s97, s97, 12")
        a("s_add_u32 s97, s97, s96")
        a.vm("buffer_load_ushort v224, v234, s[36:39], s97 offen", "ssm")
        a("s_lshl_b32 s96, s58, 2")
        a("s_load_dword s63, s[18:19], s96")
        if cfg.cpre:
            a("s_getpc_b64 s[98:99]")
            a("L_PC:")
            a("s_lshl_b32 s96, s49, 13")
            a("v_lshlrev_b32 v226, 7, v2")
            a("v_add_u32 v226, s96, v226")
            a("v_min_u32 v226, L_CODE_END-L_PC-4, v226")
            a.vm("global_load_dword v227, v226, s[98:99]", "pre")
    if not cfg.lateq: partB()
    S(a, "ldiss")
    a("v_sub_u32 v10, 31, v14")
    a("v_lshrrev_b32 v11, 2, v10")
    a("v_xor_b32 v11, v11, v1")
    a("v_lshlrev_b32 v11, 4, v11")
    a("v_and_b32 v10, 3, v10")
    a("v_lshl_add_u32 v11, v10, 2, v11")
    a("v_lshl_add_u32 v11, v1, 10, v11")
    a("v_add_u32 v11, %d, v11" % R1)
    a("v_lshrrev_b32 v12, 2, v14")
    a("v_xor_b32 v12, v12, v1")
    a("v_lshlrev_b32 v12, 4, v12")
    a("v_and_b32 v10, 3, v14")
    a("v_lshl_add_u32 v12, v10, 2, v12")
    a("v_lshl_add_u32 v12, v1, 10, v12")
    a("v_add_u32 v12, %d, v12" % (R1 + 8192))
    a("v_lshrrev_b32 v10, 3, v14")
    a("v_xor_b32 v15, v1, v10")
    a("v_lshlrev_b32 v15, 4, v15")
    a("v_lshl_add_u32 v15, v14, 7, v15")
    a("v_add_u32 v15, %d, v15" % R1)
    a("v_xor_b32 v3, 64, v15") if False else None
    a("v_mul_u32_u24 v13, %d, v14" % RS)
    a("v_lshl_add_u32 v13, v1, 4, v13")
    a("s_mul_i32 s52, s57, %d" % (64 * RS))
    a("s_lshl_b32 s53, s56, 7")
    a("s_add_u32 s51, s52, s53")
    a("s_add_u32 s51, s51, 0x%x" % WS_XT)
    a("v_lshrrev_b32 v240, 1, v1")
    a("v_xor_b32 v240, v240, v10")
    a("v_lshlrev_b32 v240, 4, v240")
    a("v_lshl_add_u32 v240, v14, 7, v240")
    a("v_and_b32 v241, 1, v1")
    a("v_lshl_add_u32 v240, v241, 3, v240")
    a("v_add_u32 v240, %d, v240" % R1)
    a("v_mul_u32_u24 v241, %d, v14" % RS2)
    a("v_lshl_add_u32 v241, v1, 4, v241")
    a("s_mul_i32 s50, s57, %d" % (64 * RS2))
    a("s_lshl_b32 s53, s56, 8")
    a("s_sub_u32 s50, s50, s53")
    a("s_add_u32 s50, s50, 0x%x" % (WS_UL + 7936))
    a.vmwait("k")
    S(a, "k_in")
    if cfg.lateq: partB()
    K = lambda j, c: 100 + (j * 4 + c) * 2
    for j in range(5):
        for c in range(4):
            r = 16 + 4 * j + c
            a("v_lshlrev_b32 v%d, 16, v%d" % (K(j, c), r))
            a("v_and_b32 v%d, 0xffff0000, v%d" % (K(j, c) + 1, r))
    a.vmwait("sk")
    W = lambda c, t: 68 + (c * 4 + t) * 2
    for c in range(4):
        r = 52 + 4 * c
        a("v_lshlrev_b32 v%d, 16, v%d" % (W(c, 0), r))
        a("v_lshlrev_b32 v%d, 16, v%d" % (W(c, 0) + 1, r + 2))
        a("v_and_b32 v%d, 0xffff0000, v%d" % (W(c, 1), r))
        a("v_and_b32 v%d, 0xffff0000, v%d" % (W(c, 1) + 1, r + 2))
        a("v_lshlrev_b32 v%d, 16, v%d" % (W(c, 2), r + 1))
        a("v_lshlrev_b32 v%d, 16, v%d" % (W(c, 2) + 1, r + 3))
        a("v_and_b32 v%d, 0xffff0000, v%d" % (W(c, 3), r + 1))
        a("v_and_b32 v%d, 0xffff0000, v%d" % (W(c, 3) + 1, r + 3))
    U = lambda e, c: 140 + e * 8 + 2 * c
    P = lambda r: "v[%d:%d]" % (r, r + 1)
    for e in range(2):
        for c in range(4):
            a("v_pk_mul_f32 %s, %s, %s" % (P(U(e, c)), P(K(3 + e, c)), P(W(c, 0))))
        for t in range(1, 4):
            for c in range(4):
                a("v_pk_fma_f32 %s, %s, %s, %s" % (P(U(e, c)), P(K(3 + e - t, c)), P(W(c, t)), P(U(e, c))))
    a("v_xor_b32 v3, 64, v15")
    a.vmwait("v")
    S(a, "v_in")
    for e in range(2):
        for c in range(4):
            r = 36 + 4 * e + c
            t = 156 + (e * 4 + c) * 2
            a("v_lshlrev_b32 v%d, 16, v%d" % (t, r))
            a("v_and_b32 v%d, 0xffff0000, v%d" % (t + 1, r))
    for e in range(2):
        for c in range(4):
            t = 156 + (e * 4 + c) * 2
            a("v_pk_mul_f32 %s, %s, %s" % (P(U(e, c)), P(U(e, c)), P(t)))
    for i in range(8):
        a("v_cvt_pk_bf16_f32 v%d, v%d, v%d" % (172 + i, 148 + i, 140 + i))
    for i in range(8):
        a("ds_write_b32 v11, v%d offset:%d" % (172 + i, i * 128))
    a("s_waitcnt lgkmcnt(0)")
    a("s_barrier")
    S(a, "p1lds")
    token(a)
    for it in range(2):
        for hb in range(2):
            m = 2 * it + hb
            off = it * 4096 + ((hb ^ it) << 6)
            a("ds_read_b32 v%d, v240 offset:%d" % (16 + 4 * m, off))
            a("ds_read_b32 v%d, v240 offset:%d" % (18 + 4 * m, off + 4))
    for m in range(4):
        a("v_mov_b32 v%d, s%d" % (17 + 4 * m, S_T))
        a("v_mov_b32 v%d, s%d" % (19 + 4 * m, S_T))
    a("s_add_u32 s52, s50, %d" % (32 * RS2))
    for m in range(4):
        a("s_waitcnt lgkmcnt(%d)" % (6 - 2 * m))
        a.vm("buffer_store_dwordx4 v[%d:%d], v241, %s, s%d offen offset:%d %s" % (16 + 4 * m, 19 + 4 * m, WS, 50 if m < 2 else 52, (m & 1) * 128, SC), "p1u")
    a.vmwait("q")
    S(a, "q_in")
    a("s_mov_b32 s52, 0x05040100")
    a("s_mov_b32 s53, 0x07060302")
    for i in range(4):
        a("v_perm_b32 v%d, v%d, v%d, s52" % (180 + 2 * i, 48 + i, 44 + i))
        a("v_perm_b32 v%d, v%d, v%d, s53" % (181 + 2 * i, 48 + i, 44 + i))
    for i in range(8):
        a("ds_write_b32 v12, v%d offset:%d" % (180 + i, i * 128))
    a("s_add_u32 s53, s51, %d" % (32 * RS))
    a("s_waitcnt lgkmcnt(0)")
    a("s_barrier")
    a("ds_read_b128 v[32:35], v15 offset:8192")
    a("ds_read_b128 v[36:39], v3 offset:12288")
    a("s_waitcnt lgkmcnt(1)")
    a.vm("buffer_store_dwordx4 v[32:35], v13, %s, s51 offen %s" % (WS, SC), "p1x")
    a("s_waitcnt lgkmcnt(0)")
    a.vm("buffer_store_dwordx4 v[36:39], v13, %s, s53 offen %s" % (WS, SC), "p1x")
    S(a, "p1st")
    a("s_barrier")
    a.vmwait("ssm")
    for c in range(2):
        w0 = 200 + 8 * c
        b = 140 + 12 * c
        for i in range(4): a("v_alignbit_b32 v%d, v%d, v%d, 16" % (b + i, w0 + i + 1, w0 + i))
        for i in range(4): a("v_mov_b32 v%d, v%d" % (b + 4 + i, w0 + i + 1))
        for i in range(4): a("v_alignbit_b32 v%d, v%d, v%d, 16" % (b + 8 + i, w0 + i + 2, w0 + i + 1))
    a("v_and_b32 v10, 15, v2")
    a("v_lshrrev_b32 v11, 4, v2")
    a("v_bfe_u32 v4, v2, 2, 2")
    a("v_lshrrev_b32 v5, 5, v2")
    a("v_lshl_add_u32 v5, v5, 2, v4")
    a("v_lshlrev_b32 v8, 7, v5")
    a("v_lshlrev_b32 v5, 8, v5")
    a("v_lshl_add_u32 v5, v4, 6, v5")
    a("v_bfe_u32 v4, v2, 3, 1")
    a("v_lshl_add_u32 v8, v4, 6, v8")
    a("v_bfe_u32 v4, v2, 4, 1")
    a("v_lshl_add_u32 v5, v4, 5, v5")
    a("v_lshl_add_u32 v8, v4, 5, v8")
    a("v_and_b32 v4, 3, v2")
    a("v_lshl_add_u32 v5, v4, 3, v5")
    a("v_lshl_add_u32 v8, v4, 3, v8")
    a("s_lshr_b32 s52, s49, 1")
    a("s_and_b32 s53, s49, 1")
    a("s_lshl_b32 s36, s52, 6")
    a("v_xor_b32 v245, s36, v8")
    A_, B_ = 128, 129
    a("v_and_b32 v%d, 3, v10" % A_)
    a("v_mul_u32_u24 v%d, 4160, v%d" % (A_, A_))
    a("v_lshrrev_b32 v130, 2, v10")
    a("v_lshl_add_u32 v%d, v130, 3, v%d" % (A_, A_))
    a("v_lshl_add_u32 v%d, v11, 4, v%d" % (A_, A_))
    a("s_mul_i32 s36, s52, %d" % HC_CH)
    a("s_lshl_b32 s37, s53, 8")
    a("s_add_u32 s36, s36, s37")
    a("s_add_u32 s36, s36, %d" % HC)
    a("v_add_u32 v%d, s36, v%d" % (A_, A_))
    a("v_lshlrev_b32 v%d, 5, v10" % B_)
    a("v_lshlrev_b32 v130, 4, v11")
    a("v_sub_u32 v%d, v130, v%d" % (B_, B_))
    a("s_mul_i32 s36, s52, %d" % UR_CH)
    a("s_add_u32 s36, s36, s37")
    a("s_add_u32 s36, s36, %d" % (UR + 480))
    a("v_add_u32 v%d, s36, v%d" % (B_, B_))
    AD = 132
    a("s_lshl_b32 s36, s52, 4")
    a("s_lshr_b32 s37, s63, s36")
    a("s_and_b32 s37, s37, 0xffff")
    a("s_cmp_eq_u32 s53, 0")
    a("s_cselect_b32 s37, s37, 0")
    a("v_lshlrev_b32 v130, 3, v11")
    a("v_add_u32 v130, v130, v10")
    a("v_sub_u32 v130, 15, v130")
    a("v_and_b32 v131, 1, v130")
    a("v_lshlrev_b32 v131, 4, v131")
    a("v_mov_b32 v136, s37")
    a("v_lshlrev_b32 v131, v131, v136")
    a("v_ashrrev_i32 v130, 1, v130")
    for dw in range(4):
        a("v_cmp_eq_u32 vcc, %d, v130" % dw)
        a("v_cndmask_b32 v%d, 0, v131, vcc" % (AD + dw))
    ACC = 136
    a("v_lshlrev_b32 v4, 4, v2")
    a("v_lshlrev_b32 v13, 4, v0")
    a("v_lshlrev_b32 v9, 5, v0")
    a("s_mul_i32 s54, s58, %d" % (2 * RS))
    a("s_mul_i32 s55, s52, %d" % RS)
    a("s_add_u32 s55, s55, s54")
    a("s_lshl_b32 s50, s53, 11")
    a("s_add_u32 s38, s55, s50")
    a("s_mul_i32 s39, s52, %d" % UR_CH)
    a("s_add_u32 s39, s39, s50")
    a("s_add_u32 s39, s39, %d" % UR)
    a("s_lshr_b32 s52, s58, 5")
    a("s_lshl_b32 s52, s52, 5")
    a("v_and_b32 v12, 31, v2")
    a("v_add_u32 v12, s52, v12")
    a("v_lshlrev_b32 v12, 6, v12")
    a("v_lshlrev_b32 v244, 4, v0")
    a("v_add_u32 v244, %d, v244" % (32 + HC))
    a("v_mul_u32_u24 v243, 4160, v11")
    a("v_lshl_add_u32 v243, v10, 1, v243")
    a("s_and_b32 s52, s49, 1")
    a("s_mul_i32 s52, s52, %d" % HC_CH)
    a("s_add_u32 s52, s52, %d" % HC)
    a("v_add_u32 v243, s52, v243")
    a("v_lshrrev_b32 v232, 5, v2")
    a("v_mul_u32_u24 v232, %d, v232" % UR_CH)
    a("v_and_b32 v233, 31, v2")
    a("v_lshl_add_u32 v232, v233, 4, v232")
    a("v_add_u32 v232, %d, v232" % (UR + 4096))
    for i in range(4): a("v_mov_b32 v%d, 0" % (236 + i))
    srd(a, 4, 22, 23, D * F * 2)
    a("v_lshrrev_b32 v7, 4, v2")
    a("v_and_b32 v233, 15, v2")
    a("v_lshlrev_b32 v234, 2, v7")
    a("v_xor_b32 v233, v233, v234")
    a("v_mul_u32_u24 v7, 3584, v7")
    a("v_lshl_add_u32 v7, v233, 4, v7")
    a("s_mul_i32 s46, s49, %d" % (4 * 3584))
    a("s_lshl_b32 s47, s60, 8")
    a("s_add_u32 s46, s46, s47")
    a("s_sub_u32 s46, s46, %d" % (16 * 3584))
    a("s_lshl_b32 s47, s49, 10")
    NLOW = 2 * cfg.r1n
    def w1dma(ks):
        def f():
            a("s_add_u32 m0, s47, %d" % (ks * 4096))
            if ks == NLOW: a("s_add_u32 s46, s46, %d" % ((NLOW + 1) * 16 * 3584))
            elif ks == 0: a("s_sub_u32 s46, s46, %d" % (27 * 16 * 3584))
            else: a("s_add_u32 s46, s46, %d" % (16 * 3584))
            a.vm("buffer_load_dwordx4 v7, s[4:7], s46 offen lds", "w1")
        return f
    a("ds_write_b128 v232, v[236:239]")
    for c in range(2):
        w0 = 200 + 8 * c; b = 140 + 12 * c
        base = c * HC_CH
        a("ds_write_b128 v244, v[%d:%d] offset:%d" % (b, b + 3, base + 0 * 4160))
        a("ds_write_b128 v244, v[%d:%d] offset:%d" % (b + 4, b + 7, base + 1 * 4160))
        a("ds_write_b128 v244, v[%d:%d] offset:%d" % (b + 8, b + 11, base + 2 * 4160))
        a("ds_write_b128 v244, v[%d:%d] offset:%d" % (w0 + 2, w0 + 5, base + 3 * 4160))
    a("ds_write_b16 v243, v224")
    a("v_lshl_add_u32 v236, v10, 2, v11")
    a("v_bfe_u32 v237, v10, 1, 2")
    a("v_xor_b32 v236, v236, v237")
    a("v_lshlrev_b32 v236, 4, v236")
    a("s_lshl_b32 s36, s49, 13")
    a("s_add_u32 s36, s36, %d" % PB)
    a("v_add_u32 v236, s36, v236")
    a("v_and_b32 v238, 31, v0")
    a("v_lshlrev_b32 v237, 1, v238")
    a("v_bfe_u32 v238, v238, 2, 2")
    a("v_xor_b32 v237, v237, v238")
    a("v_lshlrev_b32 v237, 4, v237")
    a("v_lshrrev_b32 v238, 5, v0")
    a("v_lshl_add_u32 v237, v238, 10, v237")
    a("v_add_u32 v237, %d, v237" % PB)
    a("v_xor_b32 v238, 16, v237")
    a("s_mov_b32 s96, 0x%x" % WS_STA)
    a("s_mov_b32 s97, 0x%x" % WS_STB)
    a("s_add_u32 s98, s54, 0x%x" % WS_XT)
    a("s_add_u32 s99, s54, 0x%x" % WS_HT)
    a("s_add_u32 s14, s98, %d" % RS)
    a("s_add_u32 s15, s99, %d" % RS)
    a("v_add_u32 v234, s45, v245")
    a("v_xor_b32 v235, 64, v234")
    def w2tr_lines(abase, nks, b0, b1):
        out = []
        for ks in range(nks):
            for dt in range(2):
                r = abase + (ks * 2 + dt) * 4
                b = b0 if dt == 0 else b1
                out.append("ds_read_b64_tr_b16 a[%d:%d], v%d offset:%d" % (r, r + 1, b, ks * 2048))
                out.append("ds_read_b64_tr_b16 a[%d:%d], v%d offset:%d" % (r + 2, r + 3, b, ks * 2048 + 1024))
        return out
    S(a, "prepoll")
    UL = 168
    a("v_lshlrev_b32 v240, 4, v0")
    a("v_add_u32 v241, 4096, v240")
    a("s_mul_i32 s36, s58, %d" % (2 * RS2))
    a("s_add_u32 s36, s36, 0x%x" % WS_UL)
    a("s_add_u32 s37, s36, %d" % RS2)
    a("v_lshlrev_b32 v246, 3, v0")
    a("v_add_u32 v246, %d, v246" % UR)
    def ul_loads(tracked):
        for i in range(4):
            l = "buffer_load_dwordx4 v[%d:%d], v%d, %s, s%d offen sc0 sc1" % (UL + 4 * i, UL + 4 * i + 3, 240 + (i & 1), WS, 36 + (i >> 1))
            if tracked: a.vm(l, "ul")
            else: a(l)
    ul_loads(True)
    for i in range(2 * cfg.r1n): w2dma(45, i, "w2r1")()
    if cfg.wpre:
        a("s_mul_i32 s52, s3, 56")
        a("s_mul_i32 s53, s49, 14")
        a("s_add_u32 s52, s52, s53")
        a("v_min_u32 v226, 13, v2")
        a("v_add_u32 v226, s52, v226")
        a("v_lshlrev_b32 v226, 7, v226")
        a.vm("buffer_load_dword v228, v226, s[40:43], 0 offen", "pre")
        a.vm("buffer_load_dword v229, v226, s[4:7], 0 offen", "pre")
    lp = a.label("ULP"); chk = a.label("ULC"); done = a.label("ULD")
    a("s_mov_b32 s51, 0")
    a.vmwait("ul")
    a("s_branch %s" % chk)
    a(lp + ":")
    ul_loads(False)
    a("s_waitcnt vmcnt(0)")
    a(chk + ":")
    for i in range(4):
        a("v_xor_b32 v%d, s%d, v%d" % (184 + 2 * i, S_T, UL + 4 * i + 1))
        a("v_xor_b32 v%d, s%d, v%d" % (185 + 2 * i, S_T, UL + 4 * i + 3))
    a("v_or3_b32 v184, v184, v185, v186")
    a("v_or3_b32 v187, v187, v188, v189")
    a("v_or3_b32 v184, v184, v190, v191")
    a("v_or_b32 v184, v184, v187")
    a("v_cmp_ne_u32 vcc, 0, v184")
    a("s_nop 4")
    a("s_cmp_eq_u64 vcc, 0")
    a("s_cbranch_scc1 %s" % done)
    a("s_add_u32 s51, s51, 1")
    a("s_cmp_lt_u32 s51, 0x40000")
    a("s_cbranch_scc1 %s" % lp)
    a(done + ":")
    S(a, "B1")
    for i in range(4):
        a("v_mov_b32 v%d, v%d" % (UL + 4 * i + 1, UL + 4 * i + 2))
    for i in range(4):
        a("ds_write_b64 v246, v[%d:%d] offset:%d" % (UL + 4 * i, UL + 4 * i + 1, (i >> 1) * UR_CH + (i & 1) * 2048))
    XR = 168; SA = 176
    FR = 16
    w1q = [w1dma(ks) for ks in list(range(NLOW, 28)) + list(range(NLOW))]
    a("s_mov_b32 s53, 0x%x" % WS_FLAG)
    a("s_lshr_b32 s52, s58, 5")
    a("s_lshl_b32 s52, s52, 5")
    a("s_add_u32 s52, s52, %d" % (F1X_IDX - 32))
    a("v_mov_b32 v12, s52")
    a("v_mov_b32 v241, %d" % FS_IDX)
    a("v_cmp_gt_u32 vcc, 32, v2")
    a("v_cndmask_b32 v12, v12, v241, vcc")
    a("v_add_u32 v12, v12, v2")
    a("v_lshlrev_b32 v12, 6, v12")
    for _ in range(cfg.w1pre): w1q.pop(0)()
    nhi_left = 28 - NLOW - cfg.w1pre
    a.vmwait("p1x")
    a("s_waitcnt lgkmcnt(0)")
    a("s_barrier")
    a("s_lshl_b32 s52, s57, 5")
    a("s_add_u32 s52, s52, s56")
    a("s_add_u32 s52, s52, %d" % F1X_IDX)
    publish(a, 52)
    S(a, "URin")
    AM = {}
    for ks in range(cfg.r1n): AM[ks] = 128 + 8 * ks
    segs = [[0, 16], [16 + cfg.r1n, 32]]
    for k0, n in ((cfg.r1n, 16 - cfg.r1n), (16, 4), (22, 4), (20, 2), (26, 2)):
        for sg in segs:
            if sg[1] - sg[0] >= n:
                for i in range(n): AM[k0 + i] = 8 * (sg[0] + i)
                sg[0] += n
                break
        else:
            raise RuntimeError("no room for W2 group")
    AB = [0, 32]; BB = [64, 96]
    def readA(st, rho, aa):
        r = AB[st] + 4 * aa
        off = 64 * rho + 512 * aa
        return ["ds_read_b64 a[%d:%d], v%d offset:%d" % (r, r + 1, A_, off),
                "ds_read_b64 a[%d:%d], v%d offset:%d" % (r + 2, r + 3, A_, off + 8)]
    def readB(st, rho, b):
        r = BB[st] + 4 * b
        return ["ds_read_b128 a[%d:%d], v%d offset:%d" % (r, r + 3, B_, 64 * rho + 512 * (7 - b))]
    def mfma(t, areg, breg, av=False):
        c = "0" if av else "v[%d:%d]" % (ACC + 4 * t, ACC + 4 * t + 3)
        return "v_mfma_f32_16x16x32_bf16 v[%d:%d], %s[%d:%d], a[%d:%d], %s" % (ACC + 4 * t, ACC + 4 * t + 3, "v" if av else "a", areg, areg + 3, breg, breg + 3, c)
    def fs_issue():
        a.vm("buffer_load_dword v242, v12, %s, s53 offen sc0 sc1" % WS, "fs")
    def x_load(g):
        def f():
            a.vm("buffer_load_dwordx4 v[%d:%d], v13, %s, s%d offen" % (XR + 4 * g, XR + 4 * g + 3, WS, 98 if g == 0 else 14), "ep")
        return f
    def st_load(g, hlf, which):
        def f():
            reg = SA + 16 * which + 4 * hlf
            a.vm("buffer_load_dwordx4 v[%d:%d], v9, %s, s%d offen offset:%d" % (reg, reg + 3, WS, 96 + which, 16 * hlf), "ep")
        return f
    def cm_load():
        a("s_lshl_b32 s36, s60, 2")
        a("s_add_u32 s36, s36, s49")
        a("s_lshl_b32 s36, s36, 7")
        a("s_add_u32 s36, s36, 0x%x" % WS_CM)
        a("v_and_b32 v12, 31, v2")
        a("v_lshlrev_b32 v12, 2, v12")
        a.vm("buffer_load_dword v3, v12, %s, s36 offen" % WS, "cm")
    def fc_issue():
        a("v_and_b32 v12, 31, v2")
        a("v_add_u32 v12, %d, v12" % FC_IDX)
        a("v_lshlrev_b32 v12, 6, v12")
        a.vm("buffer_load_dword v242, v12, %s, s53 offen sc0 sc1" % WS, "fc")
    if cfg.xp == 1: w1q_all = list(w1q); w1q = w1q[:1] + w1q[-1:]
    nhi = nhi_left
    r1rd = [(lambda l: (lambda: a(l)))(l) for l in w2tr_lines(128, cfg.r1n, 234, 235)]
    sides = {0: w1q[:nhi // 2],
             1: [lambda: a.vmwait("w2r1")] + r1rd + w1q[nhi // 2:nhi],
             2: [fs_issue] + w1q[nhi:],
             3: [x_load(0), x_load(1)] + [st_load(0, h, w) for h in range(2) for w in range(2)] + [fc_issue]}
    for b in range(8):
        for l in readB(0, 0, b): a(l)
    for aa in range(8):
        for l in readA(0, 0, aa): a(l)
    for rho in range(4):
        st = rho & 1
        nxt = []
        if rho < 3:
            for b in range(8): nxt += readB(1 - st, rho + 1, b)
            for aa in range(8): nxt += readA(1 - st, rho + 1, aa)
        ms = []
        if rho == 0:
            for t in range(8): ms.append((mfma(t, AD, BB[st] + 4 * t, True), None))
        for aa in range(8):
            for t in range(aa, 8):
                ms.append((mfma(t, AB[st] + 4 * aa, BB[st] + 4 * (t - aa)), aa))
        a("s_waitcnt lgkmcnt(%d)" % (15 if rho == 0 else 0))
        S(a, "rho%d" % rho)
        if rho == 2: a("s_barrier")
        if rho == 3:
            poll_late(a, 12, 53, 242, "fs")
        side = list(sides[rho]); step = max(1, len(ms) // (len(side) + 1))
        ni = 0; waited = -1
        for i, (m, aa) in enumerate(ms):
            if rho == 0 and aa is not None and aa > waited and aa <= 1:
                a("s_waitcnt lgkmcnt(%d)" % (14 if aa == 0 else 0))
                waited = aa
            a(m)
            if (rho > 0 or waited == 1) and ni < len(nxt):
                a(nxt[ni]); ni += 1
            if (i + 1) % step == 0 and side:
                side.pop(0)()
        while ni < len(nxt):
            a(nxt[ni]); ni += 1
        while side: side.pop(0)()
    S(a, "conv")
    a("s_lshl_b32 s52, s49, 6")
    a("v_xor_b32 v247, s52, v5")
    a("v_add_u32 v248, 0x10000, v247")
    a.vmwait("w1")
    a("s_barrier")
    for ks in range(28):
        b = 247 if ks < 16 else 248
        a("ds_read_b64_tr_b16 v[%d:%d], v%d offset:%d" % (FR + 4 * ks, FR + 4 * ks + 1, b, (ks & 15) * 4096))
        a("ds_read_b64_tr_b16 v[%d:%d], v%d offset:%d" % (FR + 4 * ks + 2, FR + 4 * ks + 3, b, (ks & 15) * 4096 + 2048))
    for t in range(8):
        a("ds_write_b128 v236, v[%d:%d] offset:%d" % (ACC + 4 * t, ACC + 4 * t + 3, 1024 * t))
    S(a, "pw")
    a.vmwait("ep")
    X = 224
    Z = 208
    a("s_waitcnt lgkmcnt(0)")
    a("s_barrier")
    S(a, "pbar")
    ZR = [136, 152]
    for g in range(2):
        for hf in range(2):
            a("ds_read_b128 v[%d:%d], v237 offset:%d" % (ZR[g] + 8 * hf, ZR[g] + 8 * hf + 3, hf * 8192 + g * 16384))
            a("ds_read_b128 v[%d:%d], v238 offset:%d" % (ZR[g] + 8 * hf + 4, ZR[g] + 8 * hf + 7, hf * 8192 + g * 16384))
    for g in range(2):
        Xg = 208 + 16 * g
        for i in range(4):
            a("v_lshlrev_b32 v%d, 16, v%d" % (Xg + 2 * i, XR + 4 * g + i))
            a("v_and_b32 v%d, 0xffff0000, v%d" % (Xg + 2 * i + 1, XR + 4 * g + i))
        for i in range(4):
            A2 = SA + 2 * i; B2 = SA + 16 + 2 * i
            a("v_pk_fma_f32 v[%d:%d], v[%d:%d], v[%d:%d], v[%d:%d]" % (Xg + 8 + 2 * i, Xg + 9 + 2 * i, Xg + 2 * i, Xg + 2 * i + 1, A2, A2 + 1, B2, B2 + 1))
    for g in range(2):
        Xg = 208 + 16 * g
        a("s_waitcnt lgkmcnt(%d)" % (4 if g == 0 else 0))
        z = ZR[g]
        for i in range(4):
            a("v_pk_add_f32 v[%d:%d], v[%d:%d], v[%d:%d]" % (z + 2 * i, z + 2 * i + 1, z + 2 * i, z + 2 * i + 1, z + 8 + 2 * i, z + 9 + 2 * i))
        for i in range(4):
            a("v_pk_fma_f32 v[%d:%d], v[%d:%d], v[%d:%d], v[%d:%d]" % (z + 2 * i, z + 2 * i + 1, Xg + 8 + 2 * i, Xg + 9 + 2 * i, z + 2 * i, z + 2 * i + 1, Xg + 2 * i, Xg + 2 * i + 1))
        for i in range(4):
            a("v_cvt_pk_bf16_f32 v%d, v%d, v%d" % (z + 8 + i, z + 2 * i, z + 2 * i + 1))
        a.vm("buffer_store_dwordx4 v[%d:%d], v13, %s, s%d offen %s" % (z + 8, z + 11, WS, 99 if g == 0 else 15, SC), "p2st")
    S(a, "p2st")
    poll_late(a, 12, 53, 242, "fc")
    cm_load()
    r2n = 16 - cfg.r1n
    a("s_mul_i32 s45, s49, %d" % (r2n * 2048))
    r2q = [w2dma(45, i, "w2r2") for i in range(2 * r2n)]
    for _ in range(cfg.r2pre): r2q.pop(0)()
    def f2_addr():
        a("v_lshlrev_b32 v12, 6, v2")
        a("v_add_u32 v13, %d, v12" % (64 * 64))
        a("v_add_u32 v14, %d, v12" % (128 * 64))
        a("v_min_u32 v15, 31, v2")
        a("v_lshlrev_b32 v15, 6, v15")
        a("v_add_u32 v15, %d, v15" % (192 * 64))
    def f2_issue(soff):
        lab = a.label("FI")
        a("s_cmp_lg_u32 s49, 0")
        a("s_cbranch_scc1 %s" % lab)
        for i, v in enumerate((12, 13, 14, 15)):
            a("buffer_load_dword v%d, v%d, %s, s%d offen sc0 sc1" % (246 + i, v, WS, soff))
        a(lab + ":")
    def f2_check(soff):
        lp = a.label("POLL"); done = a.label("PDONE"); chk = a.label("PCHK")
        a("s_cmp_lg_u32 s49, 0")
        a("s_cbranch_scc1 %s" % done)
        a("s_mov_b32 s51, 0")
        a("s_branch %s" % chk)
        a(lp + ":")
        for i, v in enumerate((12, 13, 14, 15)):
            a("buffer_load_dword v%d, v%d, %s, s%d offen sc0 sc1" % (246 + i, v, WS, soff))
        a(chk + ":")
        a("s_waitcnt vmcnt(0)")
        for i in range(4): a("v_xor_b32 v%d, s%d, v%d" % (246 + i, S_T, 246 + i))
        for i in range(1, 4): a("v_or_b32 v246, v246, v%d" % (246 + i))
        a("v_cmp_ne_u32 vcc, 0, v246")
        a("s_nop 4")
        a("s_cmp_eq_u64 vcc, 0")
        a("s_cbranch_scc1 %s" % done)
        a("s_add_u32 s51, s51, 1")
        a("s_cmp_lt_u32 s51, 0x40000")
        a("s_cbranch_scc1 %s" % lp)
        a(done + ":")
    a("s_lshl_b32 s46, s49, 13")
    a("s_lshl_b32 s47, s49, 12")
    a("s_add_u32 s47, s47, %d" % YB)
    a("v_lshrrev_b32 v10, 3, v2")
    a("v_and_b32 v241, 7, v2")
    a("v_bfe_u32 v242, v2, 4, 1")
    a("v_lshlrev_b32 v242, 2, v242")
    a("v_xor_b32 v241, v241, v242")
    a("v_mul_u32_u24 v10, %d, v10" % RS)
    a("v_lshl_add_u32 v10, v241, 4, v10")
    a("s_mul_i32 s38, s49, %d" % (8 * RS))
    a("s_lshl_b32 s39, s59, 7")
    a("s_add_u32 s38, s38, s39")
    a("s_add_u32 s38, s38, 0x%x" % (WS_HT - 32 * RS))
    a("s_lshl_b32 s39, s49, 10")
    a.vmwait("p2st")
    a("s_waitcnt lgkmcnt(0)")
    a("s_barrier")
    a("s_add_u32 s52, s3, %d" % F2_IDX)
    publish(a, 52)
    S(a, "F2pub")
    if cfg.upto == 2:
        a("s_branch L_DONE")
    def hdma(half, i):
        def f():
            a("s_add_u32 m0, s39, %d" % ((HA, HB_)[half] + i * 4096))
            if half == 1 and i == 0: a("s_sub_u32 s38, s38, %d" % (13 * 32 * RS - 2048))
            else: a("s_add_u32 s38, s38, %d" % (32 * RS))
            a.vm("buffer_load_dwordx4 v10, %s, s38 offen lds" % WS, "h%d_%d" % (half, i))
        return f
    def w2round(tag):
        return [w2dma(46, i, tag) for i in range(8)] + [w2dma(47, i, tag) for i in range(4)]
    def w2round_reads(abaseX, abaseY):
        return w2tr_lines(abaseX, 4, 9, 7) + w2tr_lines(abaseY, 2, 11, 3)
    a("v_mov_b32 v128, 0x00003f80")
    a("v_mov_b32 v129, 0x3f800000")
    cen = []
    for g in range(28):
        for i in range(4):
            r = FR + 4 * g + i; t = 132 + 8 * (g & 1) + 2 * i
            cen.append("v_dot2_f32_bf16 v%d, v%d, v128, v3" % (t, r))
            cen.append("v_dot2_f32_bf16 v%d, v%d, v129, v3" % (t + 1, r))
        if g > 0:
            for i in range(4):
                r = FR + 4 * (g - 1) + i; t = 132 + 8 * ((g - 1) & 1) + 2 * i
                cen.append("v_cvt_pk_bf16_f32 v%d, v%d, v%d" % (r, t, t + 1))
    for i in range(4):
        cen.append("s_nop 0")
    for i in range(4):
        r = FR + 4 * 27 + i; t = 132 + 8 * (27 & 1) + 2 * i
        cen.append("v_cvt_pk_bf16_f32 v%d, v%d, v%d" % (r, t, t + 1))
    a.vmwait("cm")
    interleave(a, cen, r2q, 336 // (len(r2q) + 1) // 2)
    S(a, "cen")
    a("v_add_u32 v9, s46, v245")
    a("v_xor_b32 v7, 64, v9")
    a("v_add_u32 v11, s47, v245")
    a("v_xor_b32 v3, 64, v11")
    a("v_add_u32 v128, %d, v8" % HA)
    a("v_xor_b32 v129, 64, v128")
    a("v_add_u32 v130, %d, v8" % HB_)
    a("v_xor_b32 v131, 64, v130")
    a("v_add_u32 v247, s45, v245")
    a("v_xor_b32 v248, 64, v247")
    a.vmwait("w2r2")
    S(a, "w2a_in")
    for l in w2tr_lines(0, r2n, 247, 248): a(l)
    f2_addr()
    a("s_mov_b32 s53, 0x%x" % (WS_FLAG + F2_IDX * 64))
    a.lkall()
    S(a, "w2a_tr")
    poll(a, [12, 13, 14, 15], 53)
    S(a, "B2")
    for i in range(14): hdma(0, i)()
    hB = [hdma(1, i) for i in range(14)]
    for i in range(cfg.hpreB): hB.pop(0)()
    lab = a.label("EPO")
    a("s_or_b32 s52, s3, s49")
    a("s_cmp_lg_u32 s52, 0")
    a("s_cbranch_scc1 %s" % lab)
    a("s_mov_b32 s52, %d" % E_IDX)
    publish(a, 52)
    a(lab + ":")
    NB = 3
    HBUF = 200
    def hreads(ks, ps):
        out = []
        for i in range(2):
            r = HBUF + (ks % NB) * 8 + 4 * i
            vb = 128 + 2 * ps + i
            tag = "hr%d_%d_%d" % (ps, ks, i)
            out.append(("ds_read_b64_tr_b16 v[%d:%d], v%d offset:%d" % (r, r + 1, vb, ks * 2048), tag))
            out.append(("ds_read_b64_tr_b16 v[%d:%d], v%d offset:%d" % (r + 2, r + 3, vb, ks * 2048 + 1024), tag))
        return out
    ACCP = [136, 168]
    r3 = w2round("w2r3"); r4 = w2round("w2r4")
    sync1 = {0: 1, 4: 5, 12: 13}
    sync0 = {0: 0, 2: 2, 6: 6, 14: 13}
    for ps in range(2):
        acc = ACCP[ps]
        if ps == 0:
            a.vmwait("h0_%d" % sync0[0]); a("s_barrier")
            S(a, "h_in")
        if ps == 1:
            r3rd = w2round_reads(AM[16], AM[20])
            a.vmwait("h1_%d" % sync1[0]); a("s_barrier")
            S(a, "ps1s")
        for k0 in range(NB - 1):
            for l, t in hreads(k0, ps): a.lk(l, t)
        for ks in range(28):
            kn = ks + NB - 1
            nxt = []
            if kn < 28:
                if ps == 0 and kn in sync0 and kn > 0:
                    a.vmwait("h0_%d" % sync0[kn]); a("s_barrier")
                if ps == 1 and kn in sync1 and kn > 0:
                    a.vmwait("h1_%d" % sync1[kn]); a("s_barrier")
                nxt = hreads(kn, ps)
            if ps == 1 and ks == 1: a.vmwait("w2r3")
            if ps == 1 and ks == 10: a.lkneed("r3")
            for i in range(2):
                a.lkneed("hr%d_%d_%d" % (ps, ks, i))
                r = HBUF + (ks % NB) * 8 + 4 * i
                a("v_mfma_f32_32x32x16_bf16 v[%d:%d], v[%d:%d], v[%d:%d], %s" % (acc + 16 * i, acc + 16 * i + 15, FR + 4 * ks, FR + 4 * ks + 3, r, r + 3, "0" if ks == 0 else "v[%d:%d]" % (acc + 16 * i, acc + 16 * i + 15)))
                if nxt:
                    a.lk(*nxt[2 * i]); a.lk(*nxt[2 * i + 1])
                if ps == 1 and 1 <= ks < 9:
                    for _ in range(2 if ks % 2 else 1):
                        if r3rd: a.lk(r3rd.pop(0), "r3")
            if ps == 0:
                if hB: hB.pop(0)()
                elif r3: r3.pop(0)()
            if ps == 1 and 10 <= ks < 22: r4[ks - 10]()
            if ps == 1 and ks == cfg.pubA:
                a.vmwait("p3a")
                a("s_barrier")
                a("s_lshl_b32 s37, s59, 4")
                a("s_add_u32 s37, s37, s60")
                a("s_add_u32 s37, s37, %d" % F3_IDX)
                publish(a, 37)
        S(a, "ps%d" % ps)
        if ps == 0:
            while hB: hB.pop(0)()
            while r3: r3.pop(0)()
            a("s_lshl_b32 s43x, s60, 2" if False else "s_lshl_b32 s55, s60, 2")
            a("s_add_u32 s55, s55, s49")
            a("s_lshl_b32 s55, s55, 11")
            a("s_add_u32 s55, s55, 0x%x" % WS_H1F)
        for i in range(2):
            a("s_lshl_b32 s52, s59, 1")
            a("s_add_u32 s52, s52, %d" % (32 * ps + i))
            a("s_mul_i32 s52, s52, %d" % (112 * 1024))
            a("s_add_u32 s52, s52, s55")
            o = 224 + 8 * i
            for q in range(8):
                a("v_cvt_pk_bf16_f32 v%d, v%d, v%d" % (o + q, acc + 16 * i + 2 * q, acc + 16 * i + 2 * q + 1))
            for q in range(8):
                a("v_pk_max_i16 v%d, v%d, 0" % (o + q, o + q))
            a.vm("buffer_store_dwordx4 v[%d:%d], v4, %s, s52 offen %s" % (o, o + 3, WS, SC), "p3a" if ps == 0 else "p3st")
            a.vm("buffer_store_dwordx4 v[%d:%d], v4, %s, s52 offen offset:1024 %s" % (o + 4, o + 7, WS, SC), "p3a" if ps == 0 else "p3st")
        S(a, "ps%de" % ps)
    S(a, "P3mm")
    a("v_min_u32 v15, 13, v2")
    a("v_lshlrev_b32 v15, 6, v15")
    a("s_lshr_b32 s36, s61, 1")
    a("s_lshl_b32 s38, s36, 10")
    a("s_add_u32 s38, s38, 0x%x" % (WS_FLAG + F3_IDX * 64))
    a.vm("buffer_load_dword v14, v15, %s, s38 offen sc0 sc1" % WS, "f3a")
    a("s_and_b32 s52, s49, 1")
    a("s_lshl_b32 s52, s52, 6")
    a("v_xor_b32 v12, s52, v8")
    a("s_lshr_b32 s52, s49, 1")
    a("s_mul_i32 s52, s52, %d" % (HB_ - HA))
    a("s_lshl_b32 s53, s60, 12")
    a("s_add_u32 s52, s52, s53")
    a("s_add_u32 s52, s52, %d" % HA)
    a("v_add_u32 v12, s52, v12")
    for k in range(2):
        a("ds_read_b64_tr_b16 v[%d:%d], v12 offset:%d" % (200 + 4 * k, 201 + 4 * k, k * 2048))
        a("ds_read_b64_tr_b16 v[%d:%d], v12 offset:%d" % (202 + 4 * k, 203 + 4 * k, k * 2048 + 1024))
    a.vmwait("w2r4")
    for l in w2round_reads(AM[22], AM[26]): a(l)
    a.vmwait("p3st")
    a("s_waitcnt lgkmcnt(0)")
    a("s_barrier")
    a("s_lshl_b32 s50, s59, 4")
    a("s_add_u32 s50, s50, s60")
    a("s_add_u32 s37, s50, %d" % F3B_IDX)
    publish(a, 37)
    S(a, "F3pub")
    if cfg.upto == 3:
        a("s_branch L_DONE")
    RING = 30; RB = 80
    a("s_lshr_b32 s36, s61, 1")
    a("s_lshl_b32 s36, s36, 1")
    a("s_and_b32 s39, s61, 1")
    a("s_add_u32 s36, s36, s39")
    a("s_mul_i32 s39, s49, %d" % (28 * 1024))
    a("s_mul_i32 s37, s36, %d" % (112 * 1024))
    a("s_add_u32 s39, s39, s37")
    a("s_add_u32 s39, s39, 0x%x" % WS_H1F)
    def hload(j):
        st, ks = divmod(j, 28)
        r = RB + (j % RING) * 4
        if j == 28: a("s_add_u32 s39, s39, %d" % (32 * 112 * 1024 - 28 * 1024))
        a.vm("buffer_load_dwordx4 v[%d:%d], v4, %s, s39 offen offset:%d" % (r, r + 3, WS, (ks % 4) * 1024), "H%d" % j)
        if ks % 4 == 3: a("s_add_u32 s39, s39, 4096")
    poll_late(a, 15, 38, 14, "f3a")
    S(a, "B3")
    for j in range(cfg.Hpre): hload(j)
    S(a, "H_iss")
    a("v_mov_b32 v208, 0x3f803f80")
    for i in range(4): a("v_mov_b32 v%d, 0" % (210 + i))
    for i in range(8):
        a("v_dot2_f32_bf16 v%d, v%d, v208, v%d" % (210 + 2 * (i & 1), 200 + i, 210 + 2 * (i & 1)))
        a("v_dot2_f32_bf16 v%d, v%d, v%d, v%d" % (211 + 2 * (i & 1), 200 + i, 200 + i, 211 + 2 * (i & 1)))
    a("v_pk_add_f32 v[210:211], v[210:211], v[212:213]")
    a("v_mov_b32 v212, v210")
    a("v_mov_b32 v213, v211")
    a("v_permlane32_swap_b32 v210, v212")
    a("v_permlane32_swap_b32 v211, v213")
    a("v_pk_add_f32 v[210:211], v[210:211], v[212:213]")
    a("s_lshr_b32 s52, s49, 1")
    a("s_lshl_b32 s52, s52, 5")
    a("s_and_b32 s50, s49, 1")
    a("s_add_u32 s52, s52, s50")
    a("s_lshl_b32 s50, s59, 1")
    a("s_add_u32 s52, s52, s50")
    a("s_lshl_b32 s52, s52, 8")
    a("s_lshl_b32 s50, s60, 14")
    a("s_add_u32 s52, s52, s50")
    a("s_add_u32 s52, s52, 0x%x" % WS_ST2P)
    a("v_and_b32 v12, 31, v2")
    a("v_lshlrev_b32 v12, 3, v12")
    a("s_mov_b32 exec_hi, 0")
    a.vm("buffer_store_dwordx2 v[210:211], v12, %s, s52 offen %s" % (WS, SC), "st2p")
    a("s_mov_b64 exec, -1")
    a("v_lshrrev_b32 v12, 3, v2")
    a("v_and_b32 v13, 7, v2")
    a("v_bfe_u32 v10, v2, 4, 1")
    a("v_lshlrev_b32 v10, 2, v10")
    a("v_xor_b32 v13, v13, v10")
    a("v_mul_u32_u24 v12, %d, v12" % RS)
    a("v_lshrrev_b32 v10, 2, v13")
    a("v_lshl_add_u32 v12, v10, 11, v12")
    a("v_and_b32 v13, 3, v13")
    a("v_lshl_add_u32 v12, v13, 4, v12")
    a("s_lshl_b32 s45, s62, 6")
    a("s_lshl_b32 s46, s49, 4")
    a("s_add_u32 s45, s45, s46")
    a("s_mul_i32 s45, s45, %d" % RS)
    a("s_lshl_b32 s46, s36, 6")
    a("s_add_u32 s45, s45, s46")
    a("s_add_u32 s45, s45, 0x%x" % WS_HT)
    a("s_lshl_b32 s46, s49, 11")
    a("s_add_u32 s46, s46, %d" % HRES)
    def hres(i):
        a("s_add_u32 m0, s46, %d" % (i * 1024))
        a.vm("buffer_load_dwordx4 v12, %s, s45 offen lds" % WS, "hres")
        if i == 0: a("s_add_u32 s45, s45, %d" % (8 * RS))
    ACC4 = 16
    a("s_and_b32 s47, s49, 1")
    a("s_lshr_b32 s63, s49, 1")
    a("s_lshl_b32 s52, s47, 5")
    a("s_add_u32 s36, s36, s52")
    a("v_and_b32 v13, 31, v2")
    a("v_lshrrev_b32 v9, 5, v2")
    a("v_mul_u32_u24 v10, %d, v9" % (7 * 16384))
    a("v_lshl_add_u32 v10, v13, 3, v10")
    a("s_add_u32 s38, s38, %d" % ((F3B_IDX - F3_IDX) * 64))
    SP = 200
    def st2loads():
        a("s_lshl_b32 s37, s36, 8")
        a("s_add_u32 s37, s37, 0x%x" % WS_ST2P)
        for i in range(7):
            a.vm("buffer_load_dwordx2 v[%d:%d], v10, %s, s37 offen" % (SP + 2 * i, SP + 2 * i + 1, WS), "st2")
            if i != 6: a("s_add_u32 s37, s37, 16384")
    def red_write(dtp, st):
        lab = a.label("RW")
        t = 2 * dtp + st
        if dtp == 0:
            a("s_cmp_eq_u32 s47, %d" % st)
            a("s_cbranch_scc1 %s" % lab)
        a("s_lshr_b32 s52, s49, 1")
        a("s_xor_b32 s52, s52, %d" % dtp)
        a("s_lshl_b32 s52, s52, 1")
        a("s_add_u32 s52, s52, %d" % st)
        a("s_sub_u32 s53, s49, s52")
        a("s_and_b32 s53, s53, 3")
        a("s_mul_i32 s52, s52, 3")
        a("s_add_u32 s52, s52, s53")
        a("s_lshl_b32 s52, s52, 12")
        a("s_sub_u32 s52, s52, 4096")
        a("v_add_u32 v14, s52, v4")
        for q in range(4):
            a("ds_write_b128 v14, v[%d:%d] offset:%d" % (ACC4 + 16 * t + 4 * q, ACC4 + 16 * t + 4 * q + 3, q * 1024))
        a(lab + ":")
    RED = red_write
    issued = cfg.Hpre
    S(a, "w2b_tr")
    for j in range(56):
        st, ks = divmod(j, 28)
        if j == cfg.chkB - 6:
            a.vm("buffer_load_dword v14, v15, %s, s38 offen sc0 sc1" % WS, "f3b")
        if j == cfg.chkB:
            poll_late(a, 15, 38, 14, "f3b")
            S(a, "out_stX")
        a.vmwait("H%d" % j)
        S(a, "H%d" % {0: 0, 14: 7, 28: 14, 42: 21, 55: 27}.get(j, 99))
        S(a, "J%d" % j)
        r = RB + (j % RING) * 4
        ab = AM[ks]
        for dt in range(2):
            t = dt * 2 + st
            a("v_mfma_f32_32x32x16_bf16 v[%d:%d], a[%d:%d], v[%d:%d], %s" % (ACC4 + 16 * t, ACC4 + 16 * t + 15, ab + 4 * dt, ab + 4 * dt + 3, r, r + 3, "0" if ks == 0 else "v[%d:%d]" % (ACC4 + 16 * t, ACC4 + 16 * t + 15)))
            if issued < (56 if j >= cfg.chkB else 28) and issued < j + RING and (dt == 0 or cfg.chkB <= j < cfg.chkB + cfg.dbl):
                hload(issued); issued += 1
        if j == 8:
            a.vmwait("st2p")
            a("s_barrier")
            a("s_lshl_b32 s37, s59, 4")
            a("s_add_u32 s37, s37, s60")
            a("s_add_u32 s37, s37, %d" % F3C_IDX)
            publish(a, 37)
        if j == cfg.f3cj:
            a("s_add_u32 s43, s38, %d" % ((F3C_IDX - F3B_IDX) * 64))
            a.vm("buffer_load_dword v11, v15, %s, s43 offen sc0 sc1" % WS, "f3c")
        if j == 53:
            poll_late(a, 15, 43, 11, "f3c")
            st2loads()
        if j in (cfg.f3cj - 2, cfg.f3cj - 1): hres(j - (cfg.f3cj - 2))
        if j == 44: red_write(1, 0)
        if j == 47: red_write(0, 0)
    a("s_nop 9")
    red_write(1, 1)
    red_write(0, 1)
    labo = a.label("OWN"); labe = a.label("OWNE")
    a("s_cmp_eq_u32 s47, 0")
    a("s_cbranch_scc1 %s" % labo)
    for i in range(16): a("v_mov_b32 v%d, v%d" % (ACC4 + i, ACC4 + 16 + i))
    a(labo + ":")
    S(a, "red_w")
    a("s_lshl_b32 s52, s47, 6")
    a("v_xor_b32 v15, s52, v8")
    a("s_lshl_b32 s52, s63, 12")
    a("s_add_u32 s52, s52, %d" % HRES)
    a("v_add_u32 v15, s52, v15")
    a("s_mul_i32 s52, s49, %d" % (3 * 4096))
    a("v_add_u32 v14, s52, v4")
    srd(a, 40, 26, 27, NB_SD)
    a("v_mul_u32_u24 v7, 896, v13")
    a("v_lshrrev_b32 v9, 5, v2")
    a("v_lshl_add_u32 v7, v9, 4, v7")
    a("s_mul_i32 s52, s36, %d" % (32 * 896))
    a("s_lshl_b32 s53, s62, 1")
    a("s_add_u32 s53, s53, s63")
    a("s_lshl_b32 s53, s53, 6")
    a("s_add_u32 s52, s52, s53")
    a.vmwait("hres")
    a("s_waitcnt lgkmcnt(0)")
    a("s_barrier")
    S(a, "red_b")
    T = 96
    for j4 in range(4):
        a("ds_read_b64_tr_b16 v[%d:%d], v15 offset:%d" % (240 + 2 * j4, 241 + 2 * j4, j4 * 1024))
    for d in range(3):
        for q in range(4):
            a("ds_read_b128 v[%d:%d], v14 offset:%d" % (T + 16 * d + 4 * q, T + 16 * d + 4 * q + 3, d * 4096 + q * 1024))
    a.vmwait("st2")
    for i in range(1, 7):
        a("v_pk_add_f32 v[%d:%d], v[%d:%d], v[%d:%d]" % (SP, SP + 1, SP, SP + 1, SP + 2 * i, SP + 2 * i + 1))
    a("v_mov_b32 v%d, v%d" % (SP + 2, SP))
    a("v_mov_b32 v%d, v%d" % (SP + 3, SP + 1))
    a("v_permlane32_swap_b32 v%d, v%d" % (SP, SP + 2))
    a("v_permlane32_swap_b32 v%d, v%d" % (SP + 1, SP + 3))
    a("v_pk_add_f32 v[%d:%d], v[%d:%d], v[%d:%d]" % (SP, SP + 1, SP, SP + 1, SP + 2, SP + 3))
    a("v_mul_f32 v%d, 0x3b124925, v%d" % (SP, SP))
    a("v_mul_f32 v%d, 0x3b124925, v%d" % (SP + 1, SP + 1))
    a("v_fma_f32 v%d, -v%d, v%d, v%d" % (SP + 1, SP, SP, SP + 1))
    a("v_max_f32 v%d, 0, v%d" % (SP + 1, SP + 1))
    a("v_add_f32 v%d, 0x3727c5ac, v%d" % (SP + 1, SP + 1))
    a("v_rsq_f32 v248, v%d" % (SP + 1))
    a("s_waitcnt lgkmcnt(12)")
    for dw in range(8):
        hx = 160 + 2 * dw
        a("v_lshlrev_b32 v%d, 16, v%d" % (hx, 240 + dw))
        a("v_and_b32 v%d, 0xffff0000, v%d" % (hx + 1, 240 + dw))
    a("s_waitcnt lgkmcnt(8)")
    for i in range(0, 16, 2):
        a("v_pk_add_f32 v[%d:%d], v[%d:%d], v[%d:%d]" % (ACC4 + i, ACC4 + i + 1, ACC4 + i, ACC4 + i + 1, T + i, T + i + 1))
    a("s_waitcnt lgkmcnt(0)")
    for i in range(0, 16, 2):
        a("v_pk_add_f32 v[%d:%d], v[%d:%d], v[%d:%d]" % (T + 16 + i, T + 17 + i, T + 16 + i, T + 17 + i, T + 32 + i, T + 33 + i))
    for i in range(0, 16, 2):
        a("v_pk_add_f32 v[%d:%d], v[%d:%d], v[%d:%d]" % (ACC4 + i, ACC4 + i + 1, ACC4 + i, ACC4 + i + 1, T + 16 + i, T + 17 + i))
    S(a, "red_r")
    for dw in range(8):
        hx = 160 + 2 * dw
        a("v_pk_fma_f32 v[%d:%d], v[%d:%d], v[248:249], v[%d:%d] op_sel_hi:[1,0,1]" % (hx, hx + 1, ACC4 + 2 * dw, ACC4 + 2 * dw + 1, hx, hx + 1))
    for dw in range(8):
        hx = 160 + 2 * dw
        a("v_cvt_pk_bf16_f32 v%d, v%d, v%d" % (180 + dw, hx, hx + 1))
    for jp in range(2):
        A0 = 180 + 4 * jp
        a("v_permlane32_swap_b32 v%d, v%d" % (A0, A0 + 2))
        a("v_permlane32_swap_b32 v%d, v%d" % (A0 + 1, A0 + 3))
    ob = ["", " sc1", " sc0 sc1", " nt"][cfg.outsc]
    a("buffer_store_dwordx4 v[180:183], v7, s[40:43], s52 offen" + ob)
    a("buffer_store_dwordx4 v[184:187], v7, s[40:43], s52 offen offset:32" + ob)
    S(a, "out_st")
    a("L_DONE:")
    if common.STAMPS:
        fstamp_flush(a)
    a("L_END:")
    a("s_endpgm")
    gen_stats(a)
    a("L_CODE_END:")
    a("s_endpgm")
    return a.lines, dict(vgpr=256, sgpr=102, lds=LDS_TOTAL, grid=256, agpr=256)

def build(out, cfg=Cfg):
    lines, info = gen(cfg)
    lines = fix_hazards(lines, verbose=True)
    txt = ["; generated by a hand-written generator (gen/fused25.py)",
           "; @launch grid=(%d,1,1) block=(256,1,1) lds=%d" % (info["grid"], info["lds"]),
           '.amdgcn_target "amdgcn-amd-amdhsa--gfx950"', ".text"]
    txt += lines
    txt.append('.section .rodata,"a"')
    txt += kernel_desc(KN, info["vgpr"], info["sgpr"], accum=256, agpr=info["agpr"])
    open(out, "w").write("\n".join(txt) + "\n")

if __name__ == "__main__":
    import sys, os
    common.STAMPS = int(os.environ.get("STAMPS", "0"))
    out = sys.argv[1]
    for kv in sys.argv[2:]:
        k, v = kv.split("=")
        setattr(Cfg, k, int(v))
    build(out)
```

```python
from common import *
F3C_IDX = 1280
WS_UL = 0x1500000
RS2 = 8320
WS_SIZE = 0x1900000
RS = 4224
F2B_IDX = 1536
FC_IDX = 288
F1X_IDX = 1792
import common
from fused import fstamp_flush, publish, poll, token, KN, S_T, S_WAVE, WS
import fused

SC = "sc1"
R0 = 0
R1 = 114688
HC = R1; HC_CH = 4 * 4160; UR = HC + 2 * HC_CH; UR_CH = 4608
LDS_TOTAL = 163840
R2W = 12288
HA = 32768; HB_ = 90112; YB = 147456
HRES = 65536
PB = R1
WS_CM = 0x1330000
WS_ST2P = 0x1340000

class Cfg:
    f3cj = 46
    dbl = 2
    ln2j = 45
    r2pre = 8
    outsc = 0
    xp = 0
    pubfirst = 1
    lateq = 1
    hwait = 0
    oldpro = 1
    r1late = 0
    fsearly = 1
    r1n = 4
    b1sleep = 0
    w1pf = 0
    hpreB = 2
    chk2 = 14
    hw2 = 0
    tlb = 0
    cpre = 1
    slp = 0
    pubA = 16
    chkB = 18
    w1pre = 4
    sset = 0
    upto = 4
    wpre = 1
    hpre = 16
    Hpre = 14

SETS = {
 0: ["start","ldiss","k_in","p1st","F1pub","prepoll","B1","URin","conv","p2st","F2pub","B2","h_in","P3mm","F3pub","B3"],
 1: ["start","B3","H_iss","H0","H7","H14","H21","H27","red_w","red_b","red_r","out_st", "F3pub", "w2b_iss", "w2b_in", "w2b_tr"],
 3: ["start"],
 7: ["start","F2pub","cen","B2","h_in","P0_7","P0_14","P0_21","ps0","ps0e","P1_0","P1_7","P1_14","P1_21","ps1","F3pub"],
 6: ["start","F3pub","J0","J8","J16","J18","J22","J26","J30","J34","J38","J42","J46","J50","J55","red_w"],
 4: ["start","karg","p1iss","ldiss","k_in","v_in","q_in","p1lds","p1st","drain","F1pub","hcw","prepoll","B1","URin","conv"],
 2: ["start","URin","conv","p2st","F2pub","cen","w2a_tr","B2","h_in","ps0","ps0e","ps1s","ps1","ps1e","F3pub","B3"],
 5: ["start","URin","rho0","rho1","rho2","rho3","conv","pw","pbar","pz","p2st","F2pub"],
}
def S(a, name):
    names = SETS[Cfg.sset]
    if name in names: stamp(a, names.index(name))

def poll_late(a, vaddr, soff_sgpr, reg, tag):
    lp = a.label("POLL"); done = a.label("PDONE")
    a.vmwait(tag)
    a("v_cmp_ne_u32 vcc, s%d, v%d" % (S_T, reg))
    a("s_nop 4")
    a("s_cmp_eq_u64 vcc, 0")
    a("s_cbranch_scc1 %s" % done)
    a("s_mov_b32 s51, 0")
    a(lp + ":")
    if Cfg.slp: a("s_sleep %d" % Cfg.slp)
    a("buffer_load_dword v%d, v%d, %s, s%d offen sc0 sc1" % (reg, vaddr, WS, soff_sgpr))
    a("s_waitcnt vmcnt(0)")
    a("v_cmp_ne_u32 vcc, s%d, v%d" % (S_T, reg))
    a("s_nop 4")
    a("s_cmp_eq_u64 vcc, 0")
    a("s_cbranch_scc1 %s" % done)
    a("s_add_u32 s51, s51, 1")
    a("s_cmp_lt_u32 s51, 0x40000")
    a("s_cbranch_scc1 %s" % lp)
    a(done + ":")

def interleave(a, main, side, every):
    si = 0
    for i, l in enumerate(main):
        a(l)
        if (i + 1) % every == 0 and si < len(side):
            side[si](); si += 1
    while si < len(side):
        side[si](); si += 1

def gen_stats(a):
    a("L_STATS0:")
    a("s_load_dword s48, s[30:31], s50")
    srd(a, 32, 30, 31, WS_SIZE)
    a("L_STATS:")
    if Cfg.hwait:
        a("s_waitcnt lgkmcnt(0)")
        a("s_mov_b32 s54, s48")
        a("s_mul_i32 s54, s54, 1664525")
        a("s_add_u32 s54, s54, 1013904223")
        a("s_lshl_b32 s53, s2, 6")
        a("s_add_u32 s53, s53, 0x%x" % WS_FLAG)
        a("v_mov_b32 v20, 0")
        a("s_mov_b32 s51, 0")
        a("L_HW:")
        a("buffer_load_dword v21, v20, %s, s53 offen sc0 sc1" % WS)
        a("s_waitcnt vmcnt(0)")
        a("v_cmp_ne_u32 vcc, s54, v21")
        a("s_nop 4")
        a("s_cmp_eq_u64 vcc, 0")
        a("s_cbranch_scc1 L_HWD")
        a("s_add_u32 s51, s51, 1")
        a("s_cmp_lt_u32 s51, 0x40000")
        a("s_cbranch_scc1 L_HW")
        a("L_HWD:")
    a("v_and_b32 v1, 7, v0")
    a("v_lshrrev_b32 v2, 3, v0")
    a("s_mul_i32 s52, s2, %d" % (64 * 896))
    a("v_lshrrev_b32 v3, 3, v2")
    a("v_and_b32 v4, 7, v2")
    a("v_lshl_add_u32 v5, v3, 4, v4")
    a("v_mul_u32_u24 v6, 896, v5")
    a("v_lshl_add_u32 v6, v1, 4, v6")
    a("v_add_u32 v6, s52, v6")
    a("v_add_u32 v7, %d, v6" % (8 * 896))
    srd(a, 36, 8, 9, NB_SD)
    for p in range(2):
        for i in range(7):
            r = 16 + (p * 7 + i) * 4
            a("buffer_load_dwordx4 v[%d:%d], v%d, s[36:39], 0 offen offset:%d" % (r, r + 3, 6 + p, i * 128))
    if Cfg.hw2:
        srd(a, 44, 24, 25, D * F * 2)
        a("s_mul_i32 s52, s2, 392")
        a("v_add_u32 v11, s52, v0")
        a("v_lshlrev_b32 v11, 7, v11")
        a("buffer_load_dword v12, v11, s[44:47], 0 offen")
        a("v_min_u32 v13, 135, v0")
        a("v_add_u32 v13, s52, v13")
        a("v_lshlrev_b32 v13, 7, v13")
        a("buffer_load_dword v14, v13, s[44:47], 0 offen offset:0" if False else "v_add_u32 v13, %d, v13" % (256 * 128))
        a("buffer_load_dword v14, v13, s[44:47], 0 offen")
    NX = 2 if Cfg.hw2 else 0
    a("v_mov_b32 v8, 0x3f803f80")
    for r in range(80, 88): a("v_mov_b32 v%d, 0" % r)
    for p in range(2):
        for i in range(7):
            a("s_waitcnt vmcnt(%d)" % (13 - (p * 7 + i)))
            for c in range(4):
                r = 16 + (p * 7 + i) * 4 + c
                o = 80 + 4 * p + 2 * (c & 1)
                a("v_dot2_f32_bf16 v%d, v%d, v8, v%d" % (o, r, o))
                a("v_dot2_f32_bf16 v%d, v%d, v%d, v%d" % (o + 1, r, r, o + 1))
    for p in range(2):
        a("v_add_f32 v%d, v%d, v%d" % (80 + 4 * p, 80 + 4 * p, 82 + 4 * p))
        a("v_add_f32 v%d, v%d, v%d" % (81 + 4 * p, 81 + 4 * p, 83 + 4 * p))
    for mod in ("quad_perm:[1,0,3,2]", "quad_perm:[2,3,0,1]", "row_half_mirror"):
        for r in (80, 81, 84, 85):
            a("v_add_f32_dpp v%d, v%d, v%d %s row_mask:0xf bank_mask:0xf" % (r, r, r, mod))
    for p in range(2):
        s_, q_ = 80 + 4 * p, 81 + 4 * p
        a("v_mul_f32 v%d, 0x3b124925, v%d" % (s_, s_))
        a("v_mul_f32 v%d, 0x3b124925, v%d" % (q_, q_))
        a("v_fma_f32 v%d, -v%d, v%d, v%d" % (q_, s_, s_, q_))
        a("v_max_f32 v%d, 0, v%d" % (q_, q_))
        a("v_add_f32 v%d, 0x3727c5ac, v%d" % (q_, q_))
        a("v_rsq_f32 v%d, v%d" % (88 + 2 * p, q_))
        a("v_mul_f32 v%d, v%d, v%d" % (89 + 2 * p, s_, 88 + 2 * p))
        a("v_sub_f32 v%d, 0, v%d" % (89 + 2 * p, 89 + 2 * p))
    a("s_lshl_b32 s52, s2, 8")
    a("s_add_u32 s52, s52, 0x%x" % WS_STA)
    a("s_add_u32 s53, s52, 8192")
    a("v_lshlrev_b32 v9, 2, v5")
    a("v_cmp_eq_u32 vcc, 0, v1")
    a("s_and_saveexec_b64 s[54:55], vcc")
    a("buffer_store_dword v88, v9, %s, s52 offen %s" % (WS, SC))
    a("buffer_store_dword v89, v9, %s, s53 offen %s" % (WS, SC))
    a("buffer_store_dword v90, v9, %s, s52 offen offset:32 %s" % (WS, SC))
    a("buffer_store_dword v91, v9, %s, s53 offen offset:32 %s" % (WS, SC))
    a("s_mov_b64 exec, s[54:55]")
    srd(a, 40, 22, 23, D * F * 2)
    a("v_mul_u32_u24 v10, 3584, v2")
    a("v_lshl_add_u32 v10, v1, 4, v10")
    a("s_lshl_b32 s52, s2, 7")
    a("s_cmp_lt_u32 s2, 28")
    a("s_cselect_b32 s52, s52, 0x40000000")
    for i in range(14):
        a("buffer_load_dwordx4 v[%d:%d], v10, s[40:43], s52 offen" % (100 + 4 * i, 103 + 4 * i))
        if i != 13: a("s_add_u32 s52, s52, %d" % (32 * 3584))
    a("s_waitcnt vmcnt(14) lgkmcnt(0)")
    token(a)
    a("s_barrier")
    a("s_add_u32 s52, s2, %d" % FS_IDX)
    publish(a, 52)
    a("s_waitcnt vmcnt(0)")
    a("v_mov_b32 v8, 0x00003f80")
    a("v_mov_b32 v9, 0x3f800000")
    for r in range(16, 24): a("v_mov_b32 v%d, 0" % r)
    for i in range(14):
        for c in range(4):
            a("v_dot2_f32_bf16 v%d, v%d, v8, v%d" % (16 + 2 * c, 100 + 4 * i + c, 16 + 2 * c))
            a("v_dot2_f32_bf16 v%d, v%d, v9, v%d" % (17 + 2 * c, 100 + 4 * i + c, 17 + 2 * c))
    a("v_lshlrev_b32 v24, 8, v2")
    a("v_lshl_add_u32 v24, v1, 5, v24")
    a("ds_write_b128 v24, v[16:19]")
    a("ds_write_b128 v24, v[20:23] offset:16")
    a("v_and_b32 v25, 63, v0")
    a("v_lshrrev_b32 v26, 6, v0")
    a("v_lshlrev_b32 v27, 11, v26")
    a("v_lshl_add_u32 v27, v25, 2, v27")
    a("s_waitcnt lgkmcnt(0)")
    a("s_barrier")
    for i in range(8):
        a("ds_read_b32 v%d, v27 offset:%d" % (28 + i, i * 256))
    a("s_waitcnt lgkmcnt(0)")
    for i in range(1, 8):
        a("v_add_f32 v28, v28, v%d" % (28 + i))
    a("v_lshlrev_b32 v27, 8, v26")
    a("v_lshl_add_u32 v27, v25, 2, v27")
    a("ds_write_b32 v27, v28 offset:8192")
    a("v_lshlrev_b32 v27, 2, v25")
    a("s_waitcnt lgkmcnt(0)")
    a("s_barrier")
    for i in range(4):
        a("ds_read_b32 v%d, v27 offset:%d" % (28 + i, 8192 + i * 256))
    a("s_waitcnt lgkmcnt(0)")
    a("v_add_f32 v28, v28, v29")
    a("v_add_f32 v30, v30, v31")
    a("v_add_f32 v28, v28, v30")
    a("v_mul_f32 v28, 0xbb124925, v28")
    lab = a.label("NOCM")
    a("s_cmp_ge_u32 s2, 28")
    a("s_cbranch_scc1 %s" % lab)
    a("s_cmp_lg_u32 s49, 0")
    a("s_cbranch_scc1 %s" % lab)
    a("s_lshl_b32 s52, s2, 8")
    a("s_add_u32 s52, s52, 0x%x" % WS_CM)
    a("buffer_store_dword v28, v27, %s, s52 offen %s" % (WS, SC))
    a(lab + ":")
    a("s_waitcnt vmcnt(0) lgkmcnt(0)")
    a("s_barrier")
    a("s_add_u32 s52, s2, %d" % FC_IDX)
    publish(a, 52)
    S(a, "B3")
    fstamp_flush(a)
    a("s_endpgm")

def gen(cfg=Cfg):
    a = Asm()
    for l in kernel_header(KN): a(l)
    a("s_load_dwordx16 s[8:23], s[0:1], 0")
    a("s_load_dwordx8 s[24:31], s[0:1], 64")
    S(a, "start")
    a("s_cmp_ge_u32 s2, 256")
    a("s_cbranch_scc1 L_END")
    a("v_lshrrev_b32 v1, 6, v0")
    a("v_and_b32 v2, 63, v0")
    a("v_readfirstlane_b32 s49, v1")
    a("s_mov_b32 s50, 0x%x" % (WS_FLAG + E_IDX * 64))
    a("s_sub_u32 s3, s2, 32")
    a("s_mul_i32 s56, s3, 9363")
    a("s_lshr_b32 s56, s56, 16")
    a("s_mul_i32 s57, s56, 7")
    a("s_sub_u32 s57, s3, s57")
    a("s_and_b32 s52, s3, 7")
    a("s_lshr_b32 s53, s3, 3")
    a("s_mul_i32 s58, s52, 28")
    a("s_add_u32 s58, s58, s53")
    a("s_lshr_b32 s59, s52, 1")
    a("s_lshl_b32 s59, s59, 2")
    a("s_and_b32 s54, s53, 3")
    a("s_add_u32 s59, s59, s54")
    a("s_and_b32 s60, s52, 1")
    a("s_mul_i32 s60, s60, 7")
    a("s_lshr_b32 s55, s53, 2")
    a("s_add_u32 s60, s60, s55")
    a("s_lshl_b32 s61, s52, 2")
    a("s_add_u32 s61, s61, s54")
    a("s_mov_b32 s62, s55")
    a("v_and_b32 v1, 7, v0")
    a("v_lshrrev_b32 v14, 3, v0")
    a("s_mul_i32 s52, s56, %d" % (64 * 896))
    a("s_lshl_b32 s53, s57, 7")
    a("s_add_u32 s52, s52, s53")
    a("v_mul_u32_u24 v8, %d, v14" % (2 * 896))
    a("v_lshl_add_u32 v8, v1, 4, v8")
    a("v_add_u32 v8, s52, v8")
    for j in range(5):
        d = (j - 3) * 896
        if d < 0: a("v_subrev_u32 v%d, %d, v8" % (3 + j, -d))
        else: a("v_add_u32 v%d, %d, v8" % (3 + j, d))
    a("s_lshl_b32 s53, s57, 9")
    a("v_lshl_add_u32 v9, v1, 6, s53")
    for r, n in ((36, NB_SD), (44, NB_SD), (40, 448 * 4 * 2), (4, NB_SD)):
        a("s_mov_b32 s%d, 0x%x" % (r + 2, n))
        a("s_mov_b32 s%d, 0x20000" % (r + 3))
    a("s_cmp_lt_u32 s2, 32")
    a("s_waitcnt lgkmcnt(0)")
    S(a, "karg")
    a("s_cbranch_scc1 L_STATS0")
    a("s_load_dword s48, s[30:31], s50")
    a("s_mov_b32 s36, s10")
    a("s_and_b32 s37, s11, 0xffff")
    for j in range(5):
        a.vm("buffer_load_dwordx4 v[%d:%d], v%d, s[36:39], 0 offen" % (16 + 4 * j, 19 + 4 * j, 3 + j), "k")
    a("s_mov_b32 s44, s12")
    a("s_and_b32 s45, s13, 0xffff")
    a.vm("buffer_load_dwordx4 v[36:39], v8, s[44:47], 0 offen", "v")
    a.vm("buffer_load_dwordx4 v[40:43], v8, s[44:47], 0 offen offset:896", "v")
    a("s_mov_b32 s40, s14")
    a("s_and_b32 s41, s15, 0xffff")
    for j in range(4):
        a.vm("buffer_load_dwordx4 v[%d:%d], v9, s[40:43], 0 offen offset:%d" % (52 + 4 * j, 55 + 4 * j, 16 * j), "sk")
    a("s_mov_b32 s4, s8")
    a("s_and_b32 s5, s9, 0xffff")
    W2V = [6]
    srd(a, 40, 24, 25, D * F * 2)
    a("v_lshrrev_b32 v246, 3, v2")
    a("v_and_b32 v247, 7, v2")
    a("v_bfe_u32 v248, v2, 4, 1")
    a("v_lshlrev_b32 v248, 2, v248")
    a("v_xor_b32 v247, v247, v248")
    a("v_mul_u32_u24 v246, 896, v246")
    a("v_lshl_add_u32 v6, v247, 4, v246")
    a("s_mul_i32 s44, s49, %d" % (448 * 896))
    a("s_lshl_b32 s45, s62, 7")
    a("s_add_u32 s44, s44, s45")
    a("s_sub_u32 s44, s44, %d" % (8 * 896))
    a("s_mul_i32 s45, s49, %d" % (cfg.r1n * 2048))
    def w2dma(base_sgpr, i, tag):
        def f():
            a("s_add_u32 m0, s%d, %d" % (base_sgpr, i * 1024))
            a("s_add_u32 s44, s44, %d" % (8 * 896))
            a.vm("buffer_load_dwordx4 v%d, s[40:43], s44 offen lds" % W2V[0], tag)
        return f
    def partB():
        a.vm("buffer_load_dwordx4 v[44:47], v8, s[4:7], 0 offen", "q")
        a.vm("buffer_load_dwordx4 v[48:51], v8, s[4:7], 0 offen offset:896", "q")
        S(a, "p1iss")
        srd(a, 32, 30, 31, WS_SIZE)
        srd(a, 36, 16, 17, NB_SD)
        a("v_lshlrev_b32 v232, 4, v0")
        a("s_lshl_b32 s96, s58, 13")
        a("s_add_u32 s97, s96, 4096")
        for c in range(2):
            r = 200 + 8 * c
            a.vm("buffer_load_dwordx4 v[%d:%d], v232, s[36:39], s%d offen" % (r, r + 3, 96 + c), "ssm")
            a.vm("buffer_load_dwordx2 v[%d:%d], v232, s[36:39], s%d offen offset:16" % (r + 4, r + 5, 96 + c), "ssm")
        a("v_and_b32 v233, 15, v2")
        a("v_lshrrev_b32 v234, 4, v2")
        a("v_add_u32 v233, v233, v234")
        a("v_subrev_u32 v233, 15, v233")
        a("v_lshlrev_b32 v234, 1, v233")
        a("v_mov_b32 v225, 0x40000000")
        a("v_cmp_gt_i32 vcc, 0, v233")
        a("v_cndmask_b32 v234, v234, v225, vcc")
        a("s_and_b32 s97, s49, 1")
        a("s_lshl_b32 s97, s97, 12")
        a("s_add_u32 s97, s97, s96")
        a.vm("buffer_load_ushort v224, v234, s[36:39], s97 offen", "ssm")
        a("s_lshl_b32 s96, s58, 2")
        a("s_load_dword s63, s[18:19], s96")
        if cfg.cpre:
            a("s_getpc_b64 s[98:99]")
            a("L_PC:")
            a("s_lshl_b32 s96, s49, 13")
            a("v_lshlrev_b32 v226, 7, v2")
            a("v_add_u32 v226, s96, v226")
            a("v_min_u32 v226, L_CODE_END-L_PC-4, v226")
            a.vm("global_load_dword v227, v226, s[98:99]", "pre")
    if not cfg.lateq: partB()
    S(a, "ldiss")
    a("v_sub_u32 v10, 31, v14")
    a("v_lshrrev_b32 v11, 2, v10")
    a("v_xor_b32 v11, v11, v1")
    a("v_lshlrev_b32 v11, 4, v11")
    a("v_and_b32 v10, 3, v10")
    a("v_lshl_add_u32 v11, v10, 2, v11")
    a("v_lshl_add_u32 v11, v1, 10, v11")
    a("v_add_u32 v11, %d, v11" % R1)
    a("v_lshrrev_b32 v12, 2, v14")
    a("v_xor_b32 v12, v12, v1")
    a("v_lshlrev_b32 v12, 4, v12")
    a("v_and_b32 v10, 3, v14")
    a("v_lshl_add_u32 v12, v10, 2, v12")
    a("v_lshl_add_u32 v12, v1, 10, v12")
    a("v_add_u32 v12, %d, v12" % (R1 + 8192))
    a("v_lshrrev_b32 v10, 3, v14")
    a("v_xor_b32 v15, v1, v10")
    a("v_lshlrev_b32 v15, 4, v15")
    a("v_lshl_add_u32 v15, v14, 7, v15")
    a("v_add_u32 v15, %d, v15" % R1)
    a("v_xor_b32 v3, 64, v15") if False else None
    a("v_mul_u32_u24 v13, %d, v14" % RS)
    a("v_lshl_add_u32 v13, v1, 4, v13")
    a("s_mul_i32 s52, s57, %d" % (64 * RS))
    a("s_lshl_b32 s53, s56, 7")
    a("s_add_u32 s51, s52, s53")
    a("s_add_u32 s51, s51, 0x%x" % WS_XT)
    a("v_lshrrev_b32 v240, 1, v1")
    a("v_xor_b32 v240, v240, v10")
    a("v_lshlrev_b32 v240, 4, v240")
    a("v_lshl_add_u32 v240, v14, 7, v240")
    a("v_and_b32 v241, 1, v1")
    a("v_lshl_add_u32 v240, v241, 3, v240")
    a("v_add_u32 v240, %d, v240" % R1)
    a("v_mul_u32_u24 v241, %d, v14" % RS2)
    a("v_lshl_add_u32 v241, v1, 4, v241")
    a("s_mul_i32 s50, s57, %d" % (64 * RS2))
    a("s_lshl_b32 s53, s56, 8")
    a("s_sub_u32 s50, s50, s53")
    a("s_add_u32 s50, s50, 0x%x" % (WS_UL + 7936))
    a.vmwait("k")
    S(a, "k_in")
    if cfg.lateq: partB()
    K = lambda j, c: 100 + (j * 4 + c) * 2
    for j in range(5):
        for c in range(4):
            r = 16 + 4 * j + c
            a("v_lshlrev_b32 v%d, 16, v%d" % (K(j, c), r))
            a("v_and_b32 v%d, 0xffff0000, v%d" % (K(j, c) + 1, r))
    a.vmwait("sk")
    W = lambda c, t: 68 + (c * 4 + t) * 2
    for c in range(4):
        r = 52 + 4 * c
        a("v_lshlrev_b32 v%d, 16, v%d" % (W(c, 0), r))
        a("v_lshlrev_b32 v%d, 16, v%d" % (W(c, 0) + 1, r + 2))
        a("v_and_b32 v%d, 0xffff0000, v%d" % (W(c, 1), r))
        a("v_and_b32 v%d, 0xffff0000, v%d" % (W(c, 1) + 1, r + 2))
        a("v_lshlrev_b32 v%d, 16, v%d" % (W(c, 2), r + 1))
        a("v_lshlrev_b32 v%d, 16, v%d" % (W(c, 2) + 1, r + 3))
        a("v_and_b32 v%d, 0xffff0000, v%d" % (W(c, 3), r + 1))
        a("v_and_b32 v%d, 0xffff0000, v%d" % (W(c, 3) + 1, r + 3))
    U = lambda e, c: 140 + e * 8 + 2 * c
    P = lambda r: "v[%d:%d]" % (r, r + 1)
    for e in range(2):
        for c in range(4):
            a("v_pk_mul_f32 %s, %s, %s" % (P(U(e, c)), P(K(3 + e, c)), P(W(c, 0))))
        for t in range(1, 4):
            for c in range(4):
                a("v_pk_fma_f32 %s, %s, %s, %s" % (P(U(e, c)), P(K(3 + e - t, c)), P(W(c, t)), P(U(e, c))))
    a("v_xor_b32 v3, 64, v15")
    a.vmwait("v")
    S(a, "v_in")
    for e in range(2):
        for c in range(4):
            r = 36 + 4 * e + c
            t = 156 + (e * 4 + c) * 2
            a("v_lshlrev_b32 v%d, 16, v%d" % (t, r))
            a("v_and_b32 v%d, 0xffff0000, v%d" % (t + 1, r))
    for e in range(2):
        for c in range(4):
            t = 156 + (e * 4 + c) * 2
            a("v_pk_mul_f32 %s, %s, %s" % (P(U(e, c)), P(U(e, c)), P(t)))
    for i in range(8):
        a("v_cvt_pk_bf16_f32 v%d, v%d, v%d" % (172 + i, 148 + i, 140 + i))
    for i in range(8):
        a("ds_write_b32 v11, v%d offset:%d" % (172 + i, i * 128))
    a("s_waitcnt lgkmcnt(0)")
    a("s_barrier")
    S(a, "p1lds")
    token(a)
    for it in range(2):
        for hb in range(2):
            m = 2 * it + hb
            off = it * 4096 + ((hb ^ it) << 6)
            a("ds_read_b32 v%d, v240 offset:%d" % (16 + 4 * m, off))
            a("ds_read_b32 v%d, v240 offset:%d" % (18 + 4 * m, off + 4))
    for m in range(4):
        a("v_mov_b32 v%d, s%d" % (17 + 4 * m, S_T))
        a("v_mov_b32 v%d, s%d" % (19 + 4 * m, S_T))
    a("s_add_u32 s52, s50, %d" % (32 * RS2))
    for m in range(4):
        a("s_waitcnt lgkmcnt(%d)" % (6 - 2 * m))
        a.vm("buffer_store_dwordx4 v[%d:%d], v241, %s, s%d offen offset:%d %s" % (16 + 4 * m, 19 + 4 * m, WS, 50 if m < 2 else 52, (m & 1) * 128, SC), "p1u")
    a.vmwait("q")
    S(a, "q_in")
    a("s_mov_b32 s52, 0x05040100")
    a("s_mov_b32 s53, 0x07060302")
    for i in range(4):
        a("v_perm_b32 v%d, v%d, v%d, s52" % (180 + 2 * i, 48 + i, 44 + i))
        a("v_perm_b32 v%d, v%d, v%d, s53" % (181 + 2 * i, 48 + i, 44 + i))
    for i in range(8):
        a("ds_write_b32 v12, v%d offset:%d" % (180 + i, i * 128))
    a("s_add_u32 s53, s51, %d" % (32 * RS))
    a("s_waitcnt lgkmcnt(0)")
    a("s_barrier")
    a("ds_read_b128 v[32:35], v15 offset:8192")
    a("ds_read_b128 v[36:39], v3 offset:12288")
    a("s_waitcnt lgkmcnt(1)")
    a.vm("buffer_store_dwordx4 v[32:35], v13, %s, s51 offen %s" % (WS, SC), "p1x")
    a("s_waitcnt lgkmcnt(0)")
    a.vm("buffer_store_dwordx4 v[36:39], v13, %s, s53 offen %s" % (WS, SC), "p1x")
    S(a, "p1st")
    a("s_barrier")
    a.vmwait("ssm")
    for c in range(2):
        w0 = 200 + 8 * c
        b = 140 + 12 * c
        for i in range(4): a("v_alignbit_b32 v%d, v%d, v%d, 16" % (b + i, w0 + i + 1, w0 + i))
        for i in range(4): a("v_mov_b32 v%d, v%d" % (b + 4 + i, w0 + i + 1))
        for i in range(4): a("v_alignbit_b32 v%d, v%d, v%d, 16" % (b + 8 + i, w0 + i + 2, w0 + i + 1))
    a("v_and_b32 v10, 15, v2")
    a("v_lshrrev_b32 v11, 4, v2")
    a("v_bfe_u32 v4, v2, 2, 2")
    a("v_lshrrev_b32 v5, 5, v2")
    a("v_lshl_add_u32 v5, v5, 2, v4")
    a("v_lshlrev_b32 v8, 7, v5")
    a("v_lshlrev_b32 v5, 8, v5")
    a("v_lshl_add_u32 v5, v4, 6, v5")
    a("v_bfe_u32 v4, v2, 3, 1")
    a("v_lshl_add_u32 v8, v4, 6, v8")
    a("v_bfe_u32 v4, v2, 4, 1")
    a("v_lshl_add_u32 v5, v4, 5, v5")
    a("v_lshl_add_u32 v8, v4, 5, v8")
    a("v_and_b32 v4, 3, v2")
    a("v_lshl_add_u32 v5, v4, 3, v5")
    a("v_lshl_add_u32 v8, v4, 3, v8")
    a("s_lshr_b32 s52, s49, 1")
    a("s_and_b32 s53, s49, 1")
    a("s_lshl_b32 s36, s52, 6")
    a("v_xor_b32 v245, s36, v8")
    A_, B_ = 128, 129
    a("v_and_b32 v%d, 3, v10" % A_)
    a("v_mul_u32_u24 v%d, 4160, v%d" % (A_, A_))
    a("v_lshrrev_b32 v130, 2, v10")
    a("v_lshl_add_u32 v%d, v130, 3, v%d" % (A_, A_))
    a("v_lshl_add_u32 v%d, v11, 4, v%d" % (A_, A_))
    a("s_mul_i32 s36, s52, %d" % HC_CH)
    a("s_lshl_b32 s37, s53, 8")
    a("s_add_u32 s36, s36, s37")
    a("s_add_u32 s36, s36, %d" % HC)
    a("v_add_u32 v%d, s36, v%d" % (A_, A_))
    a("v_lshlrev_b32 v%d, 5, v10" % B_)
    a("v_lshlrev_b32 v130, 4, v11")
    a("v_sub_u32 v%d, v130, v%d" % (B_, B_))
    a("s_mul_i32 s36, s52, %d" % UR_CH)
    a("s_add_u32 s36, s36, s37")
    a("s_add_u32 s36, s36, %d" % (UR + 480))
    a("v_add_u32 v%d, s36, v%d" % (B_, B_))
    AD = 132
    a("s_lshl_b32 s36, s52, 4")
    a("s_lshr_b32 s37, s63, s36")
    a("s_and_b32 s37, s37, 0xffff")
    a("s_cmp_eq_u32 s53, 0")
    a("s_cselect_b32 s37, s37, 0")
    a("v_lshlrev_b32 v130, 3, v11")
    a("v_add_u32 v130, v130, v10")
    a("v_sub_u32 v130, 15, v130")
    a("v_and_b32 v131, 1, v130")
    a("v_lshlrev_b32 v131, 4, v131")
    a("v_mov_b32 v136, s37")
    a("v_lshlrev_b32 v131, v131, v136")
    a("v_ashrrev_i32 v130, 1, v130")
    for dw in range(4):
        a("v_cmp_eq_u32 vcc, %d, v130" % dw)
        a("v_cndmask_b32 v%d, 0, v131, vcc" % (AD + dw))
    ACC = 136
    a("v_lshlrev_b32 v4, 4, v2")
    a("v_lshlrev_b32 v13, 4, v0")
    a("v_lshlrev_b32 v9, 5, v0")
    a("s_mul_i32 s54, s58, %d" % (2 * RS))
    a("s_mul_i32 s55, s52, %d" % RS)
    a("s_add_u32 s55, s55, s54")
    a("s_lshl_b32 s50, s53, 11")
    a("s_add_u32 s38, s55, s50")
    a("s_mul_i32 s39, s52, %d" % UR_CH)
    a("s_add_u32 s39, s39, s50")
    a("s_add_u32 s39, s39, %d" % UR)
    a("s_lshr_b32 s52, s58, 5")
    a("s_lshl_b32 s52, s52, 5")
    a("v_and_b32 v12, 31, v2")
    a("v_add_u32 v12, s52, v12")
    a("v_lshlrev_b32 v12, 6, v12")
    a("v_lshlrev_b32 v244, 4, v0")
    a("v_add_u32 v244, %d, v244" % (32 + HC))
    a("v_mul_u32_u24 v243, 4160, v11")
    a("v_lshl_add_u32 v243, v10, 1, v243")
    a("s_and_b32 s52, s49, 1")
    a("s_mul_i32 s52, s52, %d" % HC_CH)
    a("s_add_u32 s52, s52, %d" % HC)
    a("v_add_u32 v243, s52, v243")
    a("v_lshrrev_b32 v232, 5, v2")
    a("v_mul_u32_u24 v232, %d, v232" % UR_CH)
    a("v_and_b32 v233, 31, v2")
    a("v_lshl_add_u32 v232, v233, 4, v232")
    a("v_add_u32 v232, %d, v232" % (UR + 4096))
    for i in range(4): a("v_mov_b32 v%d, 0" % (236 + i))
    srd(a, 4, 22, 23, D * F * 2)
    a("v_lshrrev_b32 v7, 4, v2")
    a("v_and_b32 v233, 15, v2")
    a("v_lshlrev_b32 v234, 2, v7")
    a("v_xor_b32 v233, v233, v234")
    a("v_mul_u32_u24 v7, 3584, v7")
    a("v_lshl_add_u32 v7, v233, 4, v7")
    a("s_mul_i32 s46, s49, %d" % (4 * 3584))
    a("s_lshl_b32 s47, s60, 8")
    a("s_add_u32 s46, s46, s47")
    a("s_sub_u32 s46, s46, %d" % (16 * 3584))
    a("s_lshl_b32 s47, s49, 10")
    NLOW = 2 * cfg.r1n
    def w1dma(ks):
        def f():
            a("s_add_u32 m0, s47, %d" % (ks * 4096))
            if ks == NLOW: a("s_add_u32 s46, s46, %d" % ((NLOW + 1) * 16 * 3584))
            elif ks == 0: a("s_sub_u32 s46, s46, %d" % (27 * 16 * 3584))
            else: a("s_add_u32 s46, s46, %d" % (16 * 3584))
            a.vm("buffer_load_dwordx4 v7, s[4:7], s46 offen lds", "w1h" if ks >= NLOW else "w1")
        return f
    a("ds_write_b128 v232, v[236:239]")
    for c in range(2):
        w0 = 200 + 8 * c; b = 140 + 12 * c
        base = c * HC_CH
        a("ds_write_b128 v244, v[%d:%d] offset:%d" % (b, b + 3, base + 0 * 4160))
        a("ds_write_b128 v244, v[%d:%d] offset:%d" % (b + 4, b + 7, base + 1 * 4160))
        a("ds_write_b128 v244, v[%d:%d] offset:%d" % (b + 8, b + 11, base + 2 * 4160))
        a("ds_write_b128 v244, v[%d:%d] offset:%d" % (w0 + 2, w0 + 5, base + 3 * 4160))
    a("ds_write_b16 v243, v224")
    a("v_lshl_add_u32 v236, v10, 2, v11")
    a("v_bfe_u32 v237, v10, 1, 2")
    a("v_xor_b32 v236, v236, v237")
    a("v_lshlrev_b32 v236, 4, v236")
    a("s_lshl_b32 s36, s49, 13")
    a("s_add_u32 s36, s36, %d" % PB)
    a("v_add_u32 v236, s36, v236")
    a("v_and_b32 v238, 31, v0")
    a("v_lshlrev_b32 v237, 1, v238")
    a("v_bfe_u32 v238, v238, 2, 2")
    a("v_xor_b32 v237, v237, v238")
    a("v_lshlrev_b32 v237, 4, v237")
    a("v_lshrrev_b32 v238, 5, v0")
    a("v_lshl_add_u32 v237, v238, 10, v237")
    a("v_add_u32 v237, %d, v237" % PB)
    a("v_xor_b32 v238, 16, v237")
    a("s_mov_b32 s96, 0x%x" % WS_STA)
    a("s_mov_b32 s97, 0x%x" % WS_STB)
    a("s_add_u32 s98, s54, 0x%x" % WS_XT)
    a("s_add_u32 s99, s54, 0x%x" % WS_HT)
    a("s_add_u32 s14, s98, %d" % RS)
    a("s_add_u32 s15, s99, %d" % RS)
    a("v_add_u32 v234, s45, v245")
    a("v_xor_b32 v235, 64, v234")
    def w2tr_lines(abase, nks, b0, b1):
        out = []
        for ks in range(nks):
            for dt in range(2):
                r = abase + (ks * 2 + dt) * 4
                b = b0 if dt == 0 else b1
                out.append("ds_read_b64_tr_b16 a[%d:%d], v%d offset:%d" % (r, r + 1, b, ks * 2048))
                out.append("ds_read_b64_tr_b16 a[%d:%d], v%d offset:%d" % (r + 2, r + 3, b, ks * 2048 + 1024))
        return out
    S(a, "prepoll")
    UL = 168
    a("v_lshlrev_b32 v240, 4, v0")
    a("v_add_u32 v241, 4096, v240")
    a("s_mul_i32 s36, s58, %d" % (2 * RS2))
    a("s_add_u32 s36, s36, 0x%x" % WS_UL)
    a("s_add_u32 s37, s36, %d" % RS2)
    a("v_lshlrev_b32 v246, 3, v0")
    a("v_add_u32 v246, %d, v246" % UR)
    def ul_loads(tracked):
        for i in range(4):
            l = "buffer_load_dwordx4 v[%d:%d], v%d, %s, s%d offen sc0 sc1" % (UL + 4 * i, UL + 4 * i + 3, 240 + (i & 1), WS, 36 + (i >> 1))
            if tracked: a.vm(l, "ul")
            else: a(l)
    ul_loads(True)
    for i in range(2 * cfg.r1n): w2dma(45, i, "w2r1")()
    if cfg.wpre:
        a("s_mul_i32 s52, s3, 56")
        a("s_mul_i32 s53, s49, 14")
        a("s_add_u32 s52, s52, s53")
        a("v_min_u32 v226, 13, v2")
        a("v_add_u32 v226, s52, v226")
        a("v_lshlrev_b32 v226, 7, v226")
        a.vm("buffer_load_dword v228, v226, s[40:43], 0 offen", "pre")
        a.vm("buffer_load_dword v229, v226, s[4:7], 0 offen", "pre")
    lp = a.label("ULP"); chk = a.label("ULC"); done = a.label("ULD")
    a("s_mov_b32 s51, 0")
    a.vmwait("ul")
    a("s_branch %s" % chk)
    a(lp + ":")
    ul_loads(False)
    a("s_waitcnt vmcnt(0)")
    a(chk + ":")
    for i in range(4):
        a("v_xor_b32 v%d, s%d, v%d" % (184 + 2 * i, S_T, UL + 4 * i + 1))
        a("v_xor_b32 v%d, s%d, v%d" % (185 + 2 * i, S_T, UL + 4 * i + 3))
    a("v_or3_b32 v184, v184, v185, v186")
    a("v_or3_b32 v187, v187, v188, v189")
    a("v_or3_b32 v184, v184, v190, v191")
    a("v_or_b32 v184, v184, v187")
    a("v_cmp_ne_u32 vcc, 0, v184")
    a("s_nop 4")
    a("s_cmp_eq_u64 vcc, 0")
    a("s_cbranch_scc1 %s" % done)
    a("s_add_u32 s51, s51, 1")
    a("s_cmp_lt_u32 s51, 0x40000")
    a("s_cbranch_scc1 %s" % lp)
    a(done + ":")
    S(a, "B1")
    for i in range(4):
        a("v_mov_b32 v%d, v%d" % (UL + 4 * i + 1, UL + 4 * i + 2))
    for i in range(4):
        a("ds_write_b64 v246, v[%d:%d] offset:%d" % (UL + 4 * i, UL + 4 * i + 1, (i >> 1) * UR_CH + (i & 1) * 2048))
    XR = 168; SA = 176
    FR = 16
    w1q = [w1dma(ks) for ks in list(range(NLOW, 28)) + list(range(NLOW))]
    a("s_mov_b32 s53, 0x%x" % WS_FLAG)
    a("s_lshr_b32 s52, s58, 5")
    a("s_lshl_b32 s52, s52, 5")
    a("s_add_u32 s52, s52, %d" % (F1X_IDX - 32))
    a("v_mov_b32 v12, s52")
    a("v_mov_b32 v241, %d" % FS_IDX)
    a("v_cmp_gt_u32 vcc, 32, v2")
    a("v_cndmask_b32 v12, v12, v241, vcc")
    a("v_add_u32 v12, v12, v2")
    a("v_lshlrev_b32 v12, 6, v12")
    for _ in range(cfg.w1pre): w1q.pop(0)()
    nhi_left = 28 - NLOW - cfg.w1pre
    a.vmwait("p1x")
    a("s_waitcnt lgkmcnt(0)")
    a("s_barrier")
    a("s_lshl_b32 s52, s57, 5")
    a("s_add_u32 s52, s52, s56")
    a("s_add_u32 s52, s52, %d" % F1X_IDX)
    publish(a, 52)
    S(a, "URin")
    AM = {}
    for ks in range(cfg.r1n): AM[ks] = 128 + 8 * ks
    segs = [[0, 16], [16 + cfg.r1n, 32]]
    for k0, n in ((cfg.r1n, 16 - cfg.r1n), (16, 4), (22, 4), (20, 2), (26, 2)):
        for sg in segs:
            if sg[1] - sg[0] >= n:
                for i in range(n): AM[k0 + i] = 8 * (sg[0] + i)
                sg[0] += n
                break
        else:
            raise RuntimeError("no room for W2 group")
    AB = [0, 32]; BB = [64, 96]
    def readA(st, rho, aa):
        r = AB[st] + 4 * aa
        off = 64 * rho + 512 * aa
        return ["ds_read_b64 a[%d:%d], v%d offset:%d" % (r, r + 1, A_, off),
                "ds_read_b64 a[%d:%d], v%d offset:%d" % (r + 2, r + 3, A_, off + 8)]
    def readB(st, rho, b):
        r = BB[st] + 4 * b
        return ["ds_read_b128 a[%d:%d], v%d offset:%d" % (r, r + 3, B_, 64 * rho + 512 * (7 - b))]
    def mfma(t, areg, breg, av=False):
        c = "0" if av else "v[%d:%d]" % (ACC + 4 * t, ACC + 4 * t + 3)
        return "v_mfma_f32_16x16x32_bf16 v[%d:%d], %s[%d:%d], a[%d:%d], %s" % (ACC + 4 * t, ACC + 4 * t + 3, "v" if av else "a", areg, areg + 3, breg, breg + 3, c)
    def fs_issue():
        a.vm("buffer_load_dword v242, v12, %s, s53 offen sc0 sc1" % WS, "fs")
    def x_load(g):
        def f():
            a.vm("buffer_load_dwordx4 v[%d:%d], v13, %s, s%d offen" % (XR + 4 * g, XR + 4 * g + 3, WS, 98 if g == 0 else 14), "ep")
        return f
    def st_load(g, hlf, which):
        def f():
            reg = SA + 16 * which + 4 * hlf
            a.vm("buffer_load_dwordx4 v[%d:%d], v9, %s, s%d offen offset:%d" % (reg, reg + 3, WS, 96 + which, 16 * hlf), "ep")
        return f
    def cm_load():
        a("s_lshl_b32 s36, s60, 2")
        a("s_add_u32 s36, s36, s49")
        a("s_lshl_b32 s36, s36, 7")
        a("s_add_u32 s36, s36, 0x%x" % WS_CM)
        a("v_and_b32 v12, 31, v2")
        a("v_lshlrev_b32 v12, 2, v12")
        a.vm("buffer_load_dword v3, v12, %s, s36 offen" % WS, "cm")
    def fc_issue():
        a("v_and_b32 v12, 31, v2")
        a("v_add_u32 v12, %d, v12" % FC_IDX)
        a("v_lshlrev_b32 v12, 6, v12")
        a.vm("buffer_load_dword v242, v12, %s, s53 offen sc0 sc1" % WS, "fc")
    if cfg.xp == 1: w1q_all = list(w1q); w1q = w1q[:1] + w1q[-1:]
    nhi = nhi_left
    r1rd = [(lambda l: (lambda: a(l)))(l) for l in w2tr_lines(128, cfg.r1n, 234, 235)]
    sides = {0: w1q[:nhi // 2],
             1: [lambda: a.vmwait("w2r1")] + r1rd + w1q[nhi // 2:nhi],
             2: [fs_issue] + w1q[nhi:],
             3: [x_load(0), x_load(1)] + [st_load(0, h, w) for h in range(2) for w in range(2)] + [fc_issue]}
    for b in range(8):
        for l in readB(0, 0, b): a(l)
    for aa in range(8):
        for l in readA(0, 0, aa): a(l)
    for rho in range(4):
        st = rho & 1
        nxt = []
        if rho < 3:
            for b in range(8): nxt += readB(1 - st, rho + 1, b)
            for aa in range(8): nxt += readA(1 - st, rho + 1, aa)
        ms = []
        if rho == 0:
            for t in range(8): ms.append((mfma(t, AD, BB[st] + 4 * t, True), None))
        for aa in range(8):
            for t in range(aa, 8):
                ms.append((mfma(t, AB[st] + 4 * aa, BB[st] + 4 * (t - aa)), aa))
        a("s_waitcnt lgkmcnt(%d)" % (15 if rho == 0 else 0))
        S(a, "rho%d" % rho)
        if rho == 2: a("s_barrier")
        if rho == 3:
            a("s_lshl_b32 s52, s49, 6")
            a("v_xor_b32 v247, s52, v5")
            a("v_add_u32 v248, 0x10000, v247")
            poll_late(a, 12, 53, 242, "fs")
            a("s_barrier")
            nxt = []
            for ks in range(NLOW, 28):
                b = 247 if ks < 16 else 248
                nxt.append("ds_read_b64_tr_b16 v[%d:%d], v%d offset:%d" % (FR + 4 * ks, FR + 4 * ks + 1, b, (ks & 15) * 4096))
                nxt.append("ds_read_b64_tr_b16 v[%d:%d], v%d offset:%d" % (FR + 4 * ks + 2, FR + 4 * ks + 3, b, (ks & 15) * 4096 + 2048))
        side = list(sides[rho]); step = max(1, len(ms) // (len(side) + 1))
        ni = 0; waited = -1
        for i, (m, aa) in enumerate(ms):
            if rho == 0 and aa is not None and aa > waited and aa <= 1:
                a("s_waitcnt lgkmcnt(%d)" % (14 if aa == 0 else 0))
                waited = aa
            a(m)
            if (rho > 0 or waited == 1) and ni < len(nxt):
                a(nxt[ni]); ni += 1
                if rho == 3 and ni < len(nxt) and i % 4 == 0:
                    a(nxt[ni]); ni += 1
            if (i + 1) % step == 0 and side:
                side.pop(0)()
        while ni < len(nxt):
            a(nxt[ni]); ni += 1
        while side: side.pop(0)()
    S(a, "conv")
    a.vmwait("w1")
    a("s_barrier")
    for ks in range(NLOW):
        b = 247 if ks < 16 else 248
        a("ds_read_b64_tr_b16 v[%d:%d], v%d offset:%d" % (FR + 4 * ks, FR + 4 * ks + 1, b, (ks & 15) * 4096))
        a("ds_read_b64_tr_b16 v[%d:%d], v%d offset:%d" % (FR + 4 * ks + 2, FR + 4 * ks + 3, b, (ks & 15) * 4096 + 2048))
    for t in range(8):
        a("ds_write_b128 v236, v[%d:%d] offset:%d" % (ACC + 4 * t, ACC + 4 * t + 3, 1024 * t))
    S(a, "pw")
    a.vmwait("ep")
    X = 224
    Z = 208
    a("s_waitcnt lgkmcnt(0)")
    a("s_barrier")
    S(a, "pbar")
    ZR = [136, 152]
    for g in range(2):
        for hf in range(2):
            a("ds_read_b128 v[%d:%d], v237 offset:%d" % (ZR[g] + 8 * hf, ZR[g] + 8 * hf + 3, hf * 8192 + g * 16384))
            a("ds_read_b128 v[%d:%d], v238 offset:%d" % (ZR[g] + 8 * hf + 4, ZR[g] + 8 * hf + 7, hf * 8192 + g * 16384))
    for g in range(2):
        Xg = 208 + 16 * g
        for i in range(4):
            a("v_lshlrev_b32 v%d, 16, v%d" % (Xg + 2 * i, XR + 4 * g + i))
            a("v_and_b32 v%d, 0xffff0000, v%d" % (Xg + 2 * i + 1, XR + 4 * g + i))
        for i in range(4):
            A2 = SA + 2 * i; B2 = SA + 16 + 2 * i
            a("v_pk_fma_f32 v[%d:%d], v[%d:%d], v[%d:%d], v[%d:%d]" % (Xg + 8 + 2 * i, Xg + 9 + 2 * i, Xg + 2 * i, Xg + 2 * i + 1, A2, A2 + 1, B2, B2 + 1))
    for g in range(2):
        Xg = 208 + 16 * g
        a("s_waitcnt lgkmcnt(%d)" % (4 if g == 0 else 0))
        z = ZR[g]
        for i in range(4):
            a("v_pk_add_f32 v[%d:%d], v[%d:%d], v[%d:%d]" % (z + 2 * i, z + 2 * i + 1, z + 2 * i, z + 2 * i + 1, z + 8 + 2 * i, z + 9 + 2 * i))
        for i in range(4):
            a("v_pk_fma_f32 v[%d:%d], v[%d:%d], v[%d:%d], v[%d:%d]" % (z + 2 * i, z + 2 * i + 1, Xg + 8 + 2 * i, Xg + 9 + 2 * i, z + 2 * i, z + 2 * i + 1, Xg + 2 * i, Xg + 2 * i + 1))
        for i in range(4):
            a("v_cvt_pk_bf16_f32 v%d, v%d, v%d" % (z + 8 + i, z + 2 * i, z + 2 * i + 1))
        a.vm("buffer_store_dwordx4 v[%d:%d], v13, %s, s%d offen %s" % (z + 8, z + 11, WS, 99 if g == 0 else 15, SC), "p2st")
    S(a, "p2st")
    poll_late(a, 12, 53, 242, "fc")
    cm_load()
    r2n = 16 - cfg.r1n
    a("s_mul_i32 s45, s49, %d" % (r2n * 2048))
    r2q = [w2dma(45, i, "w2r2") for i in range(2 * r2n)]
    for _ in range(cfg.r2pre): r2q.pop(0)()
    def f2_addr():
        a("v_lshlrev_b32 v12, 6, v2")
        a("v_add_u32 v13, %d, v12" % (64 * 64))
        a("v_add_u32 v14, %d, v12" % (128 * 64))
        a("v_min_u32 v15, 31, v2")
        a("v_lshlrev_b32 v15, 6, v15")
        a("v_add_u32 v15, %d, v15" % (192 * 64))
    def f2_issue(soff):
        lab = a.label("FI")
        a("s_cmp_lg_u32 s49, 0")
        a("s_cbranch_scc1 %s" % lab)
        for i, v in enumerate((12, 13, 14, 15)):
            a("buffer_load_dword v%d, v%d, %s, s%d offen sc0 sc1" % (246 + i, v, WS, soff))
        a(lab + ":")
    def f2_check(soff):
        lp = a.label("POLL"); done = a.label("PDONE"); chk = a.label("PCHK")
        a("s_cmp_lg_u32 s49, 0")
        a("s_cbranch_scc1 %s" % done)
        a("s_mov_b32 s51, 0")
        a("s_branch %s" % chk)
        a(lp + ":")
        for i, v in enumerate((12, 13, 14, 15)):
            a("buffer_load_dword v%d, v%d, %s, s%d offen sc0 sc1" % (246 + i, v, WS, soff))
        a(chk + ":")
        a("s_waitcnt vmcnt(0)")
        for i in range(4): a("v_xor_b32 v%d, s%d, v%d" % (246 + i, S_T, 246 + i))
        for i in range(1, 4): a("v_or_b32 v246, v246, v%d" % (246 + i))
        a("v_cmp_ne_u32 vcc, 0, v246")
        a("s_nop 4")
        a("s_cmp_eq_u64 vcc, 0")
        a("s_cbranch_scc1 %s" % done)
        a("s_add_u32 s51, s51, 1")
        a("s_cmp_lt_u32 s51, 0x40000")
        a("s_cbranch_scc1 %s" % lp)
        a(done + ":")
    a("s_lshl_b32 s46, s49, 13")
    a("s_lshl_b32 s47, s49, 12")
    a("s_add_u32 s47, s47, %d" % YB)
    a("v_lshrrev_b32 v10, 3, v2")
    a("v_and_b32 v241, 7, v2")
    a("v_bfe_u32 v242, v2, 4, 1")
    a("v_lshlrev_b32 v242, 2, v242")
    a("v_xor_b32 v241, v241, v242")
    a("v_mul_u32_u24 v10, %d, v10" % RS)
    a("v_lshl_add_u32 v10, v241, 4, v10")
    a("s_mul_i32 s38, s49, %d" % (8 * RS))
    a("s_lshl_b32 s39, s59, 7")
    a("s_add_u32 s38, s38, s39")
    a("s_add_u32 s38, s38, 0x%x" % (WS_HT - 32 * RS))
    a("s_lshl_b32 s39, s49, 10")
    a.vmwait("p2st")
    a("s_waitcnt lgkmcnt(0)")
    a("s_barrier")
    a("s_add_u32 s52, s3, %d" % F2_IDX)
    publish(a, 52)
    S(a, "F2pub")
    if cfg.upto == 2:
        a("s_branch L_DONE")
    def hdma(half, i):
        def f():
            a("s_add_u32 m0, s39, %d" % ((HA, HB_)[half] + i * 4096))
            if half == 1 and i == 0: a("s_sub_u32 s38, s38, %d" % (13 * 32 * RS - 2048))
            else: a("s_add_u32 s38, s38, %d" % (32 * RS))
            a.vm("buffer_load_dwordx4 v10, %s, s38 offen lds" % WS, "h%d_%d" % (half, i))
        return f
    def w2round(tag):
        return [w2dma(46, i, tag) for i in range(8)] + [w2dma(47, i, tag) for i in range(4)]
    def w2round_reads(abaseX, abaseY):
        return w2tr_lines(abaseX, 4, 9, 7) + w2tr_lines(abaseY, 2, 11, 3)
    a("v_mov_b32 v128, 0x00003f80")
    a("v_mov_b32 v129, 0x3f800000")
    cen = []
    for g in range(28):
        for i in range(4):
            r = FR + 4 * g + i; t = 132 + 8 * (g & 1) + 2 * i
            cen.append("v_dot2_f32_bf16 v%d, v%d, v128, v3" % (t, r))
            cen.append("v_dot2_f32_bf16 v%d, v%d, v129, v3" % (t + 1, r))
        if g > 0:
            for i in range(4):
                r = FR + 4 * (g - 1) + i; t = 132 + 8 * ((g - 1) & 1) + 2 * i
                cen.append("v_cvt_pk_bf16_f32 v%d, v%d, v%d" % (r, t, t + 1))
    for i in range(4):
        cen.append("s_nop 0")
    for i in range(4):
        r = FR + 4 * 27 + i; t = 132 + 8 * (27 & 1) + 2 * i
        cen.append("v_cvt_pk_bf16_f32 v%d, v%d, v%d" % (r, t, t + 1))
    a.vmwait("cm")
    interleave(a, cen, r2q, 336 // (len(r2q) + 1) // 2)
    S(a, "cen")
    a("v_add_u32 v9, s46, v245")
    a("v_xor_b32 v7, 64, v9")
    a("v_add_u32 v11, s47, v245")
    a("v_xor_b32 v3, 64, v11")
    a("v_add_u32 v128, %d, v8" % HA)
    a("v_xor_b32 v129, 64, v128")
    a("v_add_u32 v130, %d, v8" % HB_)
    a("v_xor_b32 v131, 64, v130")
    a("v_add_u32 v247, s45, v245")
    a("v_xor_b32 v248, 64, v247")
    a.vmwait("w2r2")
    S(a, "w2a_in")
    for l in w2tr_lines(0, r2n, 247, 248): a(l)
    f2_addr()
    a("s_mov_b32 s53, 0x%x" % (WS_FLAG + F2_IDX * 64))
    a.lkall()
    S(a, "w2a_tr")
    poll(a, [12, 13, 14, 15], 53)
    S(a, "B2")
    for i in range(14): hdma(0, i)()
    hB = [hdma(1, i) for i in range(14)]
    for i in range(cfg.hpreB): hB.pop(0)()
    lab = a.label("EPO")
    a("s_or_b32 s52, s3, s49")
    a("s_cmp_lg_u32 s52, 0")
    a("s_cbranch_scc1 %s" % lab)
    a("s_mov_b32 s52, %d" % E_IDX)
    publish(a, 52)
    a(lab + ":")
    NB = 3
    HBUF = 200
    def hreads(ks, ps):
        out = []
        for i in range(2):
            r = HBUF + (ks % NB) * 8 + 4 * i
            vb = 128 + 2 * ps + i
            tag = "hr%d_%d_%d" % (ps, ks, i)
            out.append(("ds_read_b64_tr_b16 v[%d:%d], v%d offset:%d" % (r, r + 1, vb, ks * 2048), tag))
            out.append(("ds_read_b64_tr_b16 v[%d:%d], v%d offset:%d" % (r + 2, r + 3, vb, ks * 2048 + 1024), tag))
        return out
    ACCP = [136, 168]
    r3 = w2round("w2r3"); r4 = w2round("w2r4")
    sync1 = {0: 1, 4: 5, 12: 13}
    sync0 = {0: 0, 2: 2, 6: 6, 14: 13}
    for ps in range(2):
        acc = ACCP[ps]
        if ps == 0:
            a.vmwait("h0_%d" % sync0[0]); a("s_barrier")
            S(a, "h_in")
        if ps == 1:
            r3rd = w2round_reads(AM[16], AM[20])
            a.vmwait("h1_%d" % sync1[0]); a("s_barrier")
            S(a, "ps1s")
        for k0 in range(NB - 1):
            for l, t in hreads(k0, ps): a.lk(l, t)
        for ks in range(28):
            S(a, "P%d_%d" % (ps, ks))
            kn = ks + NB - 1
            nxt = []
            if kn < 28:
                if ps == 0 and kn in sync0 and kn > 0:
                    a.vmwait("h0_%d" % sync0[kn]); a("s_barrier")
                if ps == 1 and kn in sync1 and kn > 0:
                    a.vmwait("h1_%d" % sync1[kn]); a("s_barrier")
                nxt = hreads(kn, ps)
            if ps == 1 and ks == 1: a.vmwait("w2r3")
            if ps == 1 and ks == 14: a.lkneed("r3")
            for i in range(2):
                a.lkneed("hr%d_%d_%d" % (ps, ks, i))
                r = HBUF + (ks % NB) * 8 + 4 * i
                a("v_mfma_f32_32x32x16_bf16 v[%d:%d], v[%d:%d], v[%d:%d], %s" % (acc + 16 * i, acc + 16 * i + 15, FR + 4 * ks, FR + 4 * ks + 3, r, r + 3, "0" if ks == 0 else "v[%d:%d]" % (acc + 16 * i, acc + 16 * i + 15)))
                if nxt:
                    a.lk(*nxt[2 * i]); a.lk(*nxt[2 * i + 1])
                if ps == 1 and 1 <= ks < 13:
                    if r3rd: a.lk(r3rd.pop(0), "r3")
            if ps == 0:
                if hB: hB.pop(0)()
                elif r3: r3.pop(0)()
            if ps == 1 and 14 <= ks < 26: r4[ks - 14]()
            if ps == 1 and ks == cfg.pubA:
                a.vmwait("p3a")
                a("s_barrier")
                a("s_lshl_b32 s37, s59, 4")
                a("s_add_u32 s37, s37, s60")
                a("s_add_u32 s37, s37, %d" % F3_IDX)
                publish(a, 37)
        S(a, "ps%d" % ps)
        if ps == 0:
            while hB: hB.pop(0)()
            while r3: r3.pop(0)()
            a("s_lshl_b32 s43x, s60, 2" if False else "s_lshl_b32 s55, s60, 2")
            a("s_add_u32 s55, s55, s49")
            a("s_lshl_b32 s55, s55, 11")
            a("s_add_u32 s55, s55, 0x%x" % WS_H1F)
        for i in range(2):
            a("s_lshl_b32 s52, s59, 1")
            a("s_add_u32 s52, s52, %d" % (32 * ps + i))
            a("s_mul_i32 s52, s52, %d" % (112 * 1024))
            a("s_add_u32 s52, s52, s55")
            o = 224 + 8 * i
            for q in range(8):
                a("v_cvt_pk_bf16_f32 v%d, v%d, v%d" % (o + q, acc + 16 * i + 2 * q, acc + 16 * i + 2 * q + 1))
            for q in range(8):
                a("v_pk_max_i16 v%d, v%d, 0" % (o + q, o + q))
            a.vm("buffer_store_dwordx4 v[%d:%d], v4, %s, s52 offen %s" % (o, o + 3, WS, SC), "p3a" if ps == 0 else "p3st")
            a.vm("buffer_store_dwordx4 v[%d:%d], v4, %s, s52 offen offset:1024 %s" % (o + 4, o + 7, WS, SC), "p3a" if ps == 0 else "p3st")
        S(a, "ps%de" % ps)
    S(a, "P3mm")
    a("v_min_u32 v15, 13, v2")
    a("v_lshlrev_b32 v15, 6, v15")
    a("s_lshr_b32 s36, s61, 1")
    a("s_lshl_b32 s38, s36, 10")
    a("s_add_u32 s38, s38, 0x%x" % (WS_FLAG + F3_IDX * 64))
    a.vm("buffer_load_dword v14, v15, %s, s38 offen sc0 sc1" % WS, "f3a")
    a("s_and_b32 s52, s49, 1")
    a("s_lshl_b32 s52, s52, 6")
    a("v_xor_b32 v12, s52, v8")
    a("s_lshr_b32 s52, s49, 1")
    a("s_mul_i32 s52, s52, %d" % (HB_ - HA))
    a("s_lshl_b32 s53, s60, 12")
    a("s_add_u32 s52, s52, s53")
    a("s_add_u32 s52, s52, %d" % HA)
    a("v_add_u32 v12, s52, v12")
    for k in range(2):
        a("ds_read_b64_tr_b16 v[%d:%d], v12 offset:%d" % (200 + 4 * k, 201 + 4 * k, k * 2048))
        a("ds_read_b64_tr_b16 v[%d:%d], v12 offset:%d" % (202 + 4 * k, 203 + 4 * k, k * 2048 + 1024))
    a.vmwait("w2r4")
    for l in w2round_reads(AM[22], AM[26]): a(l)
    a.vmwait("p3st")
    a("s_waitcnt lgkmcnt(0)")
    a("s_barrier")
    a("s_lshl_b32 s50, s59, 4")
    a("s_add_u32 s50, s50, s60")
    a("s_add_u32 s37, s50, %d" % F3B_IDX)
    publish(a, 37)
    S(a, "F3pub")
    if cfg.upto == 3:
        a("s_branch L_DONE")
    RING = 30; RB = 80
    a("s_lshr_b32 s36, s61, 1")
    a("s_lshl_b32 s36, s36, 1")
    a("s_and_b32 s39, s61, 1")
    a("s_add_u32 s36, s36, s39")
    a("s_mul_i32 s39, s49, %d" % (28 * 1024))
    a("s_mul_i32 s37, s36, %d" % (112 * 1024))
    a("s_add_u32 s39, s39, s37")
    a("s_add_u32 s39, s39, 0x%x" % WS_H1F)
    def hload(j):
        st, ks = divmod(j, 28)
        r = RB + (j % RING) * 4
        if j == 28: a("s_add_u32 s39, s39, %d" % (32 * 112 * 1024 - 28 * 1024))
        a.vm("buffer_load_dwordx4 v[%d:%d], v4, %s, s39 offen offset:%d" % (r, r + 3, WS, (ks % 4) * 1024), "H%d" % j)
        if ks % 4 == 3: a("s_add_u32 s39, s39, 4096")
    poll_late(a, 15, 38, 14, "f3a")
    S(a, "B3")
    for j in range(cfg.Hpre): hload(j)
    S(a, "H_iss")
    a("v_mov_b32 v208, 0x3f803f80")
    for i in range(4): a("v_mov_b32 v%d, 0" % (210 + i))
    for i in range(8):
        a("v_dot2_f32_bf16 v%d, v%d, v208, v%d" % (210 + 2 * (i & 1), 200 + i, 210 + 2 * (i & 1)))
        a("v_dot2_f32_bf16 v%d, v%d, v%d, v%d" % (211 + 2 * (i & 1), 200 + i, 200 + i, 211 + 2 * (i & 1)))
    a("v_pk_add_f32 v[210:211], v[210:211], v[212:213]")
    a("v_mov_b32 v212, v210")
    a("v_mov_b32 v213, v211")
    a("v_permlane32_swap_b32 v210, v212")
    a("v_permlane32_swap_b32 v211, v213")
    a("v_pk_add_f32 v[210:211], v[210:211], v[212:213]")
    a("s_lshr_b32 s52, s49, 1")
    a("s_lshl_b32 s52, s52, 5")
    a("s_and_b32 s50, s49, 1")
    a("s_add_u32 s52, s52, s50")
    a("s_lshl_b32 s50, s59, 1")
    a("s_add_u32 s52, s52, s50")
    a("s_lshl_b32 s52, s52, 8")
    a("s_lshl_b32 s50, s60, 14")
    a("s_add_u32 s52, s52, s50")
    a("s_add_u32 s52, s52, 0x%x" % WS_ST2P)
    a("v_and_b32 v12, 31, v2")
    a("v_lshlrev_b32 v12, 3, v12")
    a("s_mov_b32 exec_hi, 0")
    a.vm("buffer_store_dwordx2 v[210:211], v12, %s, s52 offen %s" % (WS, SC), "st2p")
    a("s_mov_b64 exec, -1")
    a("v_lshrrev_b32 v12, 3, v2")
    a("v_and_b32 v13, 7, v2")
    a("v_bfe_u32 v10, v2, 4, 1")
    a("v_lshlrev_b32 v10, 2, v10")
    a("v_xor_b32 v13, v13, v10")
    a("v_mul_u32_u24 v12, %d, v12" % RS)
    a("v_lshrrev_b32 v10, 2, v13")
    a("v_lshl_add_u32 v12, v10, 11, v12")
    a("v_and_b32 v13, 3, v13")
    a("v_lshl_add_u32 v12, v13, 4, v12")
    a("s_lshl_b32 s45, s62, 6")
    a("s_lshl_b32 s46, s49, 4")
    a("s_add_u32 s45, s45, s46")
    a("s_mul_i32 s45, s45, %d" % RS)
    a("s_lshl_b32 s46, s36, 6")
    a("s_add_u32 s45, s45, s46")
    a("s_add_u32 s45, s45, 0x%x" % WS_HT)
    a("s_lshl_b32 s46, s49, 11")
    a("s_add_u32 s46, s46, %d" % HRES)
    def hres(i):
        a("s_add_u32 m0, s46, %d" % (i * 1024))
        a.vm("buffer_load_dwordx4 v12, %s, s45 offen lds" % WS, "hres")
        if i == 0: a("s_add_u32 s45, s45, %d" % (8 * RS))
    ACC4 = 16
    a("s_and_b32 s47, s49, 1")
    a("s_lshr_b32 s63, s49, 1")
    a("s_lshl_b32 s52, s47, 5")
    a("s_add_u32 s36, s36, s52")
    a("v_and_b32 v13, 31, v2")
    a("v_lshrrev_b32 v9, 5, v2")
    a("v_mul_u32_u24 v10, %d, v9" % (7 * 16384))
    a("v_lshl_add_u32 v10, v13, 3, v10")
    a("s_add_u32 s38, s38, %d" % ((F3B_IDX - F3_IDX) * 64))
    SP = 200
    def st2loads():
        a("s_lshl_b32 s37, s36, 8")
        a("s_add_u32 s37, s37, 0x%x" % WS_ST2P)
        for i in range(7):
            a.vm("buffer_load_dwordx2 v[%d:%d], v10, %s, s37 offen" % (SP + 2 * i, SP + 2 * i + 1, WS), "st2")
            if i != 6: a("s_add_u32 s37, s37, 16384")
    def red_write(dtp, st):
        lab = a.label("RW")
        t = 2 * dtp + st
        if dtp == 0:
            a("s_cmp_eq_u32 s47, %d" % st)
            a("s_cbranch_scc1 %s" % lab)
        a("s_lshr_b32 s52, s49, 1")
        a("s_xor_b32 s52, s52, %d" % dtp)
        a("s_lshl_b32 s52, s52, 1")
        a("s_add_u32 s52, s52, %d" % st)
        a("s_sub_u32 s53, s49, s52")
        a("s_and_b32 s53, s53, 3")
        a("s_mul_i32 s52, s52, 3")
        a("s_add_u32 s52, s52, s53")
        a("s_lshl_b32 s52, s52, 12")
        a("s_sub_u32 s52, s52, 4096")
        a("v_add_u32 v14, s52, v4")
        for q in range(4):
            a("ds_write_b128 v14, v[%d:%d] offset:%d" % (ACC4 + 16 * t + 4 * q, ACC4 + 16 * t + 4 * q + 3, q * 1024))
        a(lab + ":")
    RED = red_write
    issued = cfg.Hpre
    S(a, "w2b_tr")
    for j in range(56):
        st, ks = divmod(j, 28)
        if j == cfg.chkB - 6:
            a.vm("buffer_load_dword v14, v15, %s, s38 offen sc0 sc1" % WS, "f3b")
        if j == cfg.chkB:
            poll_late(a, 15, 38, 14, "f3b")
            S(a, "out_stX")
        a.vmwait("H%d" % j)
        S(a, "H%d" % {0: 0, 14: 7, 28: 14, 42: 21, 55: 27}.get(j, 99))
        S(a, "J%d" % j)
        r = RB + (j % RING) * 4
        ab = AM[ks]
        for dt in range(2):
            t = dt * 2 + st
            a("v_mfma_f32_32x32x16_bf16 v[%d:%d], a[%d:%d], v[%d:%d], %s" % (ACC4 + 16 * t, ACC4 + 16 * t + 15, ab + 4 * dt, ab + 4 * dt + 3, r, r + 3, "0" if ks == 0 else "v[%d:%d]" % (ACC4 + 16 * t, ACC4 + 16 * t + 15)))
            if issued < (56 if j >= cfg.chkB else 28) and issued < j + RING and (dt == 0 or cfg.chkB <= j < cfg.chkB + cfg.dbl):
                hload(issued); issued += 1
        if j == 8:
            a.vmwait("st2p")
            a("s_barrier")
            a("s_lshl_b32 s37, s59, 4")
            a("s_add_u32 s37, s37, s60")
            a("s_add_u32 s37, s37, %d" % F3C_IDX)
            publish(a, 37)
        if j == cfg.f3cj:
            a("s_add_u32 s43, s38, %d" % ((F3C_IDX - F3B_IDX) * 64))
            a.vm("buffer_load_dword v11, v15, %s, s43 offen sc0 sc1" % WS, "f3c")
        if j == 53:
            poll_late(a, 15, 43, 11, "f3c")
            st2loads()
        if j in (cfg.f3cj - 2, cfg.f3cj - 1): hres(j - (cfg.f3cj - 2))
        if j == 44: red_write(1, 0)
        if j == 47: red_write(0, 0)
    a("s_nop 9")
    red_write(1, 1)
    red_write(0, 1)
    labo = a.label("OWN"); labe = a.label("OWNE")
    a("s_cmp_eq_u32 s47, 0")
    a("s_cbranch_scc1 %s" % labo)
    for i in range(16): a("v_mov_b32 v%d, v%d" % (ACC4 + i, ACC4 + 16 + i))
    a(labo + ":")
    S(a, "red_w")
    a("s_lshl_b32 s52, s47, 6")
    a("v_xor_b32 v15, s52, v8")
    a("s_lshl_b32 s52, s63, 12")
    a("s_add_u32 s52, s52, %d" % HRES)
    a("v_add_u32 v15, s52, v15")
    a("s_mul_i32 s52, s49, %d" % (3 * 4096))
    a("v_add_u32 v14, s52, v4")
    srd(a, 40, 26, 27, NB_SD)
    a("v_mul_u32_u24 v7, 896, v13")
    a("v_lshrrev_b32 v9, 5, v2")
    a("v_lshl_add_u32 v7, v9, 4, v7")
    a("s_mul_i32 s52, s36, %d" % (32 * 896))
    a("s_lshl_b32 s53, s62, 1")
    a("s_add_u32 s53, s53, s63")
    a("s_lshl_b32 s53, s53, 6")
    a("s_add_u32 s52, s52, s53")
    a.vmwait("hres")
    a("s_waitcnt lgkmcnt(0)")
    a("s_barrier")
    S(a, "red_b")
    T = 96
    for j4 in range(4):
        a("ds_read_b64_tr_b16 v[%d:%d], v15 offset:%d" % (240 + 2 * j4, 241 + 2 * j4, j4 * 1024))
    for d in range(3):
        for q in range(4):
            a("ds_read_b128 v[%d:%d], v14 offset:%d" % (T + 16 * d + 4 * q, T + 16 * d + 4 * q + 3, d * 4096 + q * 1024))
    a.vmwait("st2")
    for i in range(1, 7):
        a("v_pk_add_f32 v[%d:%d], v[%d:%d], v[%d:%d]" % (SP, SP + 1, SP, SP + 1, SP + 2 * i, SP + 2 * i + 1))
    a("v_mov_b32 v%d, v%d" % (SP + 2, SP))
    a("v_mov_b32 v%d, v%d" % (SP + 3, SP + 1))
    a("v_permlane32_swap_b32 v%d, v%d" % (SP, SP + 2))
    a("v_permlane32_swap_b32 v%d, v%d" % (SP + 1, SP + 3))
    a("v_pk_add_f32 v[%d:%d], v[%d:%d], v[%d:%d]" % (SP, SP + 1, SP, SP + 1, SP + 2, SP + 3))
    a("v_mul_f32 v%d, 0x3b124925, v%d" % (SP, SP))
    a("v_mul_f32 v%d, 0x3b124925, v%d" % (SP + 1, SP + 1))
    a("v_fma_f32 v%d, -v%d, v%d, v%d" % (SP + 1, SP, SP, SP + 1))
    a("v_max_f32 v%d, 0, v%d" % (SP + 1, SP + 1))
    a("v_add_f32 v%d, 0x3727c5ac, v%d" % (SP + 1, SP + 1))
    a("v_rsq_f32 v248, v%d" % (SP + 1))
    a("s_waitcnt lgkmcnt(12)")
    for dw in range(8):
        hx = 160 + 2 * dw
        a("v_lshlrev_b32 v%d, 16, v%d" % (hx, 240 + dw))
        a("v_and_b32 v%d, 0xffff0000, v%d" % (hx + 1, 240 + dw))
    a("s_waitcnt lgkmcnt(8)")
    for i in range(0, 16, 2):
        a("v_pk_add_f32 v[%d:%d], v[%d:%d], v[%d:%d]" % (ACC4 + i, ACC4 + i + 1, ACC4 + i, ACC4 + i + 1, T + i, T + i + 1))
    a("s_waitcnt lgkmcnt(0)")
    for i in range(0, 16, 2):
        a("v_pk_add_f32 v[%d:%d], v[%d:%d], v[%d:%d]" % (T + 16 + i, T + 17 + i, T + 16 + i, T + 17 + i, T + 32 + i, T + 33 + i))
    for i in range(0, 16, 2):
        a("v_pk_add_f32 v[%d:%d], v[%d:%d], v[%d:%d]" % (ACC4 + i, ACC4 + i + 1, ACC4 + i, ACC4 + i + 1, T + 16 + i, T + 17 + i))
    S(a, "red_r")
    for dw in range(8):
        hx = 160 + 2 * dw
        a("v_pk_fma_f32 v[%d:%d], v[%d:%d], v[248:249], v[%d:%d] op_sel_hi:[1,0,1]" % (hx, hx + 1, ACC4 + 2 * dw, ACC4 + 2 * dw + 1, hx, hx + 1))
    for dw in range(8):
        hx = 160 + 2 * dw
        a("v_cvt_pk_bf16_f32 v%d, v%d, v%d" % (180 + dw, hx, hx + 1))
    for jp in range(2):
        A0 = 180 + 4 * jp
        a("v_permlane32_swap_b32 v%d, v%d" % (A0, A0 + 2))
        a("v_permlane32_swap_b32 v%d, v%d" % (A0 + 1, A0 + 3))
    ob = ["", " sc1", " sc0 sc1", " nt"][cfg.outsc]
    a("buffer_store_dwordx4 v[180:183], v7, s[40:43], s52 offen" + ob)
    a("buffer_store_dwordx4 v[184:187], v7, s[40:43], s52 offen offset:32" + ob)
    S(a, "out_st")
    a("L_DONE:")
    if common.STAMPS:
        fstamp_flush(a)
    a("L_END:")
    a("s_endpgm")
    gen_stats(a)
    a("L_CODE_END:")
    a("s_endpgm")
    return a.lines, dict(vgpr=256, sgpr=102, lds=LDS_TOTAL, grid=256, agpr=256)

HEADER = """; Kernarg layout (96 bytes, ptrs only, base s[0:1]):
; an epoch word in d_ws so that words left by earlier launches never match)."""

def build(out, cfg=Cfg):
    lines, info = gen(cfg)
    lines = fix_hazards(lines, verbose=True)
    txt = HEADER.split("\n") + ["; generated by a hand-written generator (gen/fused26.py)",
           "; @launch grid=(%d,1,1) block=(256,1,1) lds=%d" % (info["grid"], info["lds"]),
           '.amdgcn_target "amdgcn-amd-amdhsa--gfx950"', ".text"]
    txt += lines
    txt.append('.section .rodata,"a"')
    txt += kernel_desc(KN, info["vgpr"], info["sgpr"], accum=256, agpr=info["agpr"])
    open(out, "w").write("\n".join(txt) + "\n")

if __name__ == "__main__":
    import sys, os
    common.STAMPS = int(os.environ.get("STAMPS", "0"))
    out = sys.argv[1]
    for kv in sys.argv[2:]:
        k, v = kv.split("=")
        setattr(Cfg, k, int(v))
    build(out)
```

```python
from common import *
F3C_IDX = 1280
WS_UL = 0x1500000
RS2 = 8320
WS_SIZE = 0x1900000
RS = 4224
F2B_IDX = 1536
FC_IDX = 288
F1X_IDX = 1792
import common
from fused import fstamp_flush, publish, poll, token, KN, S_T, S_WAVE, WS
import fused

SC = "sc1"
R0 = 0
R1 = 114688
HC = R1; HC_CH = 4 * 4160; UR = HC + 2 * HC_CH; UR_CH = 4608
LDS_TOTAL = 163840
R2W = 12288
HA = 32768; HB_ = 90112; YB = 147456
HRES = 65536
PB = R1
WS_CM = 0x1330000
WS_ST2P = 0x1340000

class Cfg:
    cpos = 1
    f3cj = 46
    dbl = 2
    ln2j = 45
    r2pre = 8
    outsc = 0
    xp = 0
    pubfirst = 1
    lateq = 1
    hwait = 0
    oldpro = 1
    r1late = 0
    fsearly = 1
    r1n = 4
    b1sleep = 0
    w1pf = 0
    hpreB = 2
    chk2 = 14
    hw2 = 0
    tlb = 0
    cpre = 1
    slp = 0
    pubA = 16
    chkB = 18
    w1pre = 4
    sset = 0
    upto = 4
    wpre = 1
    hpre = 16
    Hpre = 14

SETS = {
 0: ["start","ldiss","k_in","p1st","F1pub","prepoll","B1","URin","conv","p2st","F2pub","B2","h_in","P3mm","F3pub","B3"],
 1: ["start","B3","H_iss","H0","H7","H14","H21","H27","red_w","red_b","red_r","out_st", "F3pub", "w2b_iss", "w2b_in", "w2b_tr"],
 3: ["start"],
 7: ["start","F2pub","cen","B2","h_in","P0_7","P0_14","P0_21","ps0","ps0e","P1_0","P1_7","P1_14","P1_21","ps1","F3pub"],
 6: ["start","F3pub","J0","J8","J16","J18","J22","J26","J30","J34","J38","J42","J46","J50","J55","red_w"],
 4: ["start","karg","p1iss","ldiss","k_in","v_in","q_in","p1lds","p1st","drain","F1pub","hcw","prepoll","B1","URin","conv"],
 2: ["start","URin","conv","p2st","F2pub","cen","w2a_tr","B2","h_in","ps0","ps0e","ps1s","ps1","ps1e","F3pub","B3"],
 5: ["start","URin","rho0","rho1","rho2","rho3","conv","pw","pbar","pz","p2st","F2pub"],
}
def S(a, name):
    names = SETS[Cfg.sset]
    if name in names: stamp(a, names.index(name))

def poll_late(a, vaddr, soff_sgpr, reg, tag):
    lp = a.label("POLL"); done = a.label("PDONE")
    a.vmwait(tag)
    a("v_cmp_ne_u32 vcc, s%d, v%d" % (S_T, reg))
    a("s_nop 4")
    a("s_cmp_eq_u64 vcc, 0")
    a("s_cbranch_scc1 %s" % done)
    a("s_mov_b32 s51, 0")
    a(lp + ":")
    if Cfg.slp: a("s_sleep %d" % Cfg.slp)
    a("buffer_load_dword v%d, v%d, %s, s%d offen sc0 sc1" % (reg, vaddr, WS, soff_sgpr))
    a("s_waitcnt vmcnt(0)")
    a("v_cmp_ne_u32 vcc, s%d, v%d" % (S_T, reg))
    a("s_nop 4")
    a("s_cmp_eq_u64 vcc, 0")
    a("s_cbranch_scc1 %s" % done)
    a("s_add_u32 s51, s51, 1")
    a("s_cmp_lt_u32 s51, 0x40000")
    a("s_cbranch_scc1 %s" % lp)
    a(done + ":")

def interleave(a, main, side, every):
    si = 0
    for i, l in enumerate(main):
        a(l)
        if (i + 1) % every == 0 and si < len(side):
            side[si](); si += 1
    while si < len(side):
        side[si](); si += 1

def gen_stats(a):
    a("L_STATS0:")
    a("s_load_dword s48, s[30:31], s50")
    srd(a, 32, 30, 31, WS_SIZE)
    a("L_STATS:")
    if Cfg.hwait:
        a("s_waitcnt lgkmcnt(0)")
        a("s_mov_b32 s54, s48")
        a("s_mul_i32 s54, s54, 1664525")
        a("s_add_u32 s54, s54, 1013904223")
        a("s_lshl_b32 s53, s2, 6")
        a("s_add_u32 s53, s53, 0x%x" % WS_FLAG)
        a("v_mov_b32 v20, 0")
        a("s_mov_b32 s51, 0")
        a("L_HW:")
        a("buffer_load_dword v21, v20, %s, s53 offen sc0 sc1" % WS)
        a("s_waitcnt vmcnt(0)")
        a("v_cmp_ne_u32 vcc, s54, v21")
        a("s_nop 4")
        a("s_cmp_eq_u64 vcc, 0")
        a("s_cbranch_scc1 L_HWD")
        a("s_add_u32 s51, s51, 1")
        a("s_cmp_lt_u32 s51, 0x40000")
        a("s_cbranch_scc1 L_HW")
        a("L_HWD:")
    a("v_and_b32 v1, 7, v0")
    a("v_lshrrev_b32 v2, 3, v0")
    a("s_mul_i32 s52, s2, %d" % (64 * 896))
    a("v_lshrrev_b32 v3, 3, v2")
    a("v_and_b32 v4, 7, v2")
    a("v_lshl_add_u32 v5, v3, 4, v4")
    a("v_mul_u32_u24 v6, 896, v5")
    a("v_lshl_add_u32 v6, v1, 4, v6")
    a("v_add_u32 v6, s52, v6")
    a("v_add_u32 v7, %d, v6" % (8 * 896))
    srd(a, 36, 8, 9, NB_SD)
    for p in range(2):
        for i in range(7):
            r = 16 + (p * 7 + i) * 4
            a("buffer_load_dwordx4 v[%d:%d], v%d, s[36:39], 0 offen offset:%d" % (r, r + 3, 6 + p, i * 128))
    if Cfg.hw2:
        srd(a, 44, 24, 25, D * F * 2)
        a("s_mul_i32 s52, s2, 392")
        a("v_add_u32 v11, s52, v0")
        a("v_lshlrev_b32 v11, 7, v11")
        a("buffer_load_dword v12, v11, s[44:47], 0 offen")
        a("v_min_u32 v13, 135, v0")
        a("v_add_u32 v13, s52, v13")
        a("v_lshlrev_b32 v13, 7, v13")
        a("buffer_load_dword v14, v13, s[44:47], 0 offen offset:0" if False else "v_add_u32 v13, %d, v13" % (256 * 128))
        a("buffer_load_dword v14, v13, s[44:47], 0 offen")
    NX = 2 if Cfg.hw2 else 0
    a("v_mov_b32 v8, 0x3f803f80")
    for r in range(80, 88): a("v_mov_b32 v%d, 0" % r)
    for p in range(2):
        for i in range(7):
            a("s_waitcnt vmcnt(%d)" % (13 - (p * 7 + i)))
            for c in range(4):
                r = 16 + (p * 7 + i) * 4 + c
                o = 80 + 4 * p + 2 * (c & 1)
                a("v_dot2_f32_bf16 v%d, v%d, v8, v%d" % (o, r, o))
                a("v_dot2_f32_bf16 v%d, v%d, v%d, v%d" % (o + 1, r, r, o + 1))
    for p in range(2):
        a("v_add_f32 v%d, v%d, v%d" % (80 + 4 * p, 80 + 4 * p, 82 + 4 * p))
        a("v_add_f32 v%d, v%d, v%d" % (81 + 4 * p, 81 + 4 * p, 83 + 4 * p))
    for mod in ("quad_perm:[1,0,3,2]", "quad_perm:[2,3,0,1]", "row_half_mirror"):
        for r in (80, 81, 84, 85):
            a("v_add_f32_dpp v%d, v%d, v%d %s row_mask:0xf bank_mask:0xf" % (r, r, r, mod))
    for p in range(2):
        s_, q_ = 80 + 4 * p, 81 + 4 * p
        a("v_mul_f32 v%d, 0x3b124925, v%d" % (s_, s_))
        a("v_mul_f32 v%d, 0x3b124925, v%d" % (q_, q_))
        a("v_fma_f32 v%d, -v%d, v%d, v%d" % (q_, s_, s_, q_))
        a("v_max_f32 v%d, 0, v%d" % (q_, q_))
        a("v_add_f32 v%d, 0x3727c5ac, v%d" % (q_, q_))
        a("v_rsq_f32 v%d, v%d" % (88 + 2 * p, q_))
        a("v_mul_f32 v%d, v%d, v%d" % (89 + 2 * p, s_, 88 + 2 * p))
        a("v_sub_f32 v%d, 0, v%d" % (89 + 2 * p, 89 + 2 * p))
    a("s_lshl_b32 s52, s2, 8")
    a("s_add_u32 s52, s52, 0x%x" % WS_STA)
    a("s_add_u32 s53, s52, 8192")
    a("v_lshlrev_b32 v9, 2, v5")
    a("v_cmp_eq_u32 vcc, 0, v1")
    a("s_and_saveexec_b64 s[54:55], vcc")
    a("buffer_store_dword v88, v9, %s, s52 offen %s" % (WS, SC))
    a("buffer_store_dword v89, v9, %s, s53 offen %s" % (WS, SC))
    a("buffer_store_dword v90, v9, %s, s52 offen offset:32 %s" % (WS, SC))
    a("buffer_store_dword v91, v9, %s, s53 offen offset:32 %s" % (WS, SC))
    a("s_mov_b64 exec, s[54:55]")
    srd(a, 40, 22, 23, D * F * 2)
    a("v_mul_u32_u24 v10, 3584, v2")
    a("v_lshl_add_u32 v10, v1, 4, v10")
    a("s_lshl_b32 s52, s2, 7")
    a("s_cmp_lt_u32 s2, 28")
    a("s_cselect_b32 s52, s52, 0x40000000")
    for i in range(14):
        a("buffer_load_dwordx4 v[%d:%d], v10, s[40:43], s52 offen" % (100 + 4 * i, 103 + 4 * i))
        if i != 13: a("s_add_u32 s52, s52, %d" % (32 * 3584))
    a("s_waitcnt vmcnt(14) lgkmcnt(0)")
    token(a)
    a("s_barrier")
    a("s_add_u32 s52, s2, %d" % FS_IDX)
    publish(a, 52)
    a("s_waitcnt vmcnt(0)")
    a("v_mov_b32 v8, 0x00003f80")
    a("v_mov_b32 v9, 0x3f800000")
    for r in range(16, 24): a("v_mov_b32 v%d, 0" % r)
    for i in range(14):
        for c in range(4):
            a("v_dot2_f32_bf16 v%d, v%d, v8, v%d" % (16 + 2 * c, 100 + 4 * i + c, 16 + 2 * c))
            a("v_dot2_f32_bf16 v%d, v%d, v9, v%d" % (17 + 2 * c, 100 + 4 * i + c, 17 + 2 * c))
    a("v_lshlrev_b32 v24, 8, v2")
    a("v_lshl_add_u32 v24, v1, 5, v24")
    a("ds_write_b128 v24, v[16:19]")
    a("ds_write_b128 v24, v[20:23] offset:16")
    a("v_and_b32 v25, 63, v0")
    a("v_lshrrev_b32 v26, 6, v0")
    a("v_lshlrev_b32 v27, 11, v26")
    a("v_lshl_add_u32 v27, v25, 2, v27")
    a("s_waitcnt lgkmcnt(0)")
    a("s_barrier")
    for i in range(8):
        a("ds_read_b32 v%d, v27 offset:%d" % (28 + i, i * 256))
    a("s_waitcnt lgkmcnt(0)")
    for i in range(1, 8):
        a("v_add_f32 v28, v28, v%d" % (28 + i))
    a("v_lshlrev_b32 v27, 8, v26")
    a("v_lshl_add_u32 v27, v25, 2, v27")
    a("ds_write_b32 v27, v28 offset:8192")
    a("v_lshlrev_b32 v27, 2, v25")
    a("s_waitcnt lgkmcnt(0)")
    a("s_barrier")
    for i in range(4):
        a("ds_read_b32 v%d, v27 offset:%d" % (28 + i, 8192 + i * 256))
    a("s_waitcnt lgkmcnt(0)")
    a("v_add_f32 v28, v28, v29")
    a("v_add_f32 v30, v30, v31")
    a("v_add_f32 v28, v28, v30")
    a("v_mul_f32 v28, 0xbb124925, v28")
    lab = a.label("NOCM")
    a("s_cmp_ge_u32 s2, 28")
    a("s_cbranch_scc1 %s" % lab)
    a("s_cmp_lg_u32 s49, 0")
    a("s_cbranch_scc1 %s" % lab)
    a("s_lshl_b32 s52, s2, 8")
    a("s_add_u32 s52, s52, 0x%x" % WS_CM)
    a("buffer_store_dword v28, v27, %s, s52 offen %s" % (WS, SC))
    a(lab + ":")
    a("s_waitcnt vmcnt(0) lgkmcnt(0)")
    a("s_barrier")
    a("s_add_u32 s52, s2, %d" % FC_IDX)
    publish(a, 52)
    S(a, "B3")
    fstamp_flush(a)
    a("s_endpgm")

def gen(cfg=Cfg):
    a = Asm()
    for l in kernel_header(KN): a(l)
    a("s_load_dwordx16 s[8:23], s[0:1], 0")
    a("s_load_dwordx8 s[24:31], s[0:1], 64")
    S(a, "start")
    a("s_cmp_ge_u32 s2, 256")
    a("s_cbranch_scc1 L_END")
    a("v_lshrrev_b32 v1, 6, v0")
    a("v_and_b32 v2, 63, v0")
    a("v_readfirstlane_b32 s49, v1")
    a("s_mov_b32 s50, 0x%x" % (WS_FLAG + E_IDX * 64))
    a("s_sub_u32 s3, s2, 32")
    a("s_mul_i32 s56, s3, 9363")
    a("s_lshr_b32 s56, s56, 16")
    a("s_mul_i32 s57, s56, 7")
    a("s_sub_u32 s57, s3, s57")
    a("s_and_b32 s52, s3, 7")
    a("s_lshr_b32 s53, s3, 3")
    a("s_mul_i32 s58, s52, 28")
    a("s_add_u32 s58, s58, s53")
    a("s_lshr_b32 s59, s52, 1")
    a("s_lshl_b32 s59, s59, 2")
    a("s_and_b32 s54, s53, 3")
    a("s_add_u32 s59, s59, s54")
    a("s_and_b32 s60, s52, 1")
    a("s_mul_i32 s60, s60, 7")
    a("s_lshr_b32 s55, s53, 2")
    a("s_add_u32 s60, s60, s55")
    a("s_lshl_b32 s61, s52, 2")
    a("s_add_u32 s61, s61, s54")
    a("s_mov_b32 s62, s55")
    a("v_and_b32 v1, 7, v0")
    a("v_lshrrev_b32 v14, 3, v0")
    a("s_mul_i32 s52, s56, %d" % (64 * 896))
    a("s_lshl_b32 s53, s57, 7")
    a("s_add_u32 s52, s52, s53")
    a("v_mul_u32_u24 v8, %d, v14" % (2 * 896))
    a("v_lshl_add_u32 v8, v1, 4, v8")
    a("v_add_u32 v8, s52, v8")
    for j in range(5):
        d = (j - 3) * 896
        if d < 0: a("v_subrev_u32 v%d, %d, v8" % (3 + j, -d))
        else: a("v_add_u32 v%d, %d, v8" % (3 + j, d))
    a("s_lshl_b32 s53, s57, 9")
    a("v_lshl_add_u32 v9, v1, 6, s53")
    for r, n in ((36, NB_SD), (44, NB_SD), (40, 448 * 4 * 2), (4, NB_SD)):
        a("s_mov_b32 s%d, 0x%x" % (r + 2, n))
        a("s_mov_b32 s%d, 0x20000" % (r + 3))
    a("s_cmp_lt_u32 s2, 32")
    a("s_waitcnt lgkmcnt(0)")
    S(a, "karg")
    a("s_cbranch_scc1 L_STATS0")
    a("s_load_dword s48, s[30:31], s50")
    a("s_mov_b32 s36, s10")
    a("s_and_b32 s37, s11, 0xffff")
    for j in range(5):
        a.vm("buffer_load_dwordx4 v[%d:%d], v%d, s[36:39], 0 offen" % (16 + 4 * j, 19 + 4 * j, 3 + j), "k")
    if cfg.cpre and cfg.cpos == 2:
        a("s_getpc_b64 s[98:99]")
        a("L_PC:")
        a("s_lshl_b32 s96, s49, 13")
        a("v_lshlrev_b32 v226, 7, v2")
        a("v_add_u32 v226, s96, v226")
        a("v_min_u32 v226, L_CODE_END-L_PC-4, v226")
        a.vm("global_load_dword v227, v226, s[98:99]", "pre")
    a("s_mov_b32 s44, s12")
    a("s_and_b32 s45, s13, 0xffff")
    a.vm("buffer_load_dwordx4 v[36:39], v8, s[44:47], 0 offen", "v")
    a.vm("buffer_load_dwordx4 v[40:43], v8, s[44:47], 0 offen offset:896", "v")
    if cfg.cpre and cfg.cpos == 3:
        a("s_getpc_b64 s[98:99]")
        a("L_PC:")
        a("s_lshl_b32 s96, s49, 13")
        a("v_lshlrev_b32 v226, 7, v2")
        a("v_add_u32 v226, s96, v226")
        a("v_min_u32 v226, L_CODE_END-L_PC-4, v226")
        a.vm("global_load_dword v227, v226, s[98:99]", "pre")
    a("s_mov_b32 s40, s14")
    a("s_and_b32 s41, s15, 0xffff")
    for j in range(4):
        a.vm("buffer_load_dwordx4 v[%d:%d], v9, s[40:43], 0 offen offset:%d" % (52 + 4 * j, 55 + 4 * j, 16 * j), "sk")
    a("s_mov_b32 s4, s8")
    a("s_and_b32 s5, s9, 0xffff")
    W2V = [6]
    if cfg.cpre and cfg.cpos == 1:
        a("s_getpc_b64 s[98:99]")
        a("L_PC:")
        a("s_lshl_b32 s96, s49, 13")
        a("v_lshlrev_b32 v226, 7, v2")
        a("v_add_u32 v226, s96, v226")
        a("v_min_u32 v226, L_CODE_END-L_PC-4, v226")
        a.vm("global_load_dword v227, v226, s[98:99]", "pre")
    srd(a, 40, 24, 25, D * F * 2)
    a("v_lshrrev_b32 v246, 3, v2")
    a("v_and_b32 v247, 7, v2")
    a("v_bfe_u32 v248, v2, 4, 1")
    a("v_lshlrev_b32 v248, 2, v248")
    a("v_xor_b32 v247, v247, v248")
    a("v_mul_u32_u24 v246, 896, v246")
    a("v_lshl_add_u32 v6, v247, 4, v246")
    a("s_mul_i32 s44, s49, %d" % (448 * 896))
    a("s_lshl_b32 s45, s62, 7")
    a("s_add_u32 s44, s44, s45")
    a("s_sub_u32 s44, s44, %d" % (8 * 896))
    a("s_mul_i32 s45, s49, %d" % (cfg.r1n * 2048))
    def w2dma(base_sgpr, i, tag):
        def f():
            a("s_add_u32 m0, s%d, %d" % (base_sgpr, i * 1024))
            a("s_add_u32 s44, s44, %d" % (8 * 896))
            a.vm("buffer_load_dwordx4 v%d, s[40:43], s44 offen lds" % W2V[0], tag)
        return f
    def partB():
        a.vm("buffer_load_dwordx4 v[44:47], v8, s[4:7], 0 offen", "q")
        a.vm("buffer_load_dwordx4 v[48:51], v8, s[4:7], 0 offen offset:896", "q")
        S(a, "p1iss")
        srd(a, 32, 30, 31, WS_SIZE)
        srd(a, 36, 16, 17, NB_SD)
        a("v_lshlrev_b32 v232, 4, v0")
        a("s_lshl_b32 s96, s58, 13")
        a("s_add_u32 s97, s96, 4096")
        for c in range(2):
            r = 200 + 8 * c
            a.vm("buffer_load_dwordx4 v[%d:%d], v232, s[36:39], s%d offen" % (r, r + 3, 96 + c), "ssm")
            a.vm("buffer_load_dwordx2 v[%d:%d], v232, s[36:39], s%d offen offset:16" % (r + 4, r + 5, 96 + c), "ssm")
        a("v_and_b32 v233, 15, v2")
        a("v_lshrrev_b32 v234, 4, v2")
        a("v_add_u32 v233, v233, v234")
        a("v_subrev_u32 v233, 15, v233")
        a("v_lshlrev_b32 v234, 1, v233")
        a("v_mov_b32 v225, 0x40000000")
        a("v_cmp_gt_i32 vcc, 0, v233")
        a("v_cndmask_b32 v234, v234, v225, vcc")
        a("s_and_b32 s97, s49, 1")
        a("s_lshl_b32 s97, s97, 12")
        a("s_add_u32 s97, s97, s96")
        a.vm("buffer_load_ushort v224, v234, s[36:39], s97 offen", "ssm")
        a("s_lshl_b32 s96, s58, 2")
        a("s_load_dword s63, s[18:19], s96")
        if cfg.cpre and cfg.cpos == 0:
            a("s_getpc_b64 s[98:99]")
            a("L_PC:")
            a("s_lshl_b32 s96, s49, 13")
            a("v_lshlrev_b32 v226, 7, v2")
            a("v_add_u32 v226, s96, v226")
            a("v_min_u32 v226, L_CODE_END-L_PC-4, v226")
            a.vm("global_load_dword v227, v226, s[98:99]", "pre")
    if not cfg.lateq: partB()
    S(a, "ldiss")
    a("v_sub_u32 v10, 31, v14")
    a("v_lshrrev_b32 v11, 2, v10")
    a("v_xor_b32 v11, v11, v1")
    a("v_lshlrev_b32 v11, 4, v11")
    a("v_and_b32 v10, 3, v10")
    a("v_lshl_add_u32 v11, v10, 2, v11")
    a("v_lshl_add_u32 v11, v1, 10, v11")
    a("v_add_u32 v11, %d, v11" % R1)
    a("v_lshrrev_b32 v12, 2, v14")
    a("v_xor_b32 v12, v12, v1")
    a("v_lshlrev_b32 v12, 4, v12")
    a("v_and_b32 v10, 3, v14")
    a("v_lshl_add_u32 v12, v10, 2, v12")
    a("v_lshl_add_u32 v12, v1, 10, v12")
    a("v_add_u32 v12, %d, v12" % (R1 + 8192))
    a("v_lshrrev_b32 v10, 3, v14")
    a("v_xor_b32 v15, v1, v10")
    a("v_lshlrev_b32 v15, 4, v15")
    a("v_lshl_add_u32 v15, v14, 7, v15")
    a("v_add_u32 v15, %d, v15" % R1)
    a("v_xor_b32 v3, 64, v15") if False else None
    a("v_mul_u32_u24 v13, %d, v14" % RS)
    a("v_lshl_add_u32 v13, v1, 4, v13")
    a("s_mul_i32 s52, s57, %d" % (64 * RS))
    a("s_lshl_b32 s53, s56, 7")
    a("s_add_u32 s51, s52, s53")
    a("s_add_u32 s51, s51, 0x%x" % WS_XT)
    a("v_lshrrev_b32 v240, 1, v1")
    a("v_xor_b32 v240, v240, v10")
    a("v_lshlrev_b32 v240, 4, v240")
    a("v_lshl_add_u32 v240, v14, 7, v240")
    a("v_and_b32 v241, 1, v1")
    a("v_lshl_add_u32 v240, v241, 3, v240")
    a("v_add_u32 v240, %d, v240" % R1)
    a("v_mul_u32_u24 v241, %d, v14" % RS2)
    a("v_lshl_add_u32 v241, v1, 4, v241")
    a("s_mul_i32 s50, s57, %d" % (64 * RS2))
    a("s_lshl_b32 s53, s56, 8")
    a("s_sub_u32 s50, s50, s53")
    a("s_add_u32 s50, s50, 0x%x" % (WS_UL + 7936))
    a.vmwait("k")
    S(a, "k_in")
    if cfg.lateq: partB()
    K = lambda j, c: 100 + (j * 4 + c) * 2
    for j in range(5):
        for c in range(4):
            r = 16 + 4 * j + c
            a("v_lshlrev_b32 v%d, 16, v%d" % (K(j, c), r))
            a("v_and_b32 v%d, 0xffff0000, v%d" % (K(j, c) + 1, r))
    a.vmwait("sk")
    W = lambda c, t: 68 + (c * 4 + t) * 2
    for c in range(4):
        r = 52 + 4 * c
        a("v_lshlrev_b32 v%d, 16, v%d" % (W(c, 0), r))
        a("v_lshlrev_b32 v%d, 16, v%d" % (W(c, 0) + 1, r + 2))
        a("v_and_b32 v%d, 0xffff0000, v%d" % (W(c, 1), r))
        a("v_and_b32 v%d, 0xffff0000, v%d" % (W(c, 1) + 1, r + 2))
        a("v_lshlrev_b32 v%d, 16, v%d" % (W(c, 2), r + 1))
        a("v_lshlrev_b32 v%d, 16, v%d" % (W(c, 2) + 1, r + 3))
        a("v_and_b32 v%d, 0xffff0000, v%d" % (W(c, 3), r + 1))
        a("v_and_b32 v%d, 0xffff0000, v%d" % (W(c, 3) + 1, r + 3))
    U = lambda e, c: 140 + e * 8 + 2 * c
    P = lambda r: "v[%d:%d]" % (r, r + 1)
    for e in range(2):
        for c in range(4):
            a("v_pk_mul_f32 %s, %s, %s" % (P(U(e, c)), P(K(3 + e, c)), P(W(c, 0))))
        for t in range(1, 4):
            for c in range(4):
                a("v_pk_fma_f32 %s, %s, %s, %s" % (P(U(e, c)), P(K(3 + e - t, c)), P(W(c, t)), P(U(e, c))))
    a("v_xor_b32 v3, 64, v15")
    a.vmwait("v")
    S(a, "v_in")
    for e in range(2):
        for c in range(4):
            r = 36 + 4 * e + c
            t = 156 + (e * 4 + c) * 2
            a("v_lshlrev_b32 v%d, 16, v%d" % (t, r))
            a("v_and_b32 v%d, 0xffff0000, v%d" % (t + 1, r))
    for e in range(2):
        for c in range(4):
            t = 156 + (e * 4 + c) * 2
            a("v_pk_mul_f32 %s, %s, %s" % (P(U(e, c)), P(U(e, c)), P(t)))
    for i in range(8):
        a("v_cvt_pk_bf16_f32 v%d, v%d, v%d" % (172 + i, 148 + i, 140 + i))
    for i in range(8):
        a("ds_write_b32 v11, v%d offset:%d" % (172 + i, i * 128))
    a("s_waitcnt lgkmcnt(0)")
    a("s_barrier")
    S(a, "p1lds")
    token(a)
    for it in range(2):
        for hb in range(2):
            m = 2 * it + hb
            off = it * 4096 + ((hb ^ it) << 6)
            a("ds_read_b32 v%d, v240 offset:%d" % (16 + 4 * m, off))
            a("ds_read_b32 v%d, v240 offset:%d" % (18 + 4 * m, off + 4))
    for m in range(4):
        a("v_mov_b32 v%d, s%d" % (17 + 4 * m, S_T))
        a("v_mov_b32 v%d, s%d" % (19 + 4 * m, S_T))
    a("s_add_u32 s52, s50, %d" % (32 * RS2))
    for m in range(4):
        a("s_waitcnt lgkmcnt(%d)" % (6 - 2 * m))
        a.vm("buffer_store_dwordx4 v[%d:%d], v241, %s, s%d offen offset:%d %s" % (16 + 4 * m, 19 + 4 * m, WS, 50 if m < 2 else 52, (m & 1) * 128, SC), "p1u")
    a.vmwait("q")
    S(a, "q_in")
    a("s_mov_b32 s52, 0x05040100")
    a("s_mov_b32 s53, 0x07060302")
    for i in range(4):
        a("v_perm_b32 v%d, v%d, v%d, s52" % (180 + 2 * i, 48 + i, 44 + i))
        a("v_perm_b32 v%d, v%d, v%d, s53" % (181 + 2 * i, 48 + i, 44 + i))
    for i in range(8):
        a("ds_write_b32 v12, v%d offset:%d" % (180 + i, i * 128))
    a("s_add_u32 s53, s51, %d" % (32 * RS))
    a("s_waitcnt lgkmcnt(0)")
    a("s_barrier")
    a("ds_read_b128 v[32:35], v15 offset:8192")
    a("ds_read_b128 v[36:39], v3 offset:12288")
    a("s_waitcnt lgkmcnt(1)")
    a.vm("buffer_store_dwordx4 v[32:35], v13, %s, s51 offen %s" % (WS, SC), "p1x")
    a("s_waitcnt lgkmcnt(0)")
    a.vm("buffer_store_dwordx4 v[36:39], v13, %s, s53 offen %s" % (WS, SC), "p1x")
    S(a, "p1st")
    a("s_barrier")
    a.vmwait("ssm")
    for c in range(2):
        w0 = 200 + 8 * c
        b = 140 + 12 * c
        for i in range(4): a("v_alignbit_b32 v%d, v%d, v%d, 16" % (b + i, w0 + i + 1, w0 + i))
        for i in range(4): a("v_mov_b32 v%d, v%d" % (b + 4 + i, w0 + i + 1))
        for i in range(4): a("v_alignbit_b32 v%d, v%d, v%d, 16" % (b + 8 + i, w0 + i + 2, w0 + i + 1))
    a("v_and_b32 v10, 15, v2")
    a("v_lshrrev_b32 v11, 4, v2")
    a("v_bfe_u32 v4, v2, 2, 2")
    a("v_lshrrev_b32 v5, 5, v2")
    a("v_lshl_add_u32 v5, v5, 2, v4")
    a("v_lshlrev_b32 v8, 7, v5")
    a("v_lshlrev_b32 v5, 8, v5")
    a("v_lshl_add_u32 v5, v4, 6, v5")
    a("v_bfe_u32 v4, v2, 3, 1")
    a("v_lshl_add_u32 v8, v4, 6, v8")
    a("v_bfe_u32 v4, v2, 4, 1")
    a("v_lshl_add_u32 v5, v4, 5, v5")
    a("v_lshl_add_u32 v8, v4, 5, v8")
    a("v_and_b32 v4, 3, v2")
    a("v_lshl_add_u32 v5, v4, 3, v5")
    a("v_lshl_add_u32 v8, v4, 3, v8")
    a("s_lshr_b32 s52, s49, 1")
    a("s_and_b32 s53, s49, 1")
    a("s_lshl_b32 s36, s52, 6")
    a("v_xor_b32 v245, s36, v8")
    A_, B_ = 128, 129
    a("v_and_b32 v%d, 3, v10" % A_)
    a("v_mul_u32_u24 v%d, 4160, v%d" % (A_, A_))
    a("v_lshrrev_b32 v130, 2, v10")
    a("v_lshl_add_u32 v%d, v130, 3, v%d" % (A_, A_))
    a("v_lshl_add_u32 v%d, v11, 4, v%d" % (A_, A_))
    a("s_mul_i32 s36, s52, %d" % HC_CH)
    a("s_lshl_b32 s37, s53, 8")
    a("s_add_u32 s36, s36, s37")
    a("s_add_u32 s36, s36, %d" % HC)
    a("v_add_u32 v%d, s36, v%d" % (A_, A_))
    a("v_lshlrev_b32 v%d, 5, v10" % B_)
    a("v_lshlrev_b32 v130, 4, v11")
    a("v_sub_u32 v%d, v130, v%d" % (B_, B_))
    a("s_mul_i32 s36, s52, %d" % UR_CH)
    a("s_add_u32 s36, s36, s37")
    a("s_add_u32 s36, s36, %d" % (UR + 480))
    a("v_add_u32 v%d, s36, v%d" % (B_, B_))
    AD = 132
    a("s_lshl_b32 s36, s52, 4")
    a("s_lshr_b32 s37, s63, s36")
    a("s_and_b32 s37, s37, 0xffff")
    a("s_cmp_eq_u32 s53, 0")
    a("s_cselect_b32 s37, s37, 0")
    a("v_lshlrev_b32 v130, 3, v11")
    a("v_add_u32 v130, v130, v10")
    a("v_sub_u32 v130, 15, v130")
    a("v_and_b32 v131, 1, v130")
    a("v_lshlrev_b32 v131, 4, v131")
    a("v_mov_b32 v136, s37")
    a("v_lshlrev_b32 v131, v131, v136")
    a("v_ashrrev_i32 v130, 1, v130")
    for dw in range(4):
        a("v_cmp_eq_u32 vcc, %d, v130" % dw)
        a("v_cndmask_b32 v%d, 0, v131, vcc" % (AD + dw))
    ACC = 136
    a("v_lshlrev_b32 v4, 4, v2")
    a("v_lshlrev_b32 v13, 4, v0")
    a("v_lshlrev_b32 v9, 5, v0")
    a("s_mul_i32 s54, s58, %d" % (2 * RS))
    a("s_mul_i32 s55, s52, %d" % RS)
    a("s_add_u32 s55, s55, s54")
    a("s_lshl_b32 s50, s53, 11")
    a("s_add_u32 s38, s55, s50")
    a("s_mul_i32 s39, s52, %d" % UR_CH)
    a("s_add_u32 s39, s39, s50")
    a("s_add_u32 s39, s39, %d" % UR)
    a("s_lshr_b32 s52, s58, 5")
    a("s_lshl_b32 s52, s52, 5")
    a("v_and_b32 v12, 31, v2")
    a("v_add_u32 v12, s52, v12")
    a("v_lshlrev_b32 v12, 6, v12")
    a("v_lshlrev_b32 v244, 4, v0")
    a("v_add_u32 v244, %d, v244" % (32 + HC))
    a("v_mul_u32_u24 v243, 4160, v11")
    a("v_lshl_add_u32 v243, v10, 1, v243")
    a("s_and_b32 s52, s49, 1")
    a("s_mul_i32 s52, s52, %d" % HC_CH)
    a("s_add_u32 s52, s52, %d" % HC)
    a("v_add_u32 v243, s52, v243")
    a("v_lshrrev_b32 v232, 5, v2")
    a("v_mul_u32_u24 v232, %d, v232" % UR_CH)
    a("v_and_b32 v233, 31, v2")
    a("v_lshl_add_u32 v232, v233, 4, v232")
    a("v_add_u32 v232, %d, v232" % (UR + 4096))
    for i in range(4): a("v_mov_b32 v%d, 0" % (236 + i))
    srd(a, 4, 22, 23, D * F * 2)
    a("v_lshrrev_b32 v7, 4, v2")
    a("v_and_b32 v233, 15, v2")
    a("v_lshlrev_b32 v234, 2, v7")
    a("v_xor_b32 v233, v233, v234")
    a("v_mul_u32_u24 v7, 3584, v7")
    a("v_lshl_add_u32 v7, v233, 4, v7")
    a("s_mul_i32 s46, s49, %d" % (4 * 3584))
    a("s_lshl_b32 s47, s60, 8")
    a("s_add_u32 s46, s46, s47")
    a("s_sub_u32 s46, s46, %d" % (16 * 3584))
    a("s_lshl_b32 s47, s49, 10")
    NLOW = 2 * cfg.r1n
    def w1dma(ks):
        def f():
            a("s_add_u32 m0, s47, %d" % (ks * 4096))
            if ks == NLOW: a("s_add_u32 s46, s46, %d" % ((NLOW + 1) * 16 * 3584))
            elif ks == 0: a("s_sub_u32 s46, s46, %d" % (27 * 16 * 3584))
            else: a("s_add_u32 s46, s46, %d" % (16 * 3584))
            a.vm("buffer_load_dwordx4 v7, s[4:7], s46 offen lds", "w1h" if ks >= NLOW else "w1")
        return f
    a("ds_write_b128 v232, v[236:239]")
    for c in range(2):
        w0 = 200 + 8 * c; b = 140 + 12 * c
        base = c * HC_CH
        a("ds_write_b128 v244, v[%d:%d] offset:%d" % (b, b + 3, base + 0 * 4160))
        a("ds_write_b128 v244, v[%d:%d] offset:%d" % (b + 4, b + 7, base + 1 * 4160))
        a("ds_write_b128 v244, v[%d:%d] offset:%d" % (b + 8, b + 11, base + 2 * 4160))
        a("ds_write_b128 v244, v[%d:%d] offset:%d" % (w0 + 2, w0 + 5, base + 3 * 4160))
    a("ds_write_b16 v243, v224")
    a("v_lshl_add_u32 v236, v10, 2, v11")
    a("v_bfe_u32 v237, v10, 1, 2")
    a("v_xor_b32 v236, v236, v237")
    a("v_lshlrev_b32 v236, 4, v236")
    a("s_lshl_b32 s36, s49, 13")
    a("s_add_u32 s36, s36, %d" % PB)
    a("v_add_u32 v236, s36, v236")
    a("v_and_b32 v238, 31, v0")
    a("v_lshlrev_b32 v237, 1, v238")
    a("v_bfe_u32 v238, v238, 2, 2")
    a("v_xor_b32 v237, v237, v238")
    a("v_lshlrev_b32 v237, 4, v237")
    a("v_lshrrev_b32 v238, 5, v0")
    a("v_lshl_add_u32 v237, v238, 10, v237")
    a("v_add_u32 v237, %d, v237" % PB)
    a("v_xor_b32 v238, 16, v237")
    a("s_mov_b32 s96, 0x%x" % WS_STA)
    a("s_mov_b32 s97, 0x%x" % WS_STB)
    a("s_add_u32 s98, s54, 0x%x" % WS_XT)
    a("s_add_u32 s99, s54, 0x%x" % WS_HT)
    a("s_add_u32 s14, s98, %d" % RS)
    a("s_add_u32 s15, s99, %d" % RS)
    a("v_add_u32 v234, s45, v245")
    a("v_xor_b32 v235, 64, v234")
    def w2tr_lines(abase, nks, b0, b1):
        out = []
        for ks in range(nks):
            for dt in range(2):
                r = abase + (ks * 2 + dt) * 4
                b = b0 if dt == 0 else b1
                out.append("ds_read_b64_tr_b16 a[%d:%d], v%d offset:%d" % (r, r + 1, b, ks * 2048))
                out.append("ds_read_b64_tr_b16 a[%d:%d], v%d offset:%d" % (r + 2, r + 3, b, ks * 2048 + 1024))
        return out
    S(a, "prepoll")
    UL = 168
    a("v_lshlrev_b32 v240, 4, v0")
    a("v_add_u32 v241, 4096, v240")
    a("s_mul_i32 s36, s58, %d" % (2 * RS2))
    a("s_add_u32 s36, s36, 0x%x" % WS_UL)
    a("s_add_u32 s37, s36, %d" % RS2)
    a("v_lshlrev_b32 v246, 3, v0")
    a("v_add_u32 v246, %d, v246" % UR)
    def ul_loads(tracked):
        for i in range(4):
            l = "buffer_load_dwordx4 v[%d:%d], v%d, %s, s%d offen sc0 sc1" % (UL + 4 * i, UL + 4 * i + 3, 240 + (i & 1), WS, 36 + (i >> 1))
            if tracked: a.vm(l, "ul")
            else: a(l)
    ul_loads(True)
    for i in range(2 * cfg.r1n): w2dma(45, i, "w2r1")()
    if cfg.wpre:
        a("s_mul_i32 s52, s3, 56")
        a("s_mul_i32 s53, s49, 14")
        a("s_add_u32 s52, s52, s53")
        a("v_min_u32 v226, 13, v2")
        a("v_add_u32 v226, s52, v226")
        a("v_lshlrev_b32 v226, 7, v226")
        a.vm("buffer_load_dword v228, v226, s[40:43], 0 offen", "pre")
        a.vm("buffer_load_dword v229, v226, s[4:7], 0 offen", "pre")
    lp = a.label("ULP"); chk = a.label("ULC"); done = a.label("ULD")
    a("s_mov_b32 s51, 0")
    a.vmwait("ul")
    a("s_branch %s" % chk)
    a(lp + ":")
    ul_loads(False)
    a("s_waitcnt vmcnt(0)")
    a(chk + ":")
    for i in range(4):
        a("v_xor_b32 v%d, s%d, v%d" % (184 + 2 * i, S_T, UL + 4 * i + 1))
        a("v_xor_b32 v%d, s%d, v%d" % (185 + 2 * i, S_T, UL + 4 * i + 3))
    a("v_or3_b32 v184, v184, v185, v186")
    a("v_or3_b32 v187, v187, v188, v189")
    a("v_or3_b32 v184, v184, v190, v191")
    a("v_or_b32 v184, v184, v187")
    a("v_cmp_ne_u32 vcc, 0, v184")
    a("s_nop 4")
    a("s_cmp_eq_u64 vcc, 0")
    a("s_cbranch_scc1 %s" % done)
    a("s_add_u32 s51, s51, 1")
    a("s_cmp_lt_u32 s51, 0x40000")
    a("s_cbranch_scc1 %s" % lp)
    a(done + ":")
    S(a, "B1")
    for i in range(4):
        a("v_mov_b32 v%d, v%d" % (UL + 4 * i + 1, UL + 4 * i + 2))
    for i in range(4):
        a("ds_write_b64 v246, v[%d:%d] offset:%d" % (UL + 4 * i, UL + 4 * i + 1, (i >> 1) * UR_CH + (i & 1) * 2048))
    XR = 168; SA = 176
    FR = 16
    w1q = [w1dma(ks) for ks in list(range(NLOW, 28)) + list(range(NLOW))]
    a("s_mov_b32 s53, 0x%x" % WS_FLAG)
    a("s_lshr_b32 s52, s58, 5")
    a("s_lshl_b32 s52, s52, 5")
    a("s_add_u32 s52, s52, %d" % (F1X_IDX - 32))
    a("v_mov_b32 v12, s52")
    a("v_mov_b32 v241, %d" % FS_IDX)
    a("v_cmp_gt_u32 vcc, 32, v2")
    a("v_cndmask_b32 v12, v12, v241, vcc")
    a("v_add_u32 v12, v12, v2")
    a("v_lshlrev_b32 v12, 6, v12")
    for _ in range(cfg.w1pre): w1q.pop(0)()
    nhi_left = 28 - NLOW - cfg.w1pre
    a.vmwait("p1x")
    a("s_waitcnt lgkmcnt(0)")
    a("s_barrier")
    a("s_lshl_b32 s52, s57, 5")
    a("s_add_u32 s52, s52, s56")
    a("s_add_u32 s52, s52, %d" % F1X_IDX)
    publish(a, 52)
    S(a, "URin")
    AM = {}
    for ks in range(cfg.r1n): AM[ks] = 128 + 8 * ks
    segs = [[0, 16], [16 + cfg.r1n, 32]]
    for k0, n in ((cfg.r1n, 16 - cfg.r1n), (16, 4), (22, 4), (20, 2), (26, 2)):
        for sg in segs:
            if sg[1] - sg[0] >= n:
                for i in range(n): AM[k0 + i] = 8 * (sg[0] + i)
                sg[0] += n
                break
        else:
            raise RuntimeError("no room for W2 group")
    AB = [0, 32]; BB = [64, 96]
    def readA(st, rho, aa):
        r = AB[st] + 4 * aa
        off = 64 * rho + 512 * aa
        return ["ds_read_b64 a[%d:%d], v%d offset:%d" % (r, r + 1, A_, off),
                "ds_read_b64 a[%d:%d], v%d offset:%d" % (r + 2, r + 3, A_, off + 8)]
    def readB(st, rho, b):
        r = BB[st] + 4 * b
        return ["ds_read_b128 a[%d:%d], v%d offset:%d" % (r, r + 3, B_, 64 * rho + 512 * (7 - b))]
    def mfma(t, areg, breg, av=False):
        c = "0" if av else "v[%d:%d]" % (ACC + 4 * t, ACC + 4 * t + 3)
        return "v_mfma_f32_16x16x32_bf16 v[%d:%d], %s[%d:%d], a[%d:%d], %s" % (ACC + 4 * t, ACC + 4 * t + 3, "v" if av else "a", areg, areg + 3, breg, breg + 3, c)
    def fs_issue():
        a.vm("buffer_load_dword v242, v12, %s, s53 offen sc0 sc1" % WS, "fs")
    def x_load(g):
        def f():
            a.vm("buffer_load_dwordx4 v[%d:%d], v13, %s, s%d offen" % (XR + 4 * g, XR + 4 * g + 3, WS, 98 if g == 0 else 14), "ep")
        return f
    def st_load(g, hlf, which):
        def f():
            reg = SA + 16 * which + 4 * hlf
            a.vm("buffer_load_dwordx4 v[%d:%d], v9, %s, s%d offen offset:%d" % (reg, reg + 3, WS, 96 + which, 16 * hlf), "ep")
        return f
    def cm_load():
        a("s_lshl_b32 s36, s60, 2")
        a("s_add_u32 s36, s36, s49")
        a("s_lshl_b32 s36, s36, 7")
        a("s_add_u32 s36, s36, 0x%x" % WS_CM)
        a("v_and_b32 v12, 31, v2")
        a("v_lshlrev_b32 v12, 2, v12")
        a.vm("buffer_load_dword v3, v12, %s, s36 offen" % WS, "cm")
    def fc_issue():
        a("v_and_b32 v12, 31, v2")
        a("v_add_u32 v12, %d, v12" % FC_IDX)
        a("v_lshlrev_b32 v12, 6, v12")
        a.vm("buffer_load_dword v242, v12, %s, s53 offen sc0 sc1" % WS, "fc")
    if cfg.xp == 1: w1q_all = list(w1q); w1q = w1q[:1] + w1q[-1:]
    nhi = nhi_left
    r1rd = [(lambda l: (lambda: a(l)))(l) for l in w2tr_lines(128, cfg.r1n, 234, 235)]
    sides = {0: w1q[:nhi // 2],
             1: [lambda: a.vmwait("w2r1")] + r1rd + w1q[nhi // 2:nhi],
             2: [fs_issue] + w1q[nhi:],
             3: [x_load(0), x_load(1)] + [st_load(0, h, w) for h in range(2) for w in range(2)] + [fc_issue]}
    for b in range(8):
        for l in readB(0, 0, b): a(l)
    for aa in range(8):
        for l in readA(0, 0, aa): a(l)
    for rho in range(4):
        st = rho & 1
        nxt = []
        if rho < 3:
            for b in range(8): nxt += readB(1 - st, rho + 1, b)
            for aa in range(8): nxt += readA(1 - st, rho + 1, aa)
        ms = []
        if rho == 0:
            for t in range(8): ms.append((mfma(t, AD, BB[st] + 4 * t, True), None))
        for aa in range(8):
            for t in range(aa, 8):
                ms.append((mfma(t, AB[st] + 4 * aa, BB[st] + 4 * (t - aa)), aa))
        a("s_waitcnt lgkmcnt(%d)" % (15 if rho == 0 else 0))
        S(a, "rho%d" % rho)
        if rho == 2: a("s_barrier")
        if rho == 3:
            a("s_lshl_b32 s52, s49, 6")
            a("v_xor_b32 v247, s52, v5")
            a("v_add_u32 v248, 0x10000, v247")
            poll_late(a, 12, 53, 242, "fs")
            a("s_barrier")
            nxt = []
            for ks in range(NLOW, 28):
                b = 247 if ks < 16 else 248
                nxt.append("ds_read_b64_tr_b16 v[%d:%d], v%d offset:%d" % (FR + 4 * ks, FR + 4 * ks + 1, b, (ks & 15) * 4096))
                nxt.append("ds_read_b64_tr_b16 v[%d:%d], v%d offset:%d" % (FR + 4 * ks + 2, FR + 4 * ks + 3, b, (ks & 15) * 4096 + 2048))
        side = list(sides[rho]); step = max(1, len(ms) // (len(side) + 1))
        ni = 0; waited = -1
        for i, (m, aa) in enumerate(ms):
            if rho == 0 and aa is not None and aa > waited and aa <= 1:
                a("s_waitcnt lgkmcnt(%d)" % (14 if aa == 0 else 0))
                waited = aa
            a(m)
            if (rho > 0 or waited == 1) and ni < len(nxt):
                a(nxt[ni]); ni += 1
                if rho == 3 and ni < len(nxt) and i % 4 == 0:
                    a(nxt[ni]); ni += 1
            if (i + 1) % step == 0 and side:
                side.pop(0)()
        while ni < len(nxt):
            a(nxt[ni]); ni += 1
        while side: side.pop(0)()
    S(a, "conv")
    a.vmwait("w1")
    a("s_barrier")
    for ks in range(NLOW):
        b = 247 if ks < 16 else 248
        a("ds_read_b64_tr_b16 v[%d:%d], v%d offset:%d" % (FR + 4 * ks, FR + 4 * ks + 1, b, (ks & 15) * 4096))
        a("ds_read_b64_tr_b16 v[%d:%d], v%d offset:%d" % (FR + 4 * ks + 2, FR + 4 * ks + 3, b, (ks & 15) * 4096 + 2048))
    for t in range(8):
        a("ds_write_b128 v236, v[%d:%d] offset:%d" % (ACC + 4 * t, ACC + 4 * t + 3, 1024 * t))
    S(a, "pw")
    a.vmwait("ep")
    X = 224
    Z = 208
    a("s_waitcnt lgkmcnt(0)")
    a("s_barrier")
    S(a, "pbar")
    ZR = [136, 152]
    for g in range(2):
        for hf in range(2):
            a("ds_read_b128 v[%d:%d], v237 offset:%d" % (ZR[g] + 8 * hf, ZR[g] + 8 * hf + 3, hf * 8192 + g * 16384))
            a("ds_read_b128 v[%d:%d], v238 offset:%d" % (ZR[g] + 8 * hf + 4, ZR[g] + 8 * hf + 7, hf * 8192 + g * 16384))
    for g in range(2):
        Xg = 208 + 16 * g
        for i in range(4):
            a("v_lshlrev_b32 v%d, 16, v%d" % (Xg + 2 * i, XR + 4 * g + i))
            a("v_and_b32 v%d, 0xffff0000, v%d" % (Xg + 2 * i + 1, XR + 4 * g + i))
        for i in range(4):
            A2 = SA + 2 * i; B2 = SA + 16 + 2 * i
            a("v_pk_fma_f32 v[%d:%d], v[%d:%d], v[%d:%d], v[%d:%d]" % (Xg + 8 + 2 * i, Xg + 9 + 2 * i, Xg + 2 * i, Xg + 2 * i + 1, A2, A2 + 1, B2, B2 + 1))
    for g in range(2):
        Xg = 208 + 16 * g
        a("s_waitcnt lgkmcnt(%d)" % (4 if g == 0 else 0))
        z = ZR[g]
        for i in range(4):
            a("v_pk_add_f32 v[%d:%d], v[%d:%d], v[%d:%d]" % (z + 2 * i, z + 2 * i + 1, z + 2 * i, z + 2 * i + 1, z + 8 + 2 * i, z + 9 + 2 * i))
        for i in range(4):
            a("v_pk_fma_f32 v[%d:%d], v[%d:%d], v[%d:%d], v[%d:%d]" % (z + 2 * i, z + 2 * i + 1, Xg + 8 + 2 * i, Xg + 9 + 2 * i, z + 2 * i, z + 2 * i + 1, Xg + 2 * i, Xg + 2 * i + 1))
        for i in range(4):
            a("v_cvt_pk_bf16_f32 v%d, v%d, v%d" % (z + 8 + i, z + 2 * i, z + 2 * i + 1))
        a.vm("buffer_store_dwordx4 v[%d:%d], v13, %s, s%d offen %s" % (z + 8, z + 11, WS, 99 if g == 0 else 15, SC), "p2st")
    S(a, "p2st")
    poll_late(a, 12, 53, 242, "fc")
    cm_load()
    r2n = 16 - cfg.r1n
    a("s_mul_i32 s45, s49, %d" % (r2n * 2048))
    r2q = [w2dma(45, i, "w2r2") for i in range(2 * r2n)]
    for _ in range(cfg.r2pre): r2q.pop(0)()
    def f2_addr():
        a("v_lshlrev_b32 v12, 6, v2")
        a("v_add_u32 v13, %d, v12" % (64 * 64))
        a("v_add_u32 v14, %d, v12" % (128 * 64))
        a("v_min_u32 v15, 31, v2")
        a("v_lshlrev_b32 v15, 6, v15")
        a("v_add_u32 v15, %d, v15" % (192 * 64))
    def f2_issue(soff):
        lab = a.label("FI")
        a("s_cmp_lg_u32 s49, 0")
        a("s_cbranch_scc1 %s" % lab)
        for i, v in enumerate((12, 13, 14, 15)):
            a("buffer_load_dword v%d, v%d, %s, s%d offen sc0 sc1" % (246 + i, v, WS, soff))
        a(lab + ":")
    def f2_check(soff):
        lp = a.label("POLL"); done = a.label("PDONE"); chk = a.label("PCHK")
        a("s_cmp_lg_u32 s49, 0")
        a("s_cbranch_scc1 %s" % done)
        a("s_mov_b32 s51, 0")
        a("s_branch %s" % chk)
        a(lp + ":")
        for i, v in enumerate((12, 13, 14, 15)):
            a("buffer_load_dword v%d, v%d, %s, s%d offen sc0 sc1" % (246 + i, v, WS, soff))
        a(chk + ":")
        a("s_waitcnt vmcnt(0)")
        for i in range(4): a("v_xor_b32 v%d, s%d, v%d" % (246 + i, S_T, 246 + i))
        for i in range(1, 4): a("v_or_b32 v246, v246, v%d" % (246 + i))
        a("v_cmp_ne_u32 vcc, 0, v246")
        a("s_nop 4")
        a("s_cmp_eq_u64 vcc, 0")
        a("s_cbranch_scc1 %s" % done)
        a("s_add_u32 s51, s51, 1")
        a("s_cmp_lt_u32 s51, 0x40000")
        a("s_cbranch_scc1 %s" % lp)
        a(done + ":")
    a("s_lshl_b32 s46, s49, 13")
    a("s_lshl_b32 s47, s49, 12")
    a("s_add_u32 s47, s47, %d" % YB)
    a("v_lshrrev_b32 v10, 3, v2")
    a("v_and_b32 v241, 7, v2")
    a("v_bfe_u32 v242, v2, 4, 1")
    a("v_lshlrev_b32 v242, 2, v242")
    a("v_xor_b32 v241, v241, v242")
    a("v_mul_u32_u24 v10, %d, v10" % RS)
    a("v_lshl_add_u32 v10, v241, 4, v10")
    a("s_mul_i32 s38, s49, %d" % (8 * RS))
    a("s_lshl_b32 s39, s59, 7")
    a("s_add_u32 s38, s38, s39")
    a("s_add_u32 s38, s38, 0x%x" % (WS_HT - 32 * RS))
    a("s_lshl_b32 s39, s49, 10")
    a.vmwait("p2st")
    a("s_waitcnt lgkmcnt(0)")
    a("s_barrier")
    a("s_add_u32 s52, s3, %d" % F2_IDX)
    publish(a, 52)
    S(a, "F2pub")
    if cfg.upto == 2:
        a("s_branch L_DONE")
    def hdma(half, i):
        def f():
            a("s_add_u32 m0, s39, %d" % ((HA, HB_)[half] + i * 4096))
            if half == 1 and i == 0: a("s_sub_u32 s38, s38, %d" % (13 * 32 * RS - 2048))
            else: a("s_add_u32 s38, s38, %d" % (32 * RS))
            a.vm("buffer_load_dwordx4 v10, %s, s38 offen lds" % WS, "h%d_%d" % (half, i))
        return f
    def w2round(tag):
        return [w2dma(46, i, tag) for i in range(8)] + [w2dma(47, i, tag) for i in range(4)]
    def w2round_reads(abaseX, abaseY):
        return w2tr_lines(abaseX, 4, 9, 7) + w2tr_lines(abaseY, 2, 11, 3)
    a("v_mov_b32 v128, 0x00003f80")
    a("v_mov_b32 v129, 0x3f800000")
    cen = []
    for g in range(28):
        for i in range(4):
            r = FR + 4 * g + i; t = 132 + 8 * (g & 1) + 2 * i
            cen.append("v_dot2_f32_bf16 v%d, v%d, v128, v3" % (t, r))
            cen.append("v_dot2_f32_bf16 v%d, v%d, v129, v3" % (t + 1, r))
        if g > 0:
            for i in range(4):
                r = FR + 4 * (g - 1) + i; t = 132 + 8 * ((g - 1) & 1) + 2 * i
                cen.append("v_cvt_pk_bf16_f32 v%d, v%d, v%d" % (r, t, t + 1))
    for i in range(4):
        cen.append("s_nop 0")
    for i in range(4):
        r = FR + 4 * 27 + i; t = 132 + 8 * (27 & 1) + 2 * i
        cen.append("v_cvt_pk_bf16_f32 v%d, v%d, v%d" % (r, t, t + 1))
    a.vmwait("cm")
    interleave(a, cen, r2q, 336 // (len(r2q) + 1) // 2)
    S(a, "cen")
    a("v_add_u32 v9, s46, v245")
    a("v_xor_b32 v7, 64, v9")
    a("v_add_u32 v11, s47, v245")
    a("v_xor_b32 v3, 64, v11")
    a("v_add_u32 v128, %d, v8" % HA)
    a("v_xor_b32 v129, 64, v128")
    a("v_add_u32 v130, %d, v8" % HB_)
    a("v_xor_b32 v131, 64, v130")
    a("v_add_u32 v247, s45, v245")
    a("v_xor_b32 v248, 64, v247")
    a.vmwait("w2r2")
    S(a, "w2a_in")
    for l in w2tr_lines(0, r2n, 247, 248): a(l)
    f2_addr()
    a("s_mov_b32 s53, 0x%x" % (WS_FLAG + F2_IDX * 64))
    a.lkall()
    S(a, "w2a_tr")
    poll(a, [12, 13, 14, 15], 53)
    S(a, "B2")
    for i in range(14): hdma(0, i)()
    hB = [hdma(1, i) for i in range(14)]
    for i in range(cfg.hpreB): hB.pop(0)()
    lab = a.label("EPO")
    a("s_or_b32 s52, s3, s49")
    a("s_cmp_lg_u32 s52, 0")
    a("s_cbranch_scc1 %s" % lab)
    a("s_mov_b32 s52, %d" % E_IDX)
    publish(a, 52)
    a(lab + ":")
    NB = 3
    HBUF = 200
    def hreads(ks, ps):
        out = []
        for i in range(2):
            r = HBUF + (ks % NB) * 8 + 4 * i
            vb = 128 + 2 * ps + i
            tag = "hr%d_%d_%d" % (ps, ks, i)
            out.append(("ds_read_b64_tr_b16 v[%d:%d], v%d offset:%d" % (r, r + 1, vb, ks * 2048), tag))
            out.append(("ds_read_b64_tr_b16 v[%d:%d], v%d offset:%d" % (r + 2, r + 3, vb, ks * 2048 + 1024), tag))
        return out
    ACCP = [136, 168]
    r3 = w2round("w2r3"); r4 = w2round("w2r4")
    sync1 = {0: 1, 4: 5, 12: 13}
    sync0 = {0: 0, 2: 2, 6: 6, 14: 13}
    for ps in range(2):
        acc = ACCP[ps]
        if ps == 0:
            a.vmwait("h0_%d" % sync0[0]); a("s_barrier")
            S(a, "h_in")
        if ps == 1:
            r3rd = w2round_reads(AM[16], AM[20])
            a.vmwait("h1_%d" % sync1[0]); a("s_barrier")
            S(a, "ps1s")
        for k0 in range(NB - 1):
            for l, t in hreads(k0, ps): a.lk(l, t)
        for ks in range(28):
            S(a, "P%d_%d" % (ps, ks))
            kn = ks + NB - 1
            nxt = []
            if kn < 28:
                if ps == 0 and kn in sync0 and kn > 0:
                    a.vmwait("h0_%d" % sync0[kn]); a("s_barrier")
                if ps == 1 and kn in sync1 and kn > 0:
                    a.vmwait("h1_%d" % sync1[kn]); a("s_barrier")
                nxt = hreads(kn, ps)
            if ps == 1 and ks == 1: a.vmwait("w2r3")
            if ps == 1 and ks == 14: a.lkneed("r3")
            for i in range(2):
                a.lkneed("hr%d_%d_%d" % (ps, ks, i))
                r = HBUF + (ks % NB) * 8 + 4 * i
                a("v_mfma_f32_32x32x16_bf16 v[%d:%d], v[%d:%d], v[%d:%d], %s" % (acc + 16 * i, acc + 16 * i + 15, FR + 4 * ks, FR + 4 * ks + 3, r, r + 3, "0" if ks == 0 else "v[%d:%d]" % (acc + 16 * i, acc + 16 * i + 15)))
                if nxt:
                    a.lk(*nxt[2 * i]); a.lk(*nxt[2 * i + 1])
                if ps == 1 and 1 <= ks < 13:
                    if r3rd: a.lk(r3rd.pop(0), "r3")
            if ps == 0:
                if hB: hB.pop(0)()
                elif r3: r3.pop(0)()
            if ps == 1 and 14 <= ks < 26: r4[ks - 14]()
            if ps == 1 and ks == cfg.pubA:
                a.vmwait("p3a")
                a("s_barrier")
                a("s_lshl_b32 s37, s59, 4")
                a("s_add_u32 s37, s37, s60")
                a("s_add_u32 s37, s37, %d" % F3_IDX)
                publish(a, 37)
        S(a, "ps%d" % ps)
        if ps == 0:
            while hB: hB.pop(0)()
            while r3: r3.pop(0)()
            a("s_lshl_b32 s43x, s60, 2" if False else "s_lshl_b32 s55, s60, 2")
            a("s_add_u32 s55, s55, s49")
            a("s_lshl_b32 s55, s55, 11")
            a("s_add_u32 s55, s55, 0x%x" % WS_H1F)
        for i in range(2):
            a("s_lshl_b32 s52, s59, 1")
            a("s_add_u32 s52, s52, %d" % (32 * ps + i))
            a("s_mul_i32 s52, s52, %d" % (112 * 1024))
            a("s_add_u32 s52, s52, s55")
            o = 224 + 8 * i
            for q in range(8):
                a("v_cvt_pk_bf16_f32 v%d, v%d, v%d" % (o + q, acc + 16 * i + 2 * q, acc + 16 * i + 2 * q + 1))
            for q in range(8):
                a("v_pk_max_i16 v%d, v%d, 0" % (o + q, o + q))
            a.vm("buffer_store_dwordx4 v[%d:%d], v4, %s, s52 offen %s" % (o, o + 3, WS, SC), "p3a" if ps == 0 else "p3st")
            a.vm("buffer_store_dwordx4 v[%d:%d], v4, %s, s52 offen offset:1024 %s" % (o + 4, o + 7, WS, SC), "p3a" if ps == 0 else "p3st")
        S(a, "ps%de" % ps)
    S(a, "P3mm")
    a("v_min_u32 v15, 13, v2")
    a("v_lshlrev_b32 v15, 6, v15")
    a("s_lshr_b32 s36, s61, 1")
    a("s_lshl_b32 s38, s36, 10")
    a("s_add_u32 s38, s38, 0x%x" % (WS_FLAG + F3_IDX * 64))
    a.vm("buffer_load_dword v14, v15, %s, s38 offen sc0 sc1" % WS, "f3a")
    a("s_and_b32 s52, s49, 1")
    a("s_lshl_b32 s52, s52, 6")
    a("v_xor_b32 v12, s52, v8")
    a("s_lshr_b32 s52, s49, 1")
    a("s_mul_i32 s52, s52, %d" % (HB_ - HA))
    a("s_lshl_b32 s53, s60, 12")
    a("s_add_u32 s52, s52, s53")
    a("s_add_u32 s52, s52, %d" % HA)
    a("v_add_u32 v12, s52, v12")
    for k in range(2):
        a("ds_read_b64_tr_b16 v[%d:%d], v12 offset:%d" % (200 + 4 * k, 201 + 4 * k, k * 2048))
        a("ds_read_b64_tr_b16 v[%d:%d], v12 offset:%d" % (202 + 4 * k, 203 + 4 * k, k * 2048 + 1024))
    a.vmwait("w2r4")
    for l in w2round_reads(AM[22], AM[26]): a(l)
    a.vmwait("p3st")
    a("s_waitcnt lgkmcnt(0)")
    a("s_barrier")
    a("s_lshl_b32 s50, s59, 4")
    a("s_add_u32 s50, s50, s60")
    a("s_add_u32 s37, s50, %d" % F3B_IDX)
    publish(a, 37)
    S(a, "F3pub")
    if cfg.upto == 3:
        a("s_branch L_DONE")
    RING = 30; RB = 80
    a("s_lshr_b32 s36, s61, 1")
    a("s_lshl_b32 s36, s36, 1")
    a("s_and_b32 s39, s61, 1")
    a("s_add_u32 s36, s36, s39")
    a("s_mul_i32 s39, s49, %d" % (28 * 1024))
    a("s_mul_i32 s37, s36, %d" % (112 * 1024))
    a("s_add_u32 s39, s39, s37")
    a("s_add_u32 s39, s39, 0x%x" % WS_H1F)
    def hload(j):
        st, ks = divmod(j, 28)
        r = RB + (j % RING) * 4
        if j == 28: a("s_add_u32 s39, s39, %d" % (32 * 112 * 1024 - 28 * 1024))
        a.vm("buffer_load_dwordx4 v[%d:%d], v4, %s, s39 offen offset:%d" % (r, r + 3, WS, (ks % 4) * 1024), "H%d" % j)
        if ks % 4 == 3: a("s_add_u32 s39, s39, 4096")
    poll_late(a, 15, 38, 14, "f3a")
    S(a, "B3")
    for j in range(cfg.Hpre): hload(j)
    S(a, "H_iss")
    a("v_mov_b32 v208, 0x3f803f80")
    for i in range(4): a("v_mov_b32 v%d, 0" % (210 + i))
    for i in range(8):
        a("v_dot2_f32_bf16 v%d, v%d, v208, v%d" % (210 + 2 * (i & 1), 200 + i, 210 + 2 * (i & 1)))
        a("v_dot2_f32_bf16 v%d, v%d, v%d, v%d" % (211 + 2 * (i & 1), 200 + i, 200 + i, 211 + 2 * (i & 1)))
    a("v_pk_add_f32 v[210:211], v[210:211], v[212:213]")
    a("v_mov_b32 v212, v210")
    a("v_mov_b32 v213, v211")
    a("v_permlane32_swap_b32 v210, v212")
    a("v_permlane32_swap_b32 v211, v213")
    a("v_pk_add_f32 v[210:211], v[210:211], v[212:213]")
    a("s_lshr_b32 s52, s49, 1")
    a("s_lshl_b32 s52, s52, 5")
    a("s_and_b32 s50, s49, 1")
    a("s_add_u32 s52, s52, s50")
    a("s_lshl_b32 s50, s59, 1")
    a("s_add_u32 s52, s52, s50")
    a("s_lshl_b32 s52, s52, 8")
    a("s_lshl_b32 s50, s60, 14")
    a("s_add_u32 s52, s52, s50")
    a("s_add_u32 s52, s52, 0x%x" % WS_ST2P)
    a("v_and_b32 v12, 31, v2")
    a("v_lshlrev_b32 v12, 3, v12")
    a("s_mov_b32 exec_hi, 0")
    a.vm("buffer_store_dwordx2 v[210:211], v12, %s, s52 offen %s" % (WS, SC), "st2p")
    a("s_mov_b64 exec, -1")
    a("v_lshrrev_b32 v12, 3, v2")
    a("v_and_b32 v13, 7, v2")
    a("v_bfe_u32 v10, v2, 4, 1")
    a("v_lshlrev_b32 v10, 2, v10")
    a("v_xor_b32 v13, v13, v10")
    a("v_mul_u32_u24 v12, %d, v12" % RS)
    a("v_lshrrev_b32 v10, 2, v13")
    a("v_lshl_add_u32 v12, v10, 11, v12")
    a("v_and_b32 v13, 3, v13")
    a("v_lshl_add_u32 v12, v13, 4, v12")
    a("s_lshl_b32 s45, s62, 6")
    a("s_lshl_b32 s46, s49, 4")
    a("s_add_u32 s45, s45, s46")
    a("s_mul_i32 s45, s45, %d" % RS)
    a("s_lshl_b32 s46, s36, 6")
    a("s_add_u32 s45, s45, s46")
    a("s_add_u32 s45, s45, 0x%x" % WS_HT)
    a("s_lshl_b32 s46, s49, 11")
    a("s_add_u32 s46, s46, %d" % HRES)
    def hres(i):
        a("s_add_u32 m0, s46, %d" % (i * 1024))
        a.vm("buffer_load_dwordx4 v12, %s, s45 offen lds" % WS, "hres")
        if i == 0: a("s_add_u32 s45, s45, %d" % (8 * RS))
    ACC4 = 16
    a("s_and_b32 s47, s49, 1")
    a("s_lshr_b32 s63, s49, 1")
    a("s_lshl_b32 s52, s47, 5")
    a("s_add_u32 s36, s36, s52")
    a("v_and_b32 v13, 31, v2")
    a("v_lshrrev_b32 v9, 5, v2")
    a("v_mul_u32_u24 v10, %d, v9" % (7 * 16384))
    a("v_lshl_add_u32 v10, v13, 3, v10")
    a("s_add_u32 s38, s38, %d" % ((F3B_IDX - F3_IDX) * 64))
    SP = 200
    def st2loads():
        a("s_lshl_b32 s37, s36, 8")
        a("s_add_u32 s37, s37, 0x%x" % WS_ST2P)
        for i in range(7):
            a.vm("buffer_load_dwordx2 v[%d:%d], v10, %s, s37 offen" % (SP + 2 * i, SP + 2 * i + 1, WS), "st2")
            if i != 6: a("s_add_u32 s37, s37, 16384")
    def red_write(dtp, st):
        lab = a.label("RW")
        t = 2 * dtp + st
        if dtp == 0:
            a("s_cmp_eq_u32 s47, %d" % st)
            a("s_cbranch_scc1 %s" % lab)
        a("s_lshr_b32 s52, s49, 1")
        a("s_xor_b32 s52, s52, %d" % dtp)
        a("s_lshl_b32 s52, s52, 1")
        a("s_add_u32 s52, s52, %d" % st)
        a("s_sub_u32 s53, s49, s52")
        a("s_and_b32 s53, s53, 3")
        a("s_mul_i32 s52, s52, 3")
        a("s_add_u32 s52, s52, s53")
        a("s_lshl_b32 s52, s52, 12")
        a("s_sub_u32 s52, s52, 4096")
        a("v_add_u32 v14, s52, v4")
        for q in range(4):
            a("ds_write_b128 v14, v[%d:%d] offset:%d" % (ACC4 + 16 * t + 4 * q, ACC4 + 16 * t + 4 * q + 3, q * 1024))
        a(lab + ":")
    RED = red_write
    issued = cfg.Hpre
    S(a, "w2b_tr")
    for j in range(56):
        st, ks = divmod(j, 28)
        if j == cfg.chkB - 6:
            a.vm("buffer_load_dword v14, v15, %s, s38 offen sc0 sc1" % WS, "f3b")
        if j == cfg.chkB:
            poll_late(a, 15, 38, 14, "f3b")
            S(a, "out_stX")
        a.vmwait("H%d" % j)
        S(a, "H%d" % {0: 0, 14: 7, 28: 14, 42: 21, 55: 27}.get(j, 99))
        S(a, "J%d" % j)
        r = RB + (j % RING) * 4
        ab = AM[ks]
        for dt in range(2):
            t = dt * 2 + st
            a("v_mfma_f32_32x32x16_bf16 v[%d:%d], a[%d:%d], v[%d:%d], %s" % (ACC4 + 16 * t, ACC4 + 16 * t + 15, ab + 4 * dt, ab + 4 * dt + 3, r, r + 3, "0" if ks == 0 else "v[%d:%d]" % (ACC4 + 16 * t, ACC4 + 16 * t + 15)))
            if issued < (56 if j >= cfg.chkB else 28) and issued < j + RING and (dt == 0 or cfg.chkB <= j < cfg.chkB + cfg.dbl):
                hload(issued); issued += 1
        if j == 8:
            a.vmwait("st2p")
            a("s_barrier")
            a("s_lshl_b32 s37, s59, 4")
            a("s_add_u32 s37, s37, s60")
            a("s_add_u32 s37, s37, %d" % F3C_IDX)
            publish(a, 37)
        if j == cfg.f3cj:
            a("s_add_u32 s43, s38, %d" % ((F3C_IDX - F3B_IDX) * 64))
            a.vm("buffer_load_dword v11, v15, %s, s43 offen sc0 sc1" % WS, "f3c")
        if j == 53:
            poll_late(a, 15, 43, 11, "f3c")
            st2loads()
        if j in (cfg.f3cj - 2, cfg.f3cj - 1): hres(j - (cfg.f3cj - 2))
        if j == 44: red_write(1, 0)
        if j == 47: red_write(0, 0)
    a("s_nop 9")
    red_write(1, 1)
    red_write(0, 1)
    labo = a.label("OWN"); labe = a.label("OWNE")
    a("s_cmp_eq_u32 s47, 0")
    a("s_cbranch_scc1 %s" % labo)
    for i in range(16): a("v_mov_b32 v%d, v%d" % (ACC4 + i, ACC4 + 16 + i))
    a(labo + ":")
    S(a, "red_w")
    a("s_lshl_b32 s52, s47, 6")
    a("v_xor_b32 v15, s52, v8")
    a("s_lshl_b32 s52, s63, 12")
    a("s_add_u32 s52, s52, %d" % HRES)
    a("v_add_u32 v15, s52, v15")
    a("s_mul_i32 s52, s49, %d" % (3 * 4096))
    a("v_add_u32 v14, s52, v4")
    srd(a, 40, 26, 27, NB_SD)
    a("v_mul_u32_u24 v7, 896, v13")
    a("v_lshrrev_b32 v9, 5, v2")
    a("v_lshl_add_u32 v7, v9, 4, v7")
    a("s_mul_i32 s52, s36, %d" % (32 * 896))
    a("s_lshl_b32 s53, s62, 1")
    a("s_add_u32 s53, s53, s63")
    a("s_lshl_b32 s53, s53, 6")
    a("s_add_u32 s52, s52, s53")
    a.vmwait("hres")
    a("s_waitcnt lgkmcnt(0)")
    a("s_barrier")
    S(a, "red_b")
    T = 96
    for j4 in range(4):
        a("ds_read_b64_tr_b16 v[%d:%d], v15 offset:%d" % (240 + 2 * j4, 241 + 2 * j4, j4 * 1024))
    for d in range(3):
        for q in range(4):
            a("ds_read_b128 v[%d:%d], v14 offset:%d" % (T + 16 * d + 4 * q, T + 16 * d + 4 * q + 3, d * 4096 + q * 1024))
    a.vmwait("st2")
    for i in range(1, 7):
        a("v_pk_add_f32 v[%d:%d], v[%d:%d], v[%d:%d]" % (SP, SP + 1, SP, SP + 1, SP + 2 * i, SP + 2 * i + 1))
    a("v_mov_b32 v%d, v%d" % (SP + 2, SP))
    a("v_mov_b32 v%d, v%d" % (SP + 3, SP + 1))
    a("v_permlane32_swap_b32 v%d, v%d" % (SP, SP + 2))
    a("v_permlane32_swap_b32 v%d, v%d" % (SP + 1, SP + 3))
    a("v_pk_add_f32 v[%d:%d], v[%d:%d], v[%d:%d]" % (SP, SP + 1, SP, SP + 1, SP + 2, SP + 3))
    a("v_mul_f32 v%d, 0x3b124925, v%d" % (SP, SP))
    a("v_mul_f32 v%d, 0x3b124925, v%d" % (SP + 1, SP + 1))
    a("v_fma_f32 v%d, -v%d, v%d, v%d" % (SP + 1, SP, SP, SP + 1))
    a("v_max_f32 v%d, 0, v%d" % (SP + 1, SP + 1))
    a("v_add_f32 v%d, 0x3727c5ac, v%d" % (SP + 1, SP + 1))
    a("v_rsq_f32 v248, v%d" % (SP + 1))
    a("s_waitcnt lgkmcnt(12)")
    for dw in range(8):
        hx = 160 + 2 * dw
        a("v_lshlrev_b32 v%d, 16, v%d" % (hx, 240 + dw))
        a("v_and_b32 v%d, 0xffff0000, v%d" % (hx + 1, 240 + dw))
    a("s_waitcnt lgkmcnt(8)")
    for i in range(0, 16, 2):
        a("v_pk_add_f32 v[%d:%d], v[%d:%d], v[%d:%d]" % (ACC4 + i, ACC4 + i + 1, ACC4 + i, ACC4 + i + 1, T + i, T + i + 1))
    a("s_waitcnt lgkmcnt(0)")
    for i in range(0, 16, 2):
        a("v_pk_add_f32 v[%d:%d], v[%d:%d], v[%d:%d]" % (T + 16 + i, T + 17 + i, T + 16 + i, T + 17 + i, T + 32 + i, T + 33 + i))
    for i in range(0, 16, 2):
        a("v_pk_add_f32 v[%d:%d], v[%d:%d], v[%d:%d]" % (ACC4 + i, ACC4 + i + 1, ACC4 + i, ACC4 + i + 1, T + 16 + i, T + 17 + i))
    S(a, "red_r")
    for dw in range(8):
        hx = 160 + 2 * dw
        a("v_pk_fma_f32 v[%d:%d], v[%d:%d], v[248:249], v[%d:%d] op_sel_hi:[1,0,1]" % (hx, hx + 1, ACC4 + 2 * dw, ACC4 + 2 * dw + 1, hx, hx + 1))
    for dw in range(8):
        hx = 160 + 2 * dw
        a("v_cvt_pk_bf16_f32 v%d, v%d, v%d" % (180 + dw, hx, hx + 1))
    for jp in range(2):
        A0 = 180 + 4 * jp
        a("v_permlane32_swap_b32 v%d, v%d" % (A0, A0 + 2))
        a("v_permlane32_swap_b32 v%d, v%d" % (A0 + 1, A0 + 3))
    ob = ["", " sc1", " sc0 sc1", " nt"][cfg.outsc]
    a("buffer_store_dwordx4 v[180:183], v7, s[40:43], s52 offen" + ob)
    a("buffer_store_dwordx4 v[184:187], v7, s[40:43], s52 offen offset:32" + ob)
    S(a, "out_st")
    a("L_DONE:")
    if common.STAMPS:
        fstamp_flush(a)
    a("L_END:")
    a("s_endpgm")
    gen_stats(a)
    a("L_CODE_END:")
    a("s_endpgm")
    return a.lines, dict(vgpr=256, sgpr=102, lds=LDS_TOTAL, grid=256, agpr=256)

HEADER = """; Kernarg layout (96 bytes, ptrs only, base s[0:1]):
; an epoch word in d_ws so that words left by earlier launches never match)."""

def build(out, cfg=Cfg):
    lines, info = gen(cfg)
    lines = fix_hazards(lines, verbose=True)
    txt = HEADER.split("\n") + ["; generated by a hand-written generator (gen/fused26.py)",
           "; @launch grid=(%d,1,1) block=(256,1,1) lds=%d" % (info["grid"], info["lds"]),
           '.amdgcn_target "amdgcn-amd-amdhsa--gfx950"', ".text"]
    txt += lines
    txt.append('.section .rodata,"a"')
    txt += kernel_desc(KN, info["vgpr"], info["sgpr"], accum=256, agpr=info["agpr"])
    open(out, "w").write("\n".join(txt) + "\n")

if __name__ == "__main__":
    import sys, os
    common.STAMPS = int(os.environ.get("STAMPS", "0"))
    out = sys.argv[1]
    for kv in sys.argv[2:]:
        k, v = kv.split("=")
        setattr(Cfg, k, int(v))
    build(out)
```
